```python
import torch

def _softmax(x, axis=-1):
    return torch.softmax(x, dim=axis)
def _gelu(x):
    return torch.nn.functional.gelu(x, approximate="tanh")
def _silu(x):
    return torch.nn.functional.silu(x)
def _sigmoid(x):
    return torch.sigmoid(x)
def _layernorm(x, axis=-1, eps=1e-5):
    m = x.mean(dim=axis, keepdim=True)
    v = x.var(dim=axis, keepdim=True, unbiased=False)
    return (x - m) / torch.sqrt(v + eps)
def _scatter_add(tgt, idx, src, axis=0):
    return tgt.clone().index_add_(axis, idx, src)
def _segment_sum(src, seg, n):
    out = torch.zeros((n,) + src.shape[1:], dtype=src.dtype)
    return out.index_add_(0, seg, src)
def _pad(x, pw):
    flat = tuple(v for pair in reversed(pw) for v in pair)
    return torch.nn.functional.pad(x, flat)

kernel_name = 'parallel_sum__grouped_kv_mqa__dense_activation_relu__prompt'

def setup_inputs():

    _w = (lambda a: (lambda t: t.to(torch.bfloat16) if t.is_floating_point() else t)(torch.as_tensor(a)))
    def _A_setup():
        B, S, D, H = 1, 2048, 512, 32
        Dh = D // H
        return {
            "x": _w((lambda *s: torch.randn(*s, dtype=torch.bfloat16) * 0.05)(B, S, D)),
            "wq": _w((lambda *s: torch.randn(*s, dtype=torch.bfloat16) * 0.2)(D, H * Dh)),
            "wk": _w((lambda *s: torch.randn(*s, dtype=torch.bfloat16) * 0.2)(D, Dh)),
            "wv": _w((lambda *s: torch.randn(*s, dtype=torch.bfloat16) * 0.1)(D, Dh)),
            "wo": _w((lambda *s: torch.randn(*s, dtype=torch.bfloat16) * 0.1)(H * Dh, D)),
        }
    _A_in = _A_setup()

    def _B_setup():
        B, S, D, Dff = 1, 2048, 512, 1792
        return {
            "x": _w((lambda *s: torch.randn(*s, dtype=torch.bfloat16) * 0.05)(B, S, D)),
            "w1": _w((lambda *s: torch.randn(*s, dtype=torch.bfloat16) * 0.1)(D, Dff)),
            "w2": _w((lambda *s: torch.randn(*s, dtype=torch.bfloat16) * 0.1)(Dff, D)),
        }
    _B_in = _B_setup()

    return {
        "A_x": _A_in["x"],
        "A_wq": _A_in["wq"],
        "A_wk": _A_in["wk"],
        "A_wv": _A_in["wv"],
        "A_wo": _A_in["wo"],
        "B_x": _B_in["x"],
        "B_w1": _B_in["w1"],
        "B_w2": _B_in["w2"],
    }

def reference(A_x, A_wq, A_wk, A_wv, A_wo, B_x, B_w1, B_w2):
    def _A_ref(x, wq, wk, wv, wo):
        B, S, D = x.shape
        H = 32
        Dh = D // H
        q = (lambda x, *d: x.permute(*d))((x @ wq).reshape(B, S, H, Dh), 0, 2, 1, 3)
        k = x @ wk
        v = x @ wv
        scores = torch.einsum("bhqd,bkd->bhqk", q, k) * (Dh ** -0.5)
        p = _softmax(scores, axis=-1)
        o = torch.einsum("bhqk,bkd->bhqd", p, v)
        return (lambda x, *d: x.permute(*d))(o, 0, 2, 1, 3).reshape(B, S, H * Dh) @ wo

    def _B_ref(x, w1, w2):
        h = torch.einsum("bsd,df->bsf", x, w1)
        zero = torch.zeros_like(h)
        h = torch.maximum(h, zero)
        return torch.einsum("bsf,fd->bsd", h, w2)

    x = A_x
    xn = _layernorm(x, axis=-1)
    return x + _A_ref(xn, A_wq, A_wk, A_wv, A_wo) + _B_ref(xn, B_w1, B_w2)
```

```python
import sys
NAME = "parallel_sum__grouped_kv_mqa__dense_activation_relu__prompt_kernel"

class Opt:
    LNA = False
    TS = False
    BIAS = 88.0
    SPIN = 200000
opt = Opt()

WS_EPOCH = 0
WS_FKV = 0x1000
WS_FH  = 0x2000
WS_FO  = 0x3000
WS_TS  = 0x8000
WS_TSB = 0xC00000
WS_KV  = 0x10000
WS_O   = 0x40000
WS_H   = 0x300000
WS_SIZE = 0x1000000

XN = 0; XPITCH = 1040; XN_END = 64*XPITCH
SLOT = 18432; NSLOT = 5
RING_END = XN_END + NSLOT*SLOT
PART = RING_END
RARR = PART + 4096
R4 = RARR + 256
VOTE = 162816
LDS_SIZE = 163840
KVR = XN_END + SLOT
QX = XN_END + 3*SLOT
T2 = [i*8192 for i in range(10)] + [QX + i*8192 for i in range(5)] + [KVR + i*8192 for i in range(4)]
NRES = 15
RED = 0; RPITCH = 272

sTB, sHG, sWV, sTAG, sTH, sG = 26, 27, 28, 29, 30, 31
SX, SG_, SKV, SWS, SW2, SWO, SOUT = 32, 36, 40, 44, 48, 52, 56
sVAR, sLB, sK, sP32, sKQ, sFB = 60, 61, 62, 63, 64, 65
sONE2, sLO, sHI = 66, 67, 68
sVM = 70
sT0, sT1, sT2, sT3, sT4, sT5 = 72, 73, 74, 75, 76, 77
sHB, sOB, sCNT, sW2B = 78, 79, 80, 81
sTS = 84
def srd(b): return f"s[{b}:{b+3}]"
def vr(b, n): return f"v[{b}:{b+n-1}]" if n > 1 else f"v{b}"

class Gen:
    def __init__(self): self.l = []; self.nl = 0; self.vm = []
    def __call__(self, s):
        for x in s.strip("\n").split("\n"):
            x = x.strip()
            if x: self.l.append(("" if x.endswith(":") else "    ") + x)
    def label(self, p="L"):
        self.nl += 1; return f"{p}_{self.nl}"
    def vmop(self, s, tag=None):
        self(s); self.vm.append(tag)
    def vmwait(self, tag, extra=""):
        idx = max(i for i, t in enumerate(self.vm) if t == tag)
        n = len(self.vm) - 1 - idx
        assert n <= 63, n
        self(f"s_waitcnt vmcnt({n}) {extra}")
    def vmreset(self): self.vm = []
    def ts(self, i):
        if opt.TS:
            self(f"s_memtime s[{sT4}:{sT5}]\ns_waitcnt lgkmcnt(0)\ns_mov_b32 s{sTS+i}, s{sT4}")
    def text(self): return "\n".join(self.l) + "\n"

def mfma(d, a, b, c):
    cs = vr(c, 16) if isinstance(c, int) else c
    return f"v_mfma_f32_32x32x16_bf16 {vr(d,16)}, {vr(a,4)}, {vr(b,4)}, {cs}"
def smf(d, a, b, idx): return f"v_smfmac_f32_32x32x32_bf16 {vr(d,16)}, {vr(a,4)}, {vr(b,8)}, v{idx}"

def build():
    g = Gen()
    vTID, vL, vX, vL16 = 0, 1, 2, 3
    g(f"""
    s_cmp_ge_u32 s2, 256
    s_cbranch_scc1 L_END
    s_load_dwordx16 s[4:19], s[0:1], 0
    s_load_dwordx4 s[20:23], s[0:1], 64
    s_load_dwordx2 s[24:25], s[0:1], 80
    """)
    if opt.TS:
        g(f"s_memtime s[{sTS}:{sTS+1}]\ns_memrealtime s[{sTS+14}:{sTS+15}]")
    g(f"""
    v_lshrrev_b32 v4, 6, v0
    v_and_b32 v{vL}, 63, v0
    s_and_b32 s{sT0}, s2, 7
    v_readfirstlane_b32 s{sWV}, v4
    s_lshr_b32 s{sT1}, s2, 3
    s_lshr_b32 s{sTB}, s{sT0}, 1
    s_lshl_b32 s{sTB}, s{sTB}, 3
    s_and_b32 s{sT2}, s{sT1}, 7
    s_add_u32 s{sTB}, s{sTB}, s{sT2}
    s_and_b32 s{sHG}, s{sT0}, 1
    s_lshl_b32 s{sHG}, s{sHG}, 2
    s_lshr_b32 s{sT2}, s{sT1}, 3
    s_add_u32 s{sHG}, s{sHG}, s{sT2}
    v_lshrrev_b32 v4, 3, v0
    v_lshlrev_b32 v4, 10, v4
    v_and_b32 v5, 7, v0
    v_lshl_add_u32 v{vX}, v5, 4, v4
    v_lshlrev_b32 v{vL16}, 4, v{vL}
    s_lshl_b32 s{sT0}, s{sTB}, 16
    s_mov_b32 s{SX+2}, 0x200000
    s_mov_b32 s{SX+3}, 0x20000
    s_waitcnt lgkmcnt(0)
    s_mov_b32 s{SX}, s4
    s_mov_b32 s{SX+1}, s5
    """)
    XR = 32
    for i in range(8):
        g(f"buffer_load_dwordx4 {vr(XR+4*i,4)}, v{vX}, {srd(SX)}, s{sT0} offen offset:{i*128}")
    g(f"s_load_dword s{sTAG}, s[24:25], {WS_EPOCH}")
    g(f"""
    s_and_b32 s{sTH}, s{sWV}, 1
    s_lshr_b32 s{sG}, s{sWV}, 1
    s_and_b32 s{sT1}, s{sWV}, 3
    s_cmp_lt_u32 s{sWV}, 4
    s_cselect_b32 s{SKV}, s8, s10
    s_cselect_b32 s{SKV+1}, s9, s11
    s_mov_b32 s{SKV+2}, 16384
    s_mov_b32 s{SKV+3}, 0x20000
    s_lshl_b32 s{sT1}, s{sT1}, 12
    s_mul_i32 s{sT2}, s{sWV}, {8*XPITCH}
    s_mov_b32 m0, s{sT2}
    s_nop 0
    """)
    for i in range(4):
        g(f"buffer_load_dwordx4 v{vL16}, {srd(SKV)}, s{sT1} offen offset:{i*1024} lds")
    vW = 4
    g(f"""
    s_cmp_eq_u32 s{sG}, 1
    s_cselect_b32 s{SG_}, s6, s16
    s_cselect_b32 s{SG_+1}, s7, s17
    s_movk_i32 s{sT1}, 3584
    s_cselect_b32 s{sT1}, 1024, s{sT1}
    s_mov_b32 s{SG_+3}, 0x20000
    s_movk_i32 s{sT2}, 448
    s_cselect_b32 s{sT2}, 128, s{sT2}
    s_lshl_b32 s{SG_+2}, s{sT1}, 9
    s_mul_i32 s{sT2}, s{sT2}, s{sHG}
    s_lshl_b32 s{sP32}, s{sT1}, 5
    s_lshl_b32 s{sK}, s{sT1}, 4
    s_mul_i32 s{sK}, s{sK}, s{sTH}
    s_cmp_eq_u32 s{sG}, 2
    s_cselect_b32 s{sT3}, 192, 0
    s_cmp_eq_u32 s{sG}, 3
    s_cselect_b32 s{sT3}, 320, s{sT3}
    s_add_u32 s{sT2}, s{sT2}, s{sT3}
    v_lshrrev_b32 v5, 2, v{vL}
    v_mul_lo_u32 v5, v5, s{sT1}
    v_and_b32 v6, 3, v{vL}
    v_lshl_add_u32 v5, v6, 4, v5
    v_add_u32 v{vW}, s{sT2}, v5
    s_lshl_b32 s{sT3}, s{sG}, 2
    s_add_u32 s{sT3}, s{sT3}, 2
    s_cmp_eq_u32 s{sG}, 0
    s_cselect_b32 s{sT3}, 0, s{sT3}
    s_lshl_b32 s{sT4}, s{sT3}, 10
    s_add_u32 s{sT3}, s{sT3}, s{sTH}
    s_lshl_b32 s{sLB}, s{sT3}, 10
    s_add_u32 s{sLB}, s{sLB}, {XN_END}
    s_cmp_eq_u32 s{sG}, 0
    s_cselect_b32 s{sVAR}, 0, 1
    s_cmp_eq_u32 s{sWV}, 6
    s_cselect_b32 s{sVAR}, 2, s{sVAR}
    s_cmp_eq_u32 s{sWV}, 7
    s_cselect_b32 s{sVAR}, 3, s{sVAR}
    """)
    vA, vA2, vB, vTR = 5, 6, 7, 8
    g(f"""
    v_bfe_u32 v9, v{vL}, 2, 2
    v_lshlrev_b32 v{vTR}, 6, v9
    v_bfe_u32 v9, v{vL}, 4, 1
    v_lshl_add_u32 v{vTR}, v9, 5, v{vTR}
    v_and_b32 v9, 3, v{vL}
    v_lshl_add_u32 v{vTR}, v9, 3, v{vTR}
    v_lshrrev_b32 v9, 5, v{vL}
    v_lshl_add_u32 v{vA}, v9, 9, v{vTR}
    s_add_u32 s{sT4}, s{sT4}, {XN_END}
    v_add_u32 v{vA}, s{sT4}, v{vA}
    v_add_u32 v{vA2}, {3*SLOT}, v{vA}
    """)
    NTV = [3, 2, 2, 2]
    NDMA = [3, 2, 4, 0]
    def g1_dma(var, chunk):
        slot = chunk % NSLOT
        n = 0
        if var == 3: return 0
        for jj in range(NTV[var]):
            g(f"s_add_u32 m0, s{sLB}, {slot*SLOT + jj*(2048-64)}")
            g("s_nop 0")
            g.vmop(f"buffer_load_dwordx4 v{vW}, {srd(SG_)}, s{sK} offen offset:{64*jj} lds", ("w", chunk))
        if var == 2:
            g(f"s_add_u32 s{sT0}, s{sK}, {16*3584}")
            for jj in range(2):
                g(f"s_add_u32 m0, s{sLB}, {slot*SLOT + jj*(2048-64) + 1024}")
                g("s_nop 0")
                g.vmop(f"buffer_load_dwordx4 v{vW}, {srd(SG_)}, s{sT0} offen offset:{64*jj} lds", ("w", chunk))
        g(f"s_add_u32 s{sK}, s{sK}, s{sP32}")
    LJ = g.label("J")
    for var in range(3):
        nxt = g.label("V")
        g(f"s_cmp_lg_u32 s{sVAR}, {var}\ns_cbranch_scc1 {nxt}")
        for c in range(NSLOT): g1_dma(var, c)
        g(f"s_branch {LJ}\n{nxt}:")
    g(f"{LJ}:")
    def wait_variant(base):
        done = g.label("WD")
        for var in range(3):
            nxt = g.label("WV")
            g(f"s_cmp_lg_u32 s{sVAR}, {var}\ns_cbranch_scc1 {nxt}\ns_waitcnt vmcnt({base + NSLOT*NDMA[var]})\ns_branch {done}\n{nxt}:")
        g(f"s_waitcnt vmcnt({base})\n{done}:")
    g(f"""
    s_mov_b32 s{SWS}, s24
    s_mov_b32 s{SWS+1}, s25
    s_mov_b32 s{SWS+2}, {WS_SIZE}
    s_mov_b32 s{SWS+3}, 0x20000
    s_mov_b32 s{SW2}, s18
    s_mov_b32 s{SW2+1}, s19
    s_mov_b32 s{SW2+2}, {1792*1024}
    s_mov_b32 s{SW2+3}, 0x20000
    s_mov_b32 s{SWO}, s12
    s_mov_b32 s{SWO+1}, s13
    s_mov_b32 s{SWO+2}, 0x80000
    s_mov_b32 s{SWO+3}, 0x20000
    s_mov_b32 s{SOUT}, s20
    s_mov_b32 s{SOUT+1}, s21
    s_mov_b32 s{SOUT+2}, 0x200000
    s_mov_b32 s{SOUT+3}, 0x20000
    s_mov_b32 s{sONE2}, 0x3f803f80
    s_mov_b32 s{sLO}, 0x00003f80
    s_mov_b32 s{sHI}, 0x3f800000
    s_mov_b32 s{sVM}, 0x0000ffff
    s_mov_b32 s{sVM+1}, 0x0000ffff
    s_mov_b32 s{sFB}, 0
    """)
    vXW, vKB, vKA = 9, 10, 11
    g(f"""
    v_and_b32 v12, 31, v{vL}
    s_lshl_b32 s{sT0}, s{sTH}, 5
    v_add_u32 v12, s{sT0}, v12
    v_mul_u32_u24 v12, {XPITCH}, v12
    v_lshrrev_b32 v13, 5, v{vL}
    v_lshl_add_u32 v{vB}, v13, 4, v12
    v_lshrrev_b32 v12, 3, v0
    v_mul_u32_u24 v12, {XPITCH}, v12
    v_and_b32 v14, 7, v0
    v_lshl_add_u32 v{vXW}, v14, 4, v12
    s_lshl_b32 s{sT0}, s{sHG}, 3
    v_add_u32 v14, s{sT0}, v14
    v_mul_u32_u24 v14, {XPITCH}, v14
    v_lshl_add_u32 v14, v13, 4, v14
    s_and_b32 s{sT1}, s{sWV}, 3
    s_lshl_b32 s{sT1}, s{sT1}, 8
    v_add_u32 v{vKB}, s{sT1}, v14
    v_bfe_u32 v12, v{vL}, 2, 2
    v_lshl_add_u32 v12, v13, 3, v12
    v_lshlrev_b32 v12, 5, v12
    v_and_b32 v14, 3, v{vL}
    v_lshl_add_u32 v12, v14, 3, v12
    s_mul_i32 s{sT2}, s{sWV}, {8*XPITCH}
    v_add_u32 v{vKA}, s{sT2}, v12
    """)
    a0, a1, vM, vD, E = 12, 13, 14, 15, 16
    Q2 = 24
    WK = 64
    g(f"v_mov_b32 v{a0}, 0\nv_mov_b32 v{a1}, 0")
    for r in range(4): g(f"v_mov_b32 v{Q2+r}, 0")
    wait_variant(4 + 4)
    for j in range(16): g(f"v_dot2_f32_bf16 v{a0+(j&1)}, v{XR+j}, s{sONE2}, v{a0+(j&1)}")
    wait_variant(4)
    g.ts(1)
    for j in range(16, 32): g(f"v_dot2_f32_bf16 v{a0+(j&1)}, v{XR+j}, s{sONE2}, v{a0+(j&1)}")
    def dpp_reduce(v):
        for m in ("quad_perm:[1,0,3,2]", "quad_perm:[2,3,0,1]", "row_half_mirror"):
            g(f"s_nop 1\nv_add_f32_dpp v{v}, v{v}, v{v} {m} row_mask:0xf bank_mask:0xf")
    g(f"s_nop 2\nv_add_f32 v{a0}, v{a0}, v{a1}")
    dpp_reduce(a0)
    wait_variant(0)
    for s in range(8):
        for q in range(2):
            g(f"ds_read_b64_tr_b16 {vr(WK+4*s+2*q,2)}, v{vKA} offset:{s*512+q*128}")
    g(f"""
    v_mul_f32 v{a0}, 0x3b000000, v{a0}
    v_cvt_pk_bf16_f32 v{vM}, v{a0}, v{a0}
    v_and_b32 v{vM}, 0xffff0000, v{vM}
    v_sub_f32 v{vD}, v{a0}, v{vM}
    v_xor_b32 v{vM}, 0x80000000, v{vM}
    """)
    for i in range(8):
        for jj in range(4):
            j = XR + 4*i + jj
            g(f"v_dot2_f32_bf16 v{E+2*jj}, v{j}, s{sLO}, v{vM}\nv_dot2_f32_bf16 v{E+2*jj+1}, v{j}, s{sHI}, v{vM}")
        for jj in range(4):
            j = XR + 4*i + jj
            acc = Q2 + 2*(jj & 1)
            g(f"v_pk_fma_f32 {vr(acc,2)}, {vr(E+2*jj,2)}, {vr(E+2*jj,2)}, {vr(acc,2)}\nv_cvt_pk_bf16_f32 v{j}, v{E+2*jj}, v{E+2*jj+1}")
        if not opt.LNA:
            g(f"ds_write_b128 v{vXW}, {vr(XR+4*i,4)} offset:{XN + i*128}")
    vR = 13
    g(f"""
    v_pk_add_f32 {vr(Q2,2)}, {vr(Q2,2)}, {vr(Q2+2,2)}
    v_add_f32 v{a0}, v{Q2}, v{Q2+1}
    """)
    dpp_reduce(a0)
    g(f"""
    v_mul_f32 v{a0}, 0x3b000000, v{a0}
    v_fma_f32 v{a0}, -v{vD}, v{vD}, v{a0}
    v_max_f32 v{a0}, 0, v{a0}
    v_cvt_pk_bf16_f32 v{a0}, v{a0}, v{a0}
    v_and_b32 v{a0}, 0xffff0000, v{a0}
    v_add_f32 v{a0}, 0x3727c5ac, v{a0}
    v_cvt_pk_bf16_f32 v{a0}, v{a0}, v{a0}
    v_and_b32 v{a0}, 0xffff0000, v{a0}
    v_sqrt_f32 v{a0}, v{a0}
    s_nop 0
    v_cvt_pk_bf16_f32 v{a0}, v{a0}, v{a0}
    v_and_b32 v{a0}, 0xffff0000, v{a0}
    v_rcp_f32 v{vR}, v{a0}
    """)
    if opt.LNA:
        g(f"s_nop 0\nv_mov_b32 v{a0}, v{vR}")
        for i in range(8):
            for jj in range(4):
                j = XR + 4*i + jj
                g(f"v_lshlrev_b32 v{E+2*jj}, 16, v{j}\nv_and_b32 v{E+2*jj+1}, 0xffff0000, v{j}")
            for jj in range(4):
                g(f"v_pk_mul_f32 {vr(E+2*jj,2)}, {vr(E+2*jj,2)}, {vr(a0,2)}")
            for jj in range(4):
                g(f"v_cvt_pk_bf16_f32 v{XR+4*i+jj}, v{E+2*jj}, v{E+2*jj+1}")
            g(f"ds_write_b128 v{vXW}, {vr(XR+4*i,4)} offset:{XN + i*128}")
    else:
        skip = g.label("R4")
        g(f"""
        v_lshrrev_b32 v{E}, 3, v0
        v_lshlrev_b32 v{E}, 2, v{E}
        v_add_u32 v{E}, {RARR}, v{E}
        ds_write_b32 v{E}, v{vR}
        s_cmp_lg_u32 s{sWV}, s{sHG}
        s_cbranch_scc1 {skip}
        v_lshrrev_b32 v{E}, 3, v{vL}
        v_lshlrev_b32 v{E}, 4, v{E}
        v_and_b32 v{E+1}, 3, v{vL}
        v_lshl_add_u32 v{E}, v{E+1}, 2, v{E}
        v_add_u32 v{E}, {R4}, v{E}
        ds_write_b32 v{E}, v{vR}
        {skip}:
        """)
    g.ts(2)
    g(f"s_waitcnt vmcnt(0) lgkmcnt(0)\ns_add_u32 s{sTAG}, s{sTAG}, 1\ns_barrier")
    g.ts(3)
    KB = 96
    KD = 128
    for s in range(8): g(f"ds_read_b128 {vr(KB+4*s,4)}, v{vKB} offset:{XN + s*32}")
    vRT = 12
    if not opt.LNA:
        g(f"""
        v_and_b32 v13, 31, v{vL}
        s_lshl_b32 s{sT0}, s{sTH}, 5
        v_add_u32 v13, s{sT0}, v13
        v_lshlrev_b32 v13, 2, v13
        v_add_u32 v13, {RARR}, v13
        ds_read_b32 v{vRT}, v13
        """)
    lv, lj = g.label("KVV"), g.label("KVJ")
    g(f"""
    s_and_b32 s{sT0}, s{sWV}, 3
    s_lshl_b32 s{sT0}, s{sT0}, 10
    s_add_u32 s{sT0}, s{sT0}, {PART}
    v_lshrrev_b32 v14, 5, v{vL}
    v_and_b32 v15, 31, v{vL}
    s_waitcnt lgkmcnt(0)
    s_cmp_ge_u32 s{sWV}, 4
    s_cbranch_scc1 {lv}
    """)
    for s in range(8): g(mfma(KD, WK+4*s, KB+4*s, KD if s else "0"))
    g(f"""
    v_lshlrev_b32 v14, 8, v14
    v_lshl_add_u32 v14, v15, 5, v14
    v_add_u32 v14, s{sT0}, v14
    s_mov_b32 exec_lo, 0xff
    s_mov_b32 exec_hi, 0xff
    s_nop 7
    ds_write_b128 v14, {vr(KD,4)}
    ds_write_b128 v14, {vr(KD+4,4)} offset:16
    s_branch {lj}
    {lv}:
    """)
    for s in range(8): g(mfma(KD, KB+4*s, WK+4*s, KD if s else "0"))
    g(f"""
    v_lshlrev_b32 v14, 4, v14
    v_lshl_add_u32 v14, v15, 5, v14
    v_add_u32 v14, s{sT0}, v14
    s_mov_b64 exec, s[{sVM}:{sVM+1}]
    s_nop 8
    ds_write_b128 v14, {vr(KD,4)} offset:512
    {lj}:
    s_mov_b64 exec, -1
    """)
    ACC = 144
    FR = [64, 96]
    def g1_reads(var, chunk, ks):
        slot = chunk % NSLOT
        base = FR[chunk & 1] + 16*ks
        out = [f"ds_read_b128 {vr(base,4)}, v{vB} offset:{XN + (2*chunk+ks)*32}"]
        va, so = (vA, slot*SLOT) if slot < 3 else (vA2, (slot-3)*SLOT)
        for jj in range(NTV[var]):
            for q in range(2):
                out.append(f"ds_read_b64_tr_b16 {vr(base+4+4*jj+2*q,2)}, v{va} offset:{so + jj*2048 + ks*1024 + q*256}")
        return out
    G1END = g.label("G1END")
    for var in range(4):
        nxt = g.label("G1V")
        if var < 3: g(f"s_cmp_lg_u32 s{sVAR}, {var}\ns_cbranch_scc1 {nxt}")
        g.vmreset()
        NT = NTV[var]
        for ks in range(2):
            for s in g1_reads(var, 0, ks): g(s)
        for j in range(16):
            if j + 1 < 16 and j + 1 >= NSLOT and NDMA[var]:
                g.vmwait(("w", j + 1), "lgkmcnt(0)")
            else:
                g("s_waitcnt lgkmcnt(0)")
            if var == 3 and j == 4:
                g(f"""
                s_waitcnt vmcnt(0)
                s_lshl_b32 s{sT0}, s{sTB}, 3
                s_add_u32 s{sT0}, s{sT0}, s{sHG}
                s_lshl_b32 s{sT0}, s{sT0}, 4
                s_add_u32 s{sT0}, s{sT0}, {WS_FKV}
                v_mov_b32 v14, 0
                v_mov_b32 v15, s{sTAG}
                s_mov_b64 exec, 1
                buffer_store_dword v15, v14, {srd(SWS)}, s{sT0} offen sc1
                s_mov_b64 exec, -1
                """)
            g("s_barrier")
            if var == 3 and j == 0:
                S0 = 16
                g(f"v_add_u32 v14, {PART}, v{vL16}")
                for k in range(4): g(f"ds_read_b128 {vr(S0+4*k,4)}, v14 offset:{k*1024}")
                if not opt.LNA:
                    g(f"""
                    v_bfe_u32 v14, v{vL}, 1, 3
                    v_lshlrev_b32 v14, 4, v14
                    v_add_u32 v14, {R4}, v14
                    v_and_b32 v15, 1, v{vL}
                    v_lshlrev_b32 v15, 4, v15
                    s_lshl_b32 s{sT0}, s{sHG}, 5
                    s_add_u32 s{sT0}, s{sT0}, {RARR}
                    v_add_u32 v15, s{sT0}, v15
                    v_cmp_gt_u32 vcc, 32, v{vL}
                    s_nop 1
                    v_cndmask_b32 v14, v15, v14, vcc
                    ds_read_b128 {vr(32,4)}, v14
                    """)
                g(f"""
                s_lshr_b32 s{sT0}, s{sHG}, 1
                s_and_b32 s{sT0}, s{sT0}, 1
                s_lshl_b32 s{sT0}, s{sT0}, 7
                v_mov_b32 v14, s{sT0}
                v_cmp_gt_u32 vcc, 32, v{vL}
                v_lshlrev_b32 v15, 3, v{vL}
                s_nop 0
                v_cndmask_b32 v14, 0, v14, vcc
                v_xor_b32 v14, v14, v15
                s_lshl_b32 s{sT0}, s{sTB}, 3
                s_add_u32 s{sT0}, s{sT0}, s{sHG}
                s_lshl_b32 s{sT0}, s{sT0}, 9
                s_add_u32 s{sT0}, s{sT0}, {WS_KV}
                s_waitcnt lgkmcnt(0)
                """)
                for k in range(4): g(f"v_add_f32 v{S0+k}, v{S0+k}, v{S0+4+k}\nv_add_f32 v{S0+8+k}, v{S0+8+k}, v{S0+12+k}")
                for k in range(4): g(f"v_add_f32 v{S0+k}, v{S0+k}, v{S0+8+k}")
                if not opt.LNA:
                    for k in range(4): g(f"v_mul_f32 v{S0+k}, v{S0+k}, v{32+k}")
                g(f"""
                v_cvt_pk_bf16_f32 v{S0}, v{S0}, v{S0+1}
                v_cvt_pk_bf16_f32 v{S0+1}, v{S0+2}, v{S0+3}
                buffer_store_dwordx2 {vr(S0,2)}, v14, {srd(SWS)}, s{sT0} offen sc1
                """)
            cur = FR[j & 1]
            rd = [g1_reads(var, j+1, ks) for ks in range(2)] if j + 1 < 16 else [[], []]
            for ks in range(2):
                b = cur + 16*ks
                for jj in range(NT):
                    g(mfma(ACC+16*jj, b+4+4*jj, b, ACC+16*jj if (j or ks) else "0"))
                    if jj == 0:
                        if ks == 0 and j + NSLOT < 16: g1_dma(var, j + NSLOT)
                        for s in rd[ks]: g(s)
        vRC = 14
        isq = g.label("G1Q")
        g("s_nop 7\ns_nop 3")
        def scale_cvt(jj, rreg):
            a = ACC + 16*jj
            if rreg is not None:
                for k in range(16): g(f"v_mul_f32 v{a+k}, v{a+k}, v{rreg}")
            for k in range(8): g(f"v_cvt_pk_bf16_f32 v{a+k}, v{a+2*k}, v{a+2*k+1}")
        if var == 1:
            g(f"s_cmp_eq_u32 s{sG}, 1\ns_cbranch_scc1 {isq}")
        g(f"""
        s_lshl_b32 s{sT0}, s{sTB}, 1
        s_add_u32 s{sT0}, s{sT0}, s{sTH}
        s_mul_i32 s{sT0}, s{sT0}, 112
        s_mul_i32 s{sT1}, s{sHG}, 14
        s_add_u32 s{sT0}, s{sT0}, s{sT1}
        s_add_u32 s{sT0}, s{sT0}, {[0,6,10,10][var]}
        s_lshl_b32 s{sT0}, s{sT0}, 10
        s_add_u32 s{sT0}, s{sT0}, {WS_H}
        """)
        for jj in range(NT):
            scale_cvt(jj, None if opt.LNA else vRT)
            a = ACC + 16*jj
            for k in range(8): g(f"v_pk_max_i16 v{a+k}, v{a+k}, 0")
            if jj == 2: g(f"s_add_u32 s{sT0}, s{sT0}, 4096")
            for u in range(2):
                g(f"buffer_store_dwordx4 {vr(a+4*u,4)}, v{vL16}, {srd(SWS)}, s{sT0} offen offset:{((jj%2)*2+u)*1024} sc1")
        g(f"s_branch {G1END}")
        if var == 1:
            g(f"{isq}:")
            C = 0.25 * 1.4426950408889634
            import struct
            cb = struct.unpack("<I", struct.pack("<f", C))[0]
            if opt.LNA: g(f"v_mov_b32 v{vRC}, {cb:#x}")
            else: g(f"v_mul_f32 v{vRC}, {cb:#x}, v{vRT}")
            g(f"""
            s_lshl_b32 s{sT0}, s{sTH}, 10
            s_add_u32 s{sT0}, s{sT0}, {QX}
            v_add_u32 v15, s{sT0}, v{vL16}
            """)
            for jj in range(2):
                scale_cvt(jj, vRC)
                for u in range(2):
                    g(f"ds_write_b128 v15, {vr(ACC+16*jj+4*u,4)} offset:{(2*jj+u)*2048}")
            g(f"s_branch {G1END}")
        if var < 3: g(f"{nxt}:")
    g(f"{G1END}:")
    g.ts(4)
    def spin_check(loads, regs, lab):
        done = g.label("PD")
        g(f"s_mov_b32 s{sCNT}, 0\n{lab}:")
        for s in loads: g(s)
        g(f"s_add_u32 s{sCNT}, s{sCNT}, 1\ns_waitcnt vmcnt(0)")
        for r in regs: g(f"v_xor_b32 v{r}, s{sTAG}, v{r}")
        for r in regs[1:]: g(f"v_or_b32 v{regs[0]}, v{regs[0]}, v{r}")
        g(f"""
        v_cmp_ne_u32 vcc, 0, v{regs[0]}
        s_nop 4
        s_cbranch_vccz {done}
        s_cmp_gt_u32 s{sCNT}, {opt.SPIN}
        s_cbranch_scc1 {done}
        s_sleep 4
        s_branch {lab}
        {done}:
        """)
    nopoll = g.label("NP")
    g(f"s_cmp_lg_u32 s{sWV}, 2\ns_cbranch_scc1 {nopoll}\ns_mov_b32 s{sT0}, {WS_FKV}")
    spin_check([f"buffer_load_dword v{16+k}, v{vL16}, {srd(SWS)}, s{sT0} offen offset:{k*1024} sc1" for k in range(4)], [16,17,18,19], g.label("PL"))
    g(f"{nopoll}:\ns_waitcnt lgkmcnt(0)\ns_barrier")
    g.ts(5)
    vQ, vC, vS, vO, vK, vV0, vV1, vIDX = 16, 32, [48, 64], 80, 20, 24, [96, 100], 13
    vKA2, vVA, vW2, vG0, vG1, vG2 = 14, 15, 4, 5, 6, 7
    HB = 144
    g(f"""
    s_lshr_b32 s{sKQ}, s{sWV}, 1
    s_lshl_b32 s{sT0}, s{sWV}, 10
    s_add_u32 s{sT0}, s{sT0}, {QX}
    v_add_u32 v28, s{sT0}, v{vL16}
    ds_read_b128 {vr(vQ,4)}, v28
    v_bfe_u32 v28, v{vL}, 3, 2
    v_lshlrev_b32 v{vKA2}, 9, v28
    v_lshrrev_b32 v28, 1, v28
    v_lshrrev_b32 v29, 5, v{vL}
    v_xor_b32 v28, v28, v29
    v_lshl_add_u32 v{vKA2}, v28, 7, v{vKA2}
    v_and_b32 v28, 7, v{vL}
    v_lshl_add_u32 v{vKA2}, v28, 4, v{vKA2}
    v_lshlrev_b32 v{vVA}, 9, v29
    v_and_b32 v28, 15, v{vL}
    v_lshl_add_u32 v{vVA}, v28, 4, v{vVA}
    v_add_u32 v{vVA}, {KVR + 256}, v{vVA}
    v_mov_b32 v{vIDX}, 0xdddddddd
    v_lshrrev_b32 v28, 2, v{vL}
    v_lshlrev_b32 v28, 10, v28
    v_and_b32 v30, 3, v{vL}
    v_lshl_add_u32 v28, v30, 4, v28
    s_lshl_b32 s{sT0}, s{sHG}, 7
    s_lshl_b32 s{sT1}, s{sTH}, 6
    s_add_u32 s{sT0}, s{sT0}, s{sT1}
    v_add_u32 v{vW2}, s{sT0}, v28
    v_lshl_add_u32 v{vG0}, v29, 8, v{vTR}
    s_lshl_b32 s{sT0}, s{sKQ}, 11
    v_add_u32 v{vG0}, s{sT0}, v{vG0}
    v_add_u32 v{vG1}, 0x10000, v{vG0}
    v_add_u32 v{vG2}, 130048, v{vG0}
    s_lshl_b32 s{sW2B}, s{sTH}, 10
    s_add_u32 s{sW2B}, s{sW2B}, s{sT0}
    s_lshl_b32 s{sT0}, s{sTB}, 1
    s_add_u32 s{sT0}, s{sT0}, s{sTH}
    s_mul_i32 s{sHB}, s{sT0}, 112
    s_mul_i32 s{sT1}, s{sKQ}, 28
    s_add_u32 s{sHB}, s{sHB}, s{sT1}
    s_lshl_b32 s{sHB}, s{sHB}, 10
    s_add_u32 s{sHB}, s{sHB}, {WS_H}
    s_lshl_b32 s{sOB}, s{sT0}, 15
    s_add_u32 s{sOB}, s{sOB}, {WS_O}
    """)
    vKG = 12
    g(f"v_mov_b32 v{vKG}, v{vKA2}\nv_add_u32 v{vKA2}, {KVR}, v{vKA2}")
    for r in list(range(vV0, vV0+4)) + list(range(vV1[0], vV1[0]+8)): g(f"v_mov_b32 v{r}, s{sONE2}")
    sKVS, sKVL, sW2S = sT2, sT3, sK
    def kv_dma(c):
        g(f"s_add_u32 s{sT0}, s{sKVS}, {c*8192}\ns_add_u32 m0, s{sKVL}, {(c%4)*8192}\ns_nop 0")
        g.vmop(f"buffer_load_dwordx4 v{vL16}, {srd(SWS)}, s{sT0} offen sc1 lds", ("kv", c))
    def w2_dma(step, slot):
        if step < 28:
            g(f"s_add_u32 s{sT0}, s{sW2S}, {step*16384}")
            S = SW2
        else:
            g(f"s_lshl_b32 s{sT0}, s{sKQ}, 17\ns_add_u32 s{sT0}, s{sT0}, {(step-28)*16384}")
            S = SWO
        g(f"s_add_u32 m0, s{sW2B}, {T2[slot]}\ns_nop 0")
        g.vmop(f"buffer_load_dwordx4 v{vW2}, {srd(S)}, s{sT0} offen lds", ("w2", step))
    ATT = g.label("ATT")
    g(f"{ATT}:")
    g.vmreset()
    g(f"""
    s_lshl_b32 s{sKVL}, s{sWV}, 10
    s_add_u32 s{sKVS}, s{sKVL}, {WS_KV}
    s_add_u32 s{sKVL}, s{sKVL}, {KVR}
    s_mul_i32 s{sW2S}, s{sKQ}, {28*16384}
    """)
    for c in range(3): kv_dma(c)
    for r in range(16): g(f"v_mov_b32 v{vO+r}, 0")
    g.vmwait(("kv", 1), "lgkmcnt(0)")
    g("s_barrier")
    g.ts(6)
    def kread(t, dst): return f"ds_read_b128 {vr(dst,4)}, v{vKA2} offset:{((t//4)%4)*8192 + (t%4)*2048}"
    def vread(t, u, dst): return f"ds_read_b128 {vr(dst,4)}, v{vVA} offset:{((t//4)%4)*8192 + (t%4)*2048 + u*1024}"
    havem = g.label("HM")
    g(f"s_cmp_lg_u32 s{sFB}, 0\ns_cbranch_scc1 {havem}")
    g(kread(0, vK)); g(kread(1, 28))
    g("s_waitcnt lgkmcnt(0)")
    g(mfma(vS[0], vK, vQ, "0")); g(mfma(vS[1], 28, vQ, "0"))
    g("s_nop 7\ns_nop 3")
    vMX = 28
    def maxtree(first):
        regs = list(range(vS[0], vS[0]+32))
        if first: g(f"v_max3_f32 v{vMX}, v{regs[0]}, v{regs[1]}, v{regs[2]}\nv_max_f32 v{vMX}, v{vMX}, v{regs[3]}"); regs = regs[4:]
        for k in range(0, len(regs), 2): g(f"v_max3_f32 v{vMX}, v{vMX}, v{regs[k]}, v{regs[k+1]}")
    maxtree(True)
    import struct
    fb = lambda x: struct.unpack("<I", struct.pack("<f", x))[0]
    def finish_m(bias):
        g(f"""
        v_mov_b32 v29, v{vMX}
        s_nop 1
        v_permlane32_swap_b32 v29, v{vMX}
        s_nop 1
        v_max_f32 v{vMX}, v{vMX}, v29
        v_add_f32 v{vMX}, {fb(bias):#x}, v{vMX}
        v_xor_b32 v{vC}, 0x80000000, v{vMX}
        """)
        for r in range(1, 16): g(f"v_mov_b32 v{vC+r}, v{vC}")
    finish_m(opt.BIAS)
    g(f"{havem}:")
    g(kread(0, vK))
    g(f"s_mov_b64 exec, s[{sVM}:{sVM+1}]"); g(vread(0, 0, vV0)); g(vread(0, 1, vV1[0])); g("s_mov_b64 exec, -1")
    g("s_waitcnt lgkmcnt(0)")
    g(mfma(vS[0], vK, vQ, vC))
    g(kread(1, vK))
    g("s_nop 7\ns_nop 3")
    hsteps = {7+i: list(range(4*i, 4*i+4)) for i in range(7)}
    for t in range(64):
        c = t // 4
        S = vS[t & 1]; Sn = vS[(t+1) & 1]
        ex = lambda k: f"v_exp_f32 v{S+k}, v{S+k}"
        if t % 4 == 0 and t > 0:
            if c == 2:
                g("s_waitcnt vmcnt(0)")
            elif c + 1 < 16:
                g.vmwait(("kv", c+1))
            g("s_barrier")
            if c == 2:
                sk = g.label("HF")
                g(f"""
                s_cmp_lg_u32 s{sWV}, 0
                s_cbranch_scc1 {sk}
                s_lshl_b32 s{sT0}, s{sTB}, 3
                s_add_u32 s{sT0}, s{sT0}, s{sHG}
                s_lshl_b32 s{sT0}, s{sT0}, 4
                s_add_u32 s{sT0}, s{sT0}, {WS_FH}
                v_mov_b32 v28, 0
                v_mov_b32 v29, s{sTAG}
                s_mov_b64 exec, 1
                buffer_store_dword v29, v28, {srd(SWS)}, s{sT0} offen sc1
                s_mov_b64 exec, -1
                {sk}:
                """)
        g(ex(0)); g(ex(1))
        if t > 0: g(smf(vO, vV1[(t-1) & 1], vS[(t-1) & 1] + 8, vIDX))
        if t % 4 == 0:
            if c + 3 < 16: kv_dma(c + 3)
            if 1 <= c <= NRES: w2_dma(c - 1, c - 1)
            if c == 7:
                g(f"""
                s_lshl_b32 s{sT0}, s{sTB}, 3
                s_lshl_b32 s{sT1}, s{sKQ}, 1
                s_add_u32 s{sT0}, s{sT0}, s{sT1}
                s_lshl_b32 s{sT0}, s{sT0}, 4
                s_add_u32 s{sT0}, s{sT0}, {WS_FH}
                v_and_b32 v28, 16, v{vL16}
                """)
                spin_check([f"buffer_load_dword v29, v28, {srd(SWS)}, s{sT0} offen sc1"], [29], g.label("PL"))
            if c in hsteps:
                g(f"s_add_u32 s{sT0}, s{sHB}, {hsteps[c][0]*1024}")
                for k, i in enumerate(hsteps[c]):
                    g.vmop(f"buffer_load_dwordx4 {vr(HB+4*i,4)}, v{vL16}, {srd(SWS)}, s{sT0} offen offset:{k*1024} sc1", ("h", i))
        for k in range(2, 6): g(ex(k))
        g("s_waitcnt lgkmcnt(0)")
        if t + 1 < 64: g(mfma(Sn, vK, vQ, vC))
        for k in range(6, 10): g(ex(k))
        g(smf(vO, vV0, S, vIDX))
        if t + 2 < 64: g(kread(t+2, vK))
        if t + 1 < 64:
            g(f"s_mov_b64 exec, s[{sVM}:{sVM+1}]"); g(vread(t+1, 0, vV0)); g(vread(t+1, 1, vV1[(t+1) & 1])); g("s_mov_b64 exec, -1")
        for k in range(10, 16): g(ex(k))
    g("s_nop 1")
    g(smf(vO, vV1[1], vS[1] + 8, vIDX))
    g.ts(7)
    g("s_nop 7\ns_nop 3")
    g(f"v_add_f32 v28, |v{vO}|, |v{vO+1}|")
    for k in range(2, 8): g(f"v_add_f32 v28, v28, |v{vO+k}|")
    g(f"""
    v_rcp_f32 v29, v{vO+8}
    v_mov_b32 v30, {fb(2.0**115):#x}
    v_cmp_lt_f32 vcc, v{vO+8}, v30
    v_mov_b32 v31, {fb(2.0**126):#x}
    v_cmp_lt_f32 s[{sT0}:{sT1}], v28, v31
    s_nop 3
    s_and_b64 vcc, vcc, s[{sT0}:{sT1}]
    s_cmp_eq_u64 vcc, -1
    s_cselect_b32 s{sT0}, 0, 1
    s_cmp_lg_u32 s{sFB}, 0
    s_cselect_b32 s{sT0}, 0, s{sT0}
    s_lshl_b32 s{sT1}, s{sWV}, 2
    s_add_u32 s{sT1}, s{sT1}, {VOTE}
    v_mov_b32 v30, s{sT1}
    v_mov_b32 v31, s{sT0}
    ds_write_b32 v30, v31
    """)
    for k in range(8): g(f"v_mul_f32 v{vO+k}, v{vO+k}, v29")
    for k in range(4): g(f"v_cvt_pk_bf16_f32 v{vO+k}, v{vO+2*k}, v{vO+2*k+1}")
    g(f"""
    s_lshl_b32 s{sT0}, s{sHG}, 2
    s_add_u32 s{sT0}, s{sT0}, s{sKQ}
    s_lshl_b32 s{sT0}, s{sT0}, 10
    s_add_u32 s{sT0}, s{sT0}, s{sOB}
    """)
    g.vmop(f"buffer_store_dwordx4 {vr(vO,4)}, v{vL16}, {srd(SWS)}, s{sT0} offen sc1", "ost")
    g.vmwait(("w2", 7), "lgkmcnt(0)")
    g(f"s_barrier\nv_mov_b32 v30, {VOTE}\nds_read_b128 {vr(16,4)}, v30\nds_read_b128 {vr(20,4)}, v30 offset:16")
    for k in range(4): w2_dma(NRES + k, NRES + k)
    XRES = 24
    g(f"s_lshl_b32 s{sT0}, s{sTB}, 16\ns_lshl_b32 s{sT1}, s{sHG}, 7\ns_add_u32 s{sP32}, s{sT0}, s{sT1}")
    g.vmop(f"buffer_load_dwordx4 {vr(XRES,4)}, v{vX}, {srd(SX)}, s{sP32} offen", "xres")
    g("s_waitcnt lgkmcnt(0)")
    g("v_or3_b32 v16, v16, v17, v18\nv_or3_b32 v20, v20, v21, v22\nv_or3_b32 v16, v16, v19, v23\nv_or_b32 v16, v16, v20\ns_nop 0")
    FBK = g.label("FBK")
    g(f"v_readfirstlane_b32 s{sT0}, v16\ns_nop 3\ns_cmp_lg_u32 s{sT0}, 0\ns_cbranch_scc1 {FBK}")
    g.ts(8)
    AC2 = 32
    AF = [64, 72, 80]
    OB = [HB + 4*i for i in range(8)]
    slot_of = {i: i for i in range(NRES + 4)}
    stages = [list(range(6*s, 6*s+6)) for s in range(6)]
    def a_reads(step):
        off = T2[slot_of[step]]
        v, o = (vG0, off) if off < 0x10000 else ((vG1, off - 0x10000) if off < 130048 else (vG2, off - 130048))
        return [f"ds_read_b64_tr_b16 {vr(AF[step%3]+4*n+2*q,2)}, v{v} offset:{o + n*1024 + q*512}" for n in range(2) for q in range(2)]
    for s in a_reads(0) + a_reads(1): g(s)
    nxt_load = NRES + 4
    for si, st in enumerate(stages):
        if si > 0:
            need = min(35, st[-1] + 2)
            if si == 1:
                g("s_waitcnt vmcnt(0)")
            else:
                g.vmwait(("w2", need))
            g("s_barrier")
            if si == 1:
                sk = g.label("OF")
                g(f"""
                s_cmp_lg_u32 s{sWV}, 0
                s_cbranch_scc1 {sk}
                s_lshl_b32 s{sT0}, s{sTB}, 3
                s_add_u32 s{sT0}, s{sT0}, s{sHG}
                s_lshl_b32 s{sT0}, s{sT0}, 4
                s_add_u32 s{sT0}, s{sT0}, {WS_FO}
                v_mov_b32 v28, 0
                v_mov_b32 v29, s{sTAG}
                s_mov_b64 exec, 1
                buffer_store_dword v29, v28, {srd(SWS)}, s{sT0} offen sc1
                s_mov_b64 exec, -1
                {sk}:
                """)
            for fr in stages[si-1]:
                if nxt_load < 36:
                    slot_of[nxt_load] = slot_of[fr]
                    w2_dma(nxt_load, slot_of[fr]); nxt_load += 1
            if si == 4:
                g.ts(9)
                g(f"""
                s_lshl_b32 s{sT0}, s{sTB}, 3
                s_lshl_b32 s{sT1}, s{sKQ}, 1
                s_add_u32 s{sT0}, s{sT0}, s{sT1}
                s_lshl_b32 s{sT0}, s{sT0}, 4
                s_add_u32 s{sT0}, s{sT0}, {WS_FO}
                v_and_b32 v28, 16, v{vL16}
                """)
                spin_check([f"buffer_load_dword v29, v28, {srd(SWS)}, s{sT0} offen sc1"], [29], g.label("PL"))
                g(f"s_lshl_b32 s{sT0}, s{sKQ}, 13\ns_add_u32 s{sT0}, s{sT0}, s{sOB}\ns_add_u32 s{sT1}, s{sT0}, 4096")
                for i in range(8):
                    g.vmop(f"buffer_load_dwordx4 {vr(OB[i],4)}, v{vL16}, {srd(SWS)}, s{sT0 + i//4} offen offset:{(i%4)*1024} sc1", ("o", i))
                g.ts(10)
        for step in st:
            if step + 2 < 36:
                for s in a_reads(step + 2): g(s)
            nout = 4*min(2, 35 - step)
            if step == 0: g.vmwait(("h", 27))
            if step >= 28: g.vmwait(("o", step - 28))
            g(f"s_waitcnt lgkmcnt({nout})")
            b = HB + 4*step if step < 28 else OB[step - 28]
            for n in range(2):
                g(mfma(AC2 + 16*n, AF[step % 3] + 4*n, b, AC2 + 16*n if step else "0"))
    g.ts(11)
    g(f"""
    v_and_b32 v28, 31, v{vL}
    s_lshl_b32 s{sT0}, s{sKQ}, 6
    s_lshl_b32 s{sT1}, s{sTH}, 5
    s_add_u32 s{sT0}, s{sT0}, s{sT1}
    v_add_u32 v28, s{sT0}, v28
    v_mul_u32_u24 v28, {RPITCH}, v28
    v_lshrrev_b32 v29, 5, v{vL}
    v_lshl_add_u32 v28, v29, 4, v28
    v_lshrrev_b32 v29, 3, v0
    v_mul_u32_u24 v29, {RPITCH}, v29
    v_and_b32 v30, 7, v0
    v_lshl_add_u32 v29, v30, 5, v29
    s_nop 3
    s_barrier
    """)
    for n in range(2):
        for q in range(4):
            g(f"ds_write_b128 v28, {vr(AC2+16*n+4*q,4)} offset:{RED + n*128 + q*32}")
    g("s_waitcnt lgkmcnt(0)\ns_barrier")
    for k in range(4):
        for u in range(2):
            g(f"ds_read_b128 {vr(64+8*k+4*u,4)}, v29 offset:{RED + k*64*RPITCH + u*16}")
    g.vmwait("xres")
    for k in range(4):
        g(f"v_lshlrev_b32 v{16+2*k}, 16, v{XRES+k}\nv_and_b32 v{17+2*k}, 0xffff0000, v{XRES+k}")
    g("s_waitcnt lgkmcnt(0)")
    for e in range(8): g(f"v_add_f32 v{64+e}, v{64+e}, v{72+e}\nv_add_f32 v{80+e}, v{80+e}, v{88+e}")
    for e in range(8): g(f"v_add_f32 v{64+e}, v{64+e}, v{80+e}")
    for e in range(8): g(f"v_add_f32 v{64+e}, v{64+e}, v{16+e}")
    for k in range(4): g(f"v_cvt_pk_bf16_f32 v{64+k}, v{64+2*k}, v{64+2*k+1}")
    g(f"buffer_store_dwordx4 {vr(64,4)}, v{vX}, {srd(SOUT)}, s{sP32} offen")
    sk = g.label("EP")
    g(f"""
    s_or_b32 s{sT0}, s{sTB}, s{sHG}
    s_or_b32 s{sT0}, s{sT0}, s{sWV}
    s_cmp_lg_u32 s{sT0}, 0
    s_cbranch_scc1 {sk}
    v_mov_b32 v28, 0
    v_mov_b32 v29, s{sTAG}
    s_mov_b64 exec, 1
    buffer_store_dword v29, v28, {srd(SWS)}, 0 offen offset:{WS_EPOCH}
    s_mov_b64 exec, -1
    {sk}:
    """)
    if opt.TS:
        g.ts(12)
        g(f"""
        s_lshl_b32 s{sT0}, s2, 3
        s_add_u32 s{sT0}, s{sT0}, s{sWV}
        s_lshl_b32 s{sT0}, s{sT0}, 6
        s_add_u32 s{sT0}, s{sT0}, {WS_TSB}
        s_waitcnt vmcnt(0)
        """)
        g.ts(13)
        for k in range(16): g(f"v_mov_b32 v{32+k}, s{sTS+k}")
        g("v_mov_b32 v28, 0\ns_mov_b64 exec, 1")
        for k in range(4): g(f"buffer_store_dwordx4 {vr(32+4*k,4)}, v28, {srd(SWS)}, s{sT0} offen offset:{16*k}")
    g("s_waitcnt vmcnt(0)\ns_endpgm")
    FL = g.label("FL")
    g(f"""
    {FBK}:
    s_mov_b32 s{sFB}, 1
    s_mov_b32 s{sT0}, {WS_KV}
    v_mov_b32 v{vMX}, 0xff800000
    """)
    for r in list(range(vV0, vV0+4)): g(f"v_mov_b32 v{r}, s{sONE2}")
    g(f"""
    s_lshl_b32 s{sT1}, s{sWV}, 10
    s_add_u32 s{sT1}, s{sT1}, {QX}
    {FL}:
    buffer_load_dwordx4 {vr(vK,4)}, v{vKG}, {srd(SWS)}, s{sT0} offen sc1
    buffer_load_dwordx4 {vr(104,4)}, v{vKG}, {srd(SWS)}, s{sT0} offen offset:2048 sc1
    s_waitcnt vmcnt(0)
    """)
    g(mfma(vS[0], vK, 108, "0")); g(mfma(vS[1], 104, 108, "0"))
    g("s_nop 7\ns_nop 3")
    maxtree(False)
    g(f"s_add_u32 s{sT0}, s{sT0}, 4096\ns_cmp_lt_u32 s{sT0}, {WS_KV + 131072}\ns_cbranch_scc1 {FL}")
    finish_m(0.0)
    for k in range(4): g(f"v_mov_b32 v{vQ+k}, v{108+k}")
    g(f"s_waitcnt vmcnt(0) lgkmcnt(0)\ns_barrier\ns_branch {ATT}")
    g("L_END:\ns_endpgm")
    body = g.text()
    body = body.replace(f"{ATT}:\n", f"    s_waitcnt lgkmcnt(0)\n" + "".join(f"    v_mov_b32 v{108+k}, v{vQ+k}\n" for k in range(4)) + f"{ATT}:\n", 1)
    hdr = open("parallel_sum__grouped_kv_mqa__dense_activation_relu__prompt.s.ref").read().split("; Override launch")[0]
    out = hdr + f"; @launch grid=(256,1,1) block=(512,1,1) lds={LDS_SIZE}\n"
    out += f""".amdgcn_target "amdgcn-amd-amdhsa--gfx950"
.text
.globl {NAME}
.p2align 8
.type {NAME},@function
{NAME}:
""" + body + f""".section .rodata,"a"
.p2align 6
.amdhsa_kernel {NAME}
  .amdhsa_next_free_vgpr 256
  .amdhsa_next_free_sgpr 102
  .amdhsa_accum_offset 256
  .amdhsa_group_segment_fixed_size 0
  .amdhsa_kernarg_size 88
  .amdhsa_user_sgpr_count 2
  .amdhsa_user_sgpr_kernarg_segment_ptr 1
  .amdhsa_system_sgpr_workgroup_id_x 1
.end_amdhsa_kernel
"""
    return out

if __name__ == "__main__":
    outp = sys.argv[1]
    for a in sys.argv[2:]:
        k, v = a.split("=")
        setattr(opt, k, type(getattr(opt, k))(eval(v)))
    open(outp, "w").write(build())
```

```python
import sys, struct
NAME = "parallel_sum__grouped_kv_mqa__dense_activation_relu__prompt_kernel"
fb = lambda x: struct.unpack("<I", struct.pack("<f", x))[0]

class Opt:
    TS = False
    BIAS = 88.0
    SPIN = 200000
    TOUCH = 1
    TOUCH2 = 1
    TOUCH3 = 1
    PRIO = 1
    KVFLAG_AT = 5
    KVPOLL_AT = 9
    KVCHECK_AT = 12
    ROT = 1
    DMA_AFTER = (0, 1, 2, 4, 6)
    HFLAG_C = 2
    OPOLL_ISSUE = 15
    OPOLL_CHECK = 21
    HPOLL_T = 21
    X_NOSIDE = False
    X_NOBAR = False
    TSA = False
    X_NOKV = False
    X_SKIP = ''
    SIDEPOS = 0
    XBAR = 1
    TSH = False
    SC1T = ''
opt = Opt()

WS_EPOCH = 0
WS_FKV = 0x1000
WS_FH  = 0x2000
WS_FO  = 0x3000
WS_TSB = 0xC00000
WS_KV  = 0x10000
WS_O   = 0x40000
WS_H   = 0x300000
WS_SIZE = 0x1000000

XN = 0; XPITCH = 1040; XN_END = 64*XPITCH
SLOT = 18432; NSLOT = 5
RING_END = XN_END + NSLOT*SLOT
PART = RING_END
RARR = PART + 4096
R4 = RARR + 256
VOTE = 162816
LDS_SIZE = 163840
KVR = XN_END + SLOT
QX = XN_END + 3*SLOT
T2 = [i*8192 for i in range(10)] + [QX + i*8192 for i in range(5)] + [KVR + i*8192 for i in range(4)]
NRES = 15
RED = 0; RPITCH = 272

sTB, sHG, sWV, sTAG, sTH, sG = 26, 27, 28, 29, 30, 31
SX, SG_, SKV, SWS, SW2, SWO, SOUT = 32, 36, 40, 44, 48, 52, 56
sVAR, sLB, sK, sP32, sKQ, sFB = 60, 61, 62, 63, 64, 65
sONE2, sLO, sHI, sJ = 66, 67, 68, 69
sVM = 70
sT0, sT1, sT2, sT3, sT4, sT5 = 72, 73, 74, 75, 76, 77
sHB, sOB, sCNT, sW2B, sKVS, sKVL = 78, 79, 80, 81, 82, 83
sRB = 3
sCH = 80
sW2S, sXO = 14, 15
sTS = 84
def srd(b): return f"s[{b}:{b+3}]"
def vr(b, n): return f"v[{b}:{b+n-1}]" if n > 1 else f"v{b}"

class Gen:
    def __init__(self): self.l = []; self.nl = 0; self.vm = []; self.done = -1
    def __call__(self, s):
        for x in s.strip("\n").split("\n"):
            x = x.strip()
            if x: self.l.append(("" if x.endswith(":") else "    ") + x)
    def label(self, p="L"):
        self.nl += 1; return f"{p}_{self.nl}"
    def vmop(self, s, tag=None):
        self(s); self.vm.append(tag)
    def vmwait(self, tag, extra=""):
        idx = max(i for i, t in enumerate(self.vm) if t == tag)
        if idx <= self.done:
            if extra: self(f"s_waitcnt {extra}")
            return
        n = len(self.vm) - 1 - idx
        assert n <= 63, n
        self.done = idx
        self(f"s_waitcnt vmcnt({n}) {extra}")
    def vmall(self, extra=""):
        self.done = len(self.vm) - 1
        self(f"s_waitcnt vmcnt(0) {extra}")
    def vmreset(self): self.vm = []; self.done = -1
    def ts(self, i, att=False):
        if opt.TS and (att == opt.TSA or i in (0, 15)):
            self(f"s_memtime s[{sT4}:{sT5}]\ns_waitcnt lgkmcnt(0)\ns_mov_b32 s{sTS+i}, s{sT4}")
    def text(self): return "\n".join(self.l) + "\n"

def mfma(d, a, b, c):
    cs = vr(c, 16) if isinstance(c, int) else c
    return f"v_mfma_f32_32x32x16_bf16 {vr(d,16)}, {vr(a,4)}, {vr(b,4)}, {cs}"
def mfma16(d, a, b, c):
    cs = vr(c, 4) if isinstance(c, int) else c
    return f"v_mfma_f32_16x16x32_bf16 {vr(d,4)}, {vr(a,4)}, {vr(b,4)}, {cs}"
def smf(d, a, b, idx): return f"v_smfmac_f32_32x32x32_bf16 {vr(d,16)}, {vr(a,4)}, {vr(b,8)}, v{idx}"

def build():
    g = Gen()
    vL, vX, vL16, vROW = 1, 2, 3, 29
    vJ = 255
    vW, vA, vA2, vB, vTR, vXW, vKB, vKA = 4, 5, 6, 7, 8, 9, 10, 11
    XR = 32
    g(f"""
    s_cmp_ge_u32 s2, 256
    s_cbranch_scc1 L_END
    s_load_dwordx16 s[4:19], s[0:1], 0
    s_load_dwordx4 s[20:23], s[0:1], 64
    s_load_dwordx2 s[24:25], s[0:1], 80
    """)
    if opt.TS:
        g(f"s_memtime s[{sTS}:{sTS+1}]\ns_memrealtime s[{sTS+16}:{sTS+17}]")
    g(f"""
    v_lshrrev_b32 v16, 6, v0
    s_lshr_b32 s{sJ}, s2, 3
    s_mov_b32 s{SG_+3}, 0x20000
    v_readfirstlane_b32 s{sWV}, v16
    """)
    if opt.TOUCH:
        g(f"""
        s_getpc_b64 s[{SG_}:{SG_+1}]
        L_PC:
        s_mov_b32 s{SG_+2}, L_END-L_PC
        v_and_b32 v17, 1, v0
        v_lshl_add_u32 v16, v16, 1, v17
        v_lshlrev_b32 v16, 7, v16
        s_lshl_b32 s{sT1}, s{sJ}, 11
        buffer_load_dword v{vJ}, v16, {srd(SG_)}, s{sT1} offen
        """)
    g(f"""
    v_and_b32 v{vL}, 63, v0
    s_and_b32 s{sT0}, s2, 7
    s_lshr_b32 s{sTB}, s{sT0}, 1
    s_and_b32 s{sT2}, s{sJ}, 7
    s_lshl3_add_u32 s{sTB}, s{sTB}, s{sT2}
    s_and_b32 s{sCH}, s{sT0}, 1
    s_lshr_b32 s{sT2}, s{sJ}, 3
    s_lshl2_add_u32 s{sHG}, s{sCH}, s{sT2}
    s_lshl_b32 s{sT2}, s{sT2}, {1 if opt.ROT else 5}
    s_add_u32 s{sRB}, s{sWV}, s{sT2}
    s_and_b32 s{sRB}, s{sRB}, 7
    s_lshl_b32 s{sT2}, s{sRB}, 3
    v_lshrrev_b32 v16, 3, v{vL}
    v_add_u32 v{vROW}, s{sT2}, v16
    v_lshlrev_b32 v16, 10, v{vROW}
    v_and_b32 v17, 7, v0
    v_lshl_add_u32 v{vX}, v17, 4, v16
    v_lshlrev_b32 v{vL16}, 4, v{vL}
    v_mul_u32_u24 v16, {XPITCH}, v{vROW}
    v_lshl_add_u32 v{vXW}, v17, 4, v16
    s_lshl_b32 s{sT0}, s{sHG}, 3
    v_add_u32 v17, s{sT0}, v17
    v_mul_u32_u24 v17, {XPITCH}, v17
    v_lshrrev_b32 v18, 4, v{vL}
    v_lshl_add_u32 v17, v18, 4, v17
    s_and_b32 s{sT5}, s{sWV}, 3
    s_lshl_b32 s{sT1}, s{sT5}, 8
    v_add_u32 v{vKB}, s{sT1}, v17
    v_bfe_u32 v19, v{vL}, 2, 2
    v_lshl_add_u32 v16, v18, 3, v19
    v_lshlrev_b32 v16, 5, v16
    v_and_b32 v20, 3, v{vL}
    v_lshl_add_u32 v16, v20, 3, v16
    s_mul_i32 s{sT2}, s{sRB}, {8*XPITCH}
    v_add_u32 v{vKA}, s{sT2}, v16
    s_mov_b32 m0, s{sT2}
    s_and_b32 s{sTH}, s{sWV}, 1
    s_lshr_b32 s{sG}, s{sWV}, 1
    v_lshlrev_b32 v{vTR}, 6, v19
    v_bfe_u32 v16, v{vL}, 4, 1
    v_lshl_add_u32 v{vTR}, v16, 5, v{vTR}
    v_lshl_add_u32 v{vTR}, v20, 3, v{vTR}
    v_lshrrev_b32 v21, 5, v{vL}
    v_lshl_add_u32 v{vA}, v21, 9, v{vTR}
    v_and_b32 v16, 31, v{vL}
    s_lshl_b32 s{sT0}, s{sTH}, 5
    v_add_u32 v16, s{sT0}, v16
    v_mul_u32_u24 v16, {XPITCH}, v16
    v_lshl_add_u32 v{vB}, v21, 4, v16
    s_cmp_eq_u32 s{sG}, 1
    s_movk_i32 s{sT1}, 3584
    s_cselect_b32 s{sT1}, 1024, s{sT1}
    s_movk_i32 s{sT2}, 448
    s_cselect_b32 s{sT2}, 128, s{sT2}
    s_lshl_b32 s{SG_+2}, s{sT1}, 9
    s_mul_i32 s{sT2}, s{sT2}, s{sHG}
    s_lshl_b32 s{sP32}, s{sT1}, 5
    s_lshl_b32 s{sK}, s{sT1}, 4
    s_mul_i32 s{sK}, s{sK}, s{sTH}
    s_cmp_eq_u32 s{sG}, 2
    s_cselect_b32 s{sT3}, 192, 0
    s_cmp_eq_u32 s{sG}, 3
    s_cselect_b32 s{sT3}, 320, s{sT3}
    s_add_u32 s{sT2}, s{sT2}, s{sT3}
    v_lshrrev_b32 v16, 2, v{vL}
    v_mul_lo_u32 v16, v16, s{sT1}
    v_lshl_add_u32 v16, v20, 4, v16
    v_add_u32 v{vW}, s{sT2}, v16
    s_lshl2_add_u32 s{sT3}, s{sG}, 2
    s_cmp_eq_u32 s{sG}, 0
    s_cselect_b32 s{sT3}, 0, s{sT3}
    s_cselect_b32 s{sVAR}, 0, 1
    s_lshl_b32 s{sT4}, s{sT3}, 10
    s_add_u32 s{sT4}, s{sT4}, {XN_END}
    s_lshl_b32 s{sLB}, s{sTH}, 10
    s_add_u32 s{sLB}, s{sLB}, s{sT4}
    v_add_u32 v{vA}, s{sT4}, v{vA}
    v_add_u32 v{vA2}, {3*SLOT}, v{vA}
    s_cmp_eq_u32 s{sWV}, 6
    s_cselect_b32 s{sVAR}, 2, s{sVAR}
    s_cmp_eq_u32 s{sWV}, 7
    s_cselect_b32 s{sVAR}, 3, s{sVAR}
    s_mov_b32 s{SX+2}, 0x200000
    s_mov_b32 s{SX+3}, 0x20000
    s_movk_i32 s{SKV+2}, 16384
    s_mov_b32 s{SKV+3}, 0x20000
    s_lshl_b32 s{sT0}, s{sTB}, 16
    s_lshl2_add_u32 s{sT1}, s{sJ}, s{sT5}
    s_lshl_b32 s{sT1}, s{sT1}, 7
    s_lshl_b32 s{sT5}, s{sT5}, 12
    s_cmp_lt_u32 s{sWV}, 4
    s_waitcnt lgkmcnt(0)
    s_cselect_b32 s{SKV}, s8, s10
    s_cselect_b32 s{SKV+1}, s9, s11
    s_mov_b32 s{SX}, s4
    s_mov_b32 s{SX+1}, s5
    """)
    if opt.TSH: g.ts(10, opt.TSA)
    if opt.TOUCH: g(f"buffer_load_dword v{vJ}, off, {srd(SKV)}, s{sT1}")
    for i in range(8):
        g(f"buffer_load_dwordx4 {vr(XR+4*i,4)}, v{vX}, {srd(SX)}, s{sT0} offen offset:{i*128}")
    if opt.TSH: g.ts(11, opt.TSA)
    if opt.XBAR: g("s_barrier")
    g(f"s_load_dword s{sTAG}, s[24:25], {WS_EPOCH}")
    for i in range(4):
        g(f"buffer_load_dwordx4 v{vL16}, {srd(SKV)}, s{sT5} offen offset:{i*1024} lds")
    NB1, NB2 = 0, 0
    if opt.TOUCH2:
        NB1, NB2 = 1, 3
        l7, lq, ld = g.label("T2"), g.label("T2"), g.label("T2")
        g(f"""
        s_mov_b32 s{SKV}, s16
        s_mov_b32 s{SKV+1}, s17
        s_mov_b32 s{SKV+2}, {512*3584}
        s_cmp_eq_u32 s{sWV}, 1
        s_cbranch_scc1 {lq}
        s_lshl_b32 s{sT4}, s{sJ}, 2
        v_add_u32 v16, s{sT4}, v18
        v_mul_u32_u24 v16, 3584, v16
        v_and_b32 v17, 15, v{vL}
        v_min_u32 v17, 13, v17
        v_lshl_add_u32 v16, v17, 7, v16
        s_mul_i32 s{sT4}, s{sCH}, 1792
        s_cmp_eq_u32 s{sWV}, 7
        s_cbranch_scc1 {l7}
        s_cmp_eq_u32 s{sWV}, 2
        s_cselect_b32 s{sT5}, {128*3584}, 0
        s_add_u32 s{sT4}, s{sT4}, s{sT5}
        s_cmp_gt_u32 s{sWV}, 2
        s_cselect_b32 s{SKV+2}, 0, s{SKV+2}
        s_branch {ld}
        {l7}:
        s_add_u32 s{sT4}, s{sT4}, {256*3584}
        buffer_load_dword v{vJ}, v16, {srd(SKV)}, s{sT4} offen
        s_add_u32 s{sT4}, s{sT4}, {128*3584}
        buffer_load_dword v{vJ}, v16, {srd(SKV)}, s{sT4} offen
        {lq}:
        s_mov_b32 s{SKV}, s6
        s_mov_b32 s{SKV+1}, s7
        s_mov_b32 s{SKV+2}, 0x80000
        v_bfe_u32 v16, v{vL}, 2, 3
        s_lshl_b32 s{sT4}, s{sJ}, 3
        v_add_u32 v16, s{sT4}, v16
        v_lshlrev_b32 v16, 10, v16
        v_lshl_add_u32 v16, v20, 7, v16
        s_lshl_b32 s{sT4}, s{sCH}, 9
        s_cmp_eq_u32 s{sWV}, 7
        s_cselect_b32 s{sT5}, 0x40000, 0
        s_add_u32 s{sT4}, s{sT4}, s{sT5}
        {ld}:
        buffer_load_dword v{vJ}, v16, {srd(SKV)}, s{sT4} offen
        """)
    g(f"""
    s_cmp_eq_u32 s{sG}, 1
    s_cselect_b32 s{SG_}, s6, s16
    s_cselect_b32 s{SG_+1}, s7, s17
    """)
    NTV = [3, 2, 2, 2]
    NDMA = [3, 2, 4, 0]
    def g1_dma(var, chunk):
        slot = chunk % NSLOT
        if var == 3: return
        for jj in range(NTV[var]):
            g(f"s_add_u32 m0, s{sLB}, {slot*SLOT + jj*(2048-64)}")
            g("s_nop 0")
            g.vmop(f"buffer_load_dwordx4 v{vW}, {srd(SG_)}, s{sK} offen offset:{64*jj} lds", ("w", chunk))
        if var == 2:
            g(f"s_add_u32 s{sT0}, s{sK}, {16*3584}")
            for jj in range(2):
                g(f"s_add_u32 m0, s{sLB}, {slot*SLOT + jj*(2048-64) + 1024}")
                g("s_nop 0")
                g.vmop(f"buffer_load_dwordx4 v{vW}, {srd(SG_)}, s{sT0} offen offset:{64*jj} lds", ("w", chunk))
        g(f"s_add_u32 s{sK}, s{sK}, s{sP32}")
    def dma_block(chunks):
        lj = g.label("J")
        for var in range(3):
            nxt = g.label("V")
            g(f"s_cmp_lg_u32 s{sVAR}, {var}\ns_cbranch_scc1 {nxt}")
            for c in chunks: g1_dma(var, c)
            if var < 2: g(f"s_branch {lj}")
            g(f"{nxt}:")
        g(f"{lj}:")
    def wait7(base):
        if NB2 == 0: g(f"s_waitcnt vmcnt({base})"); return
        a, b = g.label("W7"), g.label("W7")
        g(f"s_cmp_eq_u32 s{sWV}, 7\ns_cbranch_scc1 {a}\ns_waitcnt vmcnt({base+NB1})\ns_branch {b}\n{a}:\ns_waitcnt vmcnt({base+NB2})\n{b}:")
    g(f"""
    s_mov_b32 s{SWS}, s24
    s_mov_b32 s{SWS+1}, s25
    s_mov_b32 s{SWS+2}, {WS_SIZE}
    s_mov_b32 s{SWS+3}, 0x20000
    s_mov_b32 s{SW2}, s18
    s_mov_b32 s{SW2+1}, s19
    s_mov_b32 s{SW2+2}, {1792*1024}
    s_mov_b32 s{SW2+3}, 0x20000
    s_mov_b32 s{SWO}, s12
    s_mov_b32 s{SWO+1}, s13
    s_mov_b32 s{SWO+2}, 0x80000
    s_mov_b32 s{SWO+3}, 0x20000
    s_mov_b32 s{SOUT}, s20
    s_mov_b32 s{SOUT+1}, s21
    s_mov_b32 s{SOUT+2}, 0x200000
    s_mov_b32 s{SOUT+3}, 0x20000
    s_mov_b32 s{sONE2}, 0x3f803f80
    s_mov_b32 s{sLO}, 0x00003f80
    s_mov_b32 s{sHI}, 0x3f800000
    s_mov_b32 s{sVM}, 0x0000ffff
    s_mov_b32 s{sVM+1}, 0x0000ffff
    s_mov_b32 s{sFB}, 0
    s_lshl_b32 s{sKVL}, s{sWV}, 10
    s_add_u32 s{sKVS}, s{sKVL}, {WS_KV}
    s_add_u32 s{sKVL}, s{sKVL}, {KVR}
    """)
    a0, a1, vM, vD, E = 12, 13, 14, 15, 16
    Q2 = 24
    WK = 96
    g(f"v_mov_b32 v{a0}, 0\nv_mov_b32 v{a1}, 0")
    for r in range(4): g(f"v_mov_b32 v{Q2+r}, 0")
    g("@@SETUP@@")
    if opt.TSH: g.ts(12, opt.TSA)
    wait7(8)
    g.ts(1)
    for j in range(16): g(f"v_dot2_f32_bf16 v{a0+(j&1)}, v{XR+j}, s{sONE2}, v{a0+(j&1)}")
    wait7(4)
    g.ts(2)
    for j in range(16, 32): g(f"v_dot2_f32_bf16 v{a0+(j&1)}, v{XR+j}, s{sONE2}, v{a0+(j&1)}")
    def dpp_reduce(v):
        for m in ("quad_perm:[1,0,3,2]", "quad_perm:[2,3,0,1]", "row_half_mirror"):
            g(f"s_nop 1\nv_add_f32_dpp v{v}, v{v}, v{v} {m} row_mask:0xf bank_mask:0xf")
    g(f"s_nop 2\nv_add_f32 v{a0}, v{a0}, v{a1}")
    dpp_reduce(a0)
    g(f"""
    v_mul_f32 v{a0}, 0x3b000000, v{a0}
    v_cvt_pk_bf16_f32 v{vM}, v{a0}, v{a0}
    v_and_b32 v{vM}, 0xffff0000, v{vM}
    v_sub_f32 v{vD}, v{a0}, v{vM}
    v_xor_b32 v{vM}, 0x80000000, v{vM}
    """)
    wait7(0)
    for s in range(4):
        for q in range(2):
            g(f"ds_read_b64_tr_b16 {vr(WK+4*s+2*q,2)}, v{vKA} offset:{s*1024+q*128}")
    for c in range(NSLOT):
        if opt.DMA_AFTER[c] < 0: dma_block([c])
    for i in range(8):
        for jj in range(4):
            j = XR + 4*i + jj
            g(f"v_dot2_f32_bf16 v{E+2*jj}, v{j}, s{sLO}, v{vM}\nv_dot2_f32_bf16 v{E+2*jj+1}, v{j}, s{sHI}, v{vM}")
        for jj in range(4):
            j = XR + 4*i + jj
            acc = Q2 + 2*(jj & 1)
            g(f"v_pk_fma_f32 {vr(acc,2)}, {vr(E+2*jj,2)}, {vr(E+2*jj,2)}, {vr(acc,2)}\nv_cvt_pk_bf16_f32 v{j}, v{E+2*jj}, v{E+2*jj+1}")
        g(f"ds_write_b128 v{vXW}, {vr(XR+4*i,4)} offset:{XN + i*128}")
        for c in range(NSLOT):
            if opt.DMA_AFTER[c] == i: dma_block([c])
    vR = 13
    g(f"""
    v_pk_add_f32 {vr(Q2,2)}, {vr(Q2,2)}, {vr(Q2+2,2)}
    v_add_f32 v{a0}, v{Q2}, v{Q2+1}
    """)
    dpp_reduce(a0)
    skip = g.label("R4")
    g(f"""
    v_mul_f32 v{a0}, 0x3b000000, v{a0}
    v_fma_f32 v{a0}, -v{vD}, v{vD}, v{a0}
    v_max_f32 v{a0}, 0, v{a0}
    v_cvt_pk_bf16_f32 v{a0}, v{a0}, v{a0}
    v_and_b32 v{a0}, 0xffff0000, v{a0}
    v_add_f32 v{a0}, 0x3727c5ac, v{a0}
    v_cvt_pk_bf16_f32 v{a0}, v{a0}, v{a0}
    v_and_b32 v{a0}, 0xffff0000, v{a0}
    v_sqrt_f32 v{a0}, v{a0}
    v_lshlrev_b32 v{E}, 2, v{vROW}
    v_cvt_pk_bf16_f32 v{a0}, v{a0}, v{a0}
    v_and_b32 v{a0}, 0xffff0000, v{a0}
    v_rcp_f32 v{vR}, v{a0}
    v_add_u32 v{E}, {RARR}, v{E}
    ds_write_b32 v{E}, v{vR}
    s_cmp_lg_u32 s{sRB}, s{sHG}
    s_cbranch_scc1 {skip}
    v_lshrrev_b32 v{E}, 3, v{vL}
    v_lshlrev_b32 v{E}, 4, v{E}
    v_and_b32 v{E+1}, 3, v{vL}
    v_lshl_add_u32 v{E}, v{E+1}, 2, v{E}
    v_add_u32 v{E}, {R4}, v{E}
    ds_write_b32 v{E}, v{vR}
    {skip}:
    """)
    g.ts(3)
    vKG, vKA2, vVA, vIDX, vW2, vG0, vG1, vG2, vT3, vQA, vXO, vRB = range(132, 144)
    vQ, vK, vK1, vQC, vV0, vV1, vO, vC, vS = 16, 20, 24, 32, 36, [40, 44], 48, 64, [80, 96]
    HB = 144
    def att_setup():
        g(f"""
        s_lshr_b32 s{sKQ}, s{sWV}, 1
        v_bfe_u32 v28, v{vL}, 3, 2
        v_lshlrev_b32 v{vKG}, 9, v28
        v_lshrrev_b32 v28, 1, v28
        v_lshrrev_b32 v31, 5, v{vL}
        v_xor_b32 v28, v28, v31
        v_lshl_add_u32 v{vKG}, v28, 7, v{vKG}
        v_and_b32 v28, 7, v{vL}
        v_lshl_add_u32 v{vKG}, v28, 4, v{vKG}
        v_add_u32 v{vKA2}, {KVR}, v{vKG}
        v_lshlrev_b32 v{vVA}, 9, v31
        v_and_b32 v28, 15, v{vL}
        v_lshl_add_u32 v{vVA}, v28, 4, v{vVA}
        v_add_u32 v{vVA}, {KVR + 256}, v{vVA}
        v_mov_b32 v{vIDX}, 0xdddddddd
        v_lshrrev_b32 v28, 2, v{vL}
        v_lshlrev_b32 v28, 10, v28
        v_and_b32 v30, 3, v{vL}
        v_lshl_add_u32 v{vT3}, v30, 7, v28
        v_lshl_add_u32 v28, v30, 4, v28
        s_lshl_b32 s{sT0}, s{sHG}, 7
        s_lshl_b32 s{sT1}, s{sTH}, 6
        s_add_u32 s{sT0}, s{sT0}, s{sT1}
        v_add_u32 v{vW2}, s{sT0}, v28
        v_lshl_add_u32 v{vG0}, v31, 8, v{vTR}
        s_lshl_b32 s{sT0}, s{sKQ}, 11
        v_add_u32 v{vG0}, s{sT0}, v{vG0}
        v_add_u32 v{vG1}, 0x10000, v{vG0}
        v_add_u32 v{vG2}, 130048, v{vG0}
        s_lshl_b32 s{sW2B}, s{sTH}, 10
        s_add_u32 s{sW2B}, s{sW2B}, s{sT0}
        s_lshl_b32 s{sT0}, s{sTB}, 1
        s_add_u32 s{sT0}, s{sT0}, s{sTH}
        s_mul_i32 s{sHB}, s{sT0}, 112
        s_mul_i32 s{sT1}, s{sKQ}, 28
        s_add_u32 s{sHB}, s{sHB}, s{sT1}
        s_lshl_b32 s{sHB}, s{sHB}, 10
        s_add_u32 s{sHB}, s{sHB}, {WS_H}
        s_lshl_b32 s{sXO}, s{sT0}, 15
        s_add_u32 s{sOB}, s{sXO}, {WS_O}
        s_lshl_b32 s{sT1}, s{sHG}, 7
        s_add_u32 s{sXO}, s{sXO}, s{sT1}
        s_lshl_b32 s{sT1}, s{sKQ}, 5
        s_add_u32 s{sXO}, s{sXO}, s{sT1}
        s_mul_i32 s{sW2S}, s{sKQ}, {28*16384}
        s_lshl_b32 s{sT0}, s{sWV}, 10
        s_add_u32 s{sT0}, s{sT0}, {QX}
        v_add_u32 v{vQA}, s{sT0}, v{vL16}
        v_and_b32 v28, 31, v{vL}
        v_lshlrev_b32 v28, 10, v28
        v_lshl_add_u32 v{vXO}, v31, 4, v28
        s_lshl_b32 s{sT0}, s{sTH}, 11
        v_add_u32 v{vRB}, s{sT0}, v{vL16}
        """)
    SETUP_MARK = "@@SETUP@@"
    vRT = 12
    g(f"""
    v_and_b32 v16, 31, v{vL}
    s_lshl_b32 s{sT0}, s{sTH}, 5
    v_add_u32 v16, s{sT0}, v16
    v_lshlrev_b32 v16, 2, v16
    v_add_u32 v16, {RARR}, v16
    s_and_b32 s{sT0}, s{sWV}, 3
    s_lshl_b32 s{sT0}, s{sT0}, 10
    s_add_u32 s{sT0}, s{sT0}, {PART}
    v_and_b32 v15, 15, v{vL}
    v_lshlrev_b32 v15, 5, v15
    v_add_u32 v15, s{sT0}, v15
    v_lshrrev_b32 v14, 4, v{vL}
    v_lshl_add_u32 v17, v14, 4, v15
    v_and_b32 v18, 1, v14
    v_lshl_add_u32 v15, v18, 8, v15
    v_lshrrev_b32 v14, 1, v14
    v_lshl_add_u32 v15, v14, 4, v15
    """)
    ACC = 144
    FR = [64, 96]
    KB, KD = 112, 128
    def g1_reads(var, chunk, ks):
        slot = chunk % NSLOT
        base = FR[chunk & 1] + 16*ks
        out = [f"ds_read_b128 {vr(base,4)}, v{vB} offset:{XN + (2*chunk+ks)*32}"]
        va, so = (vA, slot*SLOT) if slot < 3 else (vA2, (slot-3)*SLOT)
        for jj in range(NTV[var]):
            for q in range(2):
                out.append(f"ds_read_b64_tr_b16 {vr(base+4+4*jj+2*q,2)}, v{va} offset:{so + jj*2048 + ks*1024 + q*256}")
        return out
    def flag_store(base):
        g(f"""
        s_lshl_b32 s{sT0}, s{sTB}, 3
        s_add_u32 s{sT0}, s{sT0}, s{sHG}
        s_lshl_b32 s{sT0}, s{sT0}, 4
        s_add_u32 s{sT0}, s{sT0}, {base}
        v_mov_b32 v28, 0
        v_mov_b32 v31, s{sTAG}
        s_mov_b64 exec, 1
        buffer_store_dword v31, v28, {srd(SWS)}, s{sT0} offen sc1
        s_mov_b64 exec, -1
        """)
    def check_or_spin(loads, regs):
        done, lab = g.label("PD"), g.label("PL")
        g(f"s_mov_b32 s{sCNT}, 0\n{lab}:")
        for r in regs: g(f"v_xor_b32 v{r}, s{sTAG}, v{r}")
        for r in regs[1:]: g(f"v_or_b32 v{regs[0]}, v{regs[0]}, v{r}")
        g(f"""
        v_cmp_ne_u32 vcc, 0, v{regs[0]}
        s_nop 4
        s_cbranch_vccz {done}
        s_add_u32 s{sCNT}, s{sCNT}, 1
        s_cmp_gt_u32 s{sCNT}, {opt.SPIN}
        s_cbranch_scc1 {done}
        s_sleep 8
        """)
        for s in loads: g(s)
        g(f"s_waitcnt vmcnt(0)\ns_branch {lab}\n{done}:")
    def kv_dma(c):
        g(f"s_add_u32 m0, s{sKVL}, {(c%4)*8192}\ns_add_u32 s{sT0}, s{sKVS}, {c*8192}")
        g.vmop(f"buffer_load_dwordx4 v{vL16}, {srd(SWS)}, s{sT0} offen sc1 lds", ("kv", c))
    G1END = g.label("G1END")
    kvpoll = [f"buffer_load_dword v{16+k}, v{vL16}, {srd(SWS)}, s{sT1} offen offset:{k*1024} sc1" for k in range(4)]
    def kv_mini(role, mid):
        for s in range(4):
            g(mfma16(KD, WK+4*s, KB+4*s, KD if s else "0") if role == 0 else mfma16(KD, KB+4*s, WK+4*s, KD if s else "0"))
        for s in mid: g(s)
        pad = max(0, 8 - len(mid) - 2)
        if pad: g(f"s_nop {pad-1}")
        if role == 0:
            g(f"s_mov_b32 exec_lo, 0x00ff00ff\ns_mov_b32 exec_hi, 0x00ff00ff\nds_write_b128 v15, {vr(KD,4)}")
        else:
            g(f"s_mov_b32 exec_hi, 0\ns_nop 0\nds_write_b128 v17, {vr(KD,4)} offset:512")
        g("s_mov_b64 exec, -1")
    for var in range(4):
        nxt = g.label("G1V")
        if var < 3: g(f"s_cmp_lg_u32 s{sVAR}, {var}\ns_cbranch_scc1 {nxt}")
        g.vmreset()
        for c in range(NSLOT):
            for _ in range(NDMA[var]): g.vm.append(("w", c))
        NT = NTV[var]
        if NDMA[var]: g.vmwait(("w", 1), "lgkmcnt(0)")
        else: g("s_waitcnt lgkmcnt(0)")
        g(f"s_add_u32 s{sTAG}, s{sTAG}, 1\ns_barrier")
        g.ts(4)
        for s in range(4): g(f"ds_read_b128 {vr(KB+4*s,4)}, v{vKB} offset:{XN + s*64}")
        r0 = g1_reads(var, 0, 0); r1 = g1_reads(var, 0, 1)
        for s in r0: g(s)
        g(f"s_waitcnt lgkmcnt({len(r0)})")
        mid = r1 + [f"ds_read_b32 v{vRT}, v16", f"ds_read_b32 v{vRT+1}, v16"]
        if var == 1:
            lv, lj = g.label("KVV"), g.label("KVJ")
            g(f"s_cmp_ge_u32 s{sWV}, 4\ns_cbranch_scc1 {lv}")
            kv_mini(0, mid)
            g(f"s_branch {lj}\n{lv}:")
            kv_mini(1, mid)
            g(f"{lj}:")
        else:
            kv_mini(0 if var == 0 else 1, mid)
        for j in range(16):
            if j == 0:
                g("s_waitcnt lgkmcnt(1)")
                g.ts(5)
            else:
                if j + 1 < 16 and NDMA[var]: g.vmwait(("w", j + 1), "lgkmcnt(0)")
                else: g("s_waitcnt lgkmcnt(0)")
                if var == 3 and j == opt.KVFLAG_AT:
                    g("s_waitcnt vmcnt(0)")
                    flag_store(WS_FKV)
                if var == 3 and j == opt.KVCHECK_AT:
                    g("s_waitcnt vmcnt(0)")
                    check_or_spin(kvpoll, [16, 17, 18, 19])
                g("s_barrier")
            if var == 3 and j == 1:
                S0 = 16
                g(f"v_add_u32 v14, {PART}, v{vL16}")
                for k in range(4): g(f"ds_read_b128 {vr(S0+4*k,4)}, v14 offset:{k*1024}")
                g(f"""
                v_bfe_u32 v14, v{vL}, 1, 3
                v_lshlrev_b32 v14, 4, v14
                v_add_u32 v14, {R4}, v14
                v_and_b32 v15, 1, v{vL}
                v_lshlrev_b32 v15, 4, v15
                s_lshl_b32 s{sT0}, s{sHG}, 5
                s_add_u32 s{sT0}, s{sT0}, {RARR}
                v_add_u32 v15, s{sT0}, v15
                v_cmp_gt_u32 vcc, 32, v{vL}
                s_lshr_b32 s{sT0}, s{sHG}, 1
                s_and_b32 s{sT0}, s{sT0}, 1
                v_cndmask_b32 v14, v15, v14, vcc
                ds_read_b128 {vr(32,4)}, v14
                s_lshl_b32 s{sT0}, s{sT0}, 7
                v_mov_b32 v14, s{sT0}
                v_lshlrev_b32 v15, 3, v{vL}
                v_cndmask_b32 v14, 0, v14, vcc
                v_xor_b32 v14, v14, v15
                s_lshl_b32 s{sT0}, s{sTB}, 3
                s_add_u32 s{sT0}, s{sT0}, s{sHG}
                s_lshl_b32 s{sT0}, s{sT0}, 9
                s_add_u32 s{sT0}, s{sT0}, {WS_KV}
                s_waitcnt lgkmcnt(0)
                """)
                for k in range(4): g(f"v_add_f32 v{S0+k}, v{S0+k}, v{S0+4+k}\nv_add_f32 v{S0+8+k}, v{S0+8+k}, v{S0+12+k}")
                for k in range(4): g(f"v_add_f32 v{S0+k}, v{S0+k}, v{S0+8+k}")
                for k in range(4): g(f"v_mul_f32 v{S0+k}, v{S0+k}, v{32+k}")
                g(f"""
                v_cvt_pk_bf16_f32 v{S0}, v{S0}, v{S0+1}
                v_cvt_pk_bf16_f32 v{S0+1}, v{S0+2}, v{S0+3}
                buffer_store_dwordx2 {vr(S0,2)}, v14, {srd(SWS)}, s{sT0} offen sc1
                """)
            if var == 3 and j == opt.KVPOLL_AT:
                g(f"s_mov_b32 s{sT1}, {WS_FKV}")
                for s in kvpoll: g(s)
            cur = FR[j & 1]
            rd = g1_reads(var, j+1, 0) + g1_reads(var, j+1, 1) if j + 1 < 16 else []
            n = 0
            for ks in range(2):
                b = cur + 16*ks
                for jj in range(NT):
                    g(mfma(ACC+16*jj, b+4+4*jj, b, ACC+16*jj if (j or ks) else "0"))
                    if n == 0:
                        for s in rd[:len(rd)//2]: g(s)
                    if n == 1:
                        for s in rd[len(rd)//2:]: g(s)
                    if n == 2:
                        if j == 1: g1_dma(var, 5)
                        if j >= 1 and j + NSLOT < 16: g1_dma(var, j + NSLOT)
                        if 0 <= j - opt.KVCHECK_AT < 3: kv_dma(j - opt.KVCHECK_AT)
                        if j == 3:
                            for r in range(vV0, vV0+12): g(f"v_mov_b32 v{r}, s{sONE2}")
                        if j == 4:
                            for r in range(16): g(f"v_mov_b32 v{vO+r}, 0")
                    n += 1
        g.ts(6)
        isq = g.label("G1Q")
        def scale_cvt(jj, rreg):
            a = ACC + 16*jj
            for k in range(8): g(f"v_pk_mul_f32 {vr(a+2*k,2)}, {vr(a+2*k,2)}, {vr(rreg,2)}")
            for k in range(8): g(f"v_cvt_pk_bf16_f32 v{a+k}, v{a+2*k}, v{a+2*k+1}")
        if var == 1:
            g(f"s_cmp_eq_u32 s{sG}, 1\ns_cbranch_scc1 {isq}")
        g(f"""
        s_lshl_b32 s{sT0}, s{sTB}, 1
        s_add_u32 s{sT0}, s{sT0}, s{sTH}
        s_mul_i32 s{sT0}, s{sT0}, 112
        s_mul_i32 s{sT1}, s{sHG}, 14
        s_add_u32 s{sT0}, s{sT0}, s{sT1}
        s_add_u32 s{sT0}, s{sT0}, {[0,6,10,10][var]}
        s_lshl_b32 s{sT0}, s{sT0}, 10
        s_add_u32 s{sT0}, s{sT0}, {WS_H}
        s_nop 3
        """)
        vmsave = (list(g.vm), g.done)
        for jj in range(NT):
            scale_cvt(jj, vRT)
            a = ACC + 16*jj
            for k in range(8): g(f"v_pk_max_i16 v{a+k}, v{a+k}, 0")
            if jj == 2: g(f"s_add_u32 s{sT0}, s{sT0}, 4096")
            for u in range(2):
                g.vmop(f"buffer_store_dwordx4 {vr(a+4*u,4)}, v{vL16}, {srd(SWS)}, s{sT0} offen offset:{((jj%2)*2+u)*1024} sc1", "hst")
        g.vmwait(("kv", 1))
        g(f"s_branch {G1END}")
        if var == 1:
            g.vm, g.done = vmsave
            g(f"{isq}:")
            cb = fb(0.25 * 1.4426950408889634)
            g(f"""
            v_mul_f32 v14, {cb:#x}, v{vRT}
            v_mul_f32 v15, {cb:#x}, v{vRT}
            s_lshl_b32 s{sT0}, s{sTH}, 10
            s_add_u32 s{sT0}, s{sT0}, {QX}
            v_add_u32 v16, s{sT0}, v{vL16}
            s_nop 6
            """)
            for jj in range(2):
                scale_cvt(jj, 14)
                for u in range(2):
                    g(f"ds_write_b128 v16, {vr(ACC+16*jj+4*u,4)} offset:{(2*jj+u)*2048}")
            g.vmwait(("kv", 1))
            g(f"s_branch {G1END}")
        if var < 3: g(f"{nxt}:")
    g(f"{G1END}:")
    g.ts(7)
    def w2_dma(step, slot):
        g(f"s_add_u32 m0, s{sW2B}, {T2[slot]}")
        if step < 28:
            g(f"s_add_u32 s{sT0}, s{sW2S}, {step*16384}")
            S = SW2
        else:
            g(f"s_lshl_b32 s{sT0}, s{sKQ}, 17\ns_add_u32 s{sT0}, s{sT0}, {(step-28)*16384}")
            S = SWO
        g.vmop(f"buffer_load_dwordx4 v{vW2}, {srd(S)}, s{sT0} offen lds", ("w2", step))
    g("s_waitcnt lgkmcnt(0)\ns_barrier")
    g.ts(8)
    def kread(t, dst): return f"ds_read_b128 {vr(dst,4)}, v{vKA2} offset:{((t//4)%4)*8192 + (t%4)*2048}"
    def vread(t, u, dst): return f"ds_read_b128 {vr(dst,4)}, v{vVA} offset:{((t//4)%4)*8192 + (t%4)*2048 + u*1024}"
    def v01(t):
        g(f"s_mov_b64 exec, s[{sVM}:{sVM+1}]"); g(vread(t, 0, vV0)); g(vread(t, 1, vV1[t & 1])); g("s_mov_b64 exec, -1")
    g(f"ds_read_b128 {vr(vQ,4)}, v{vQA}")
    g(kread(0, vK)); g(kread(1, vK1))
    v01(0)
    g("s_waitcnt lgkmcnt(2)")
    g(mfma(vS[0], vK, vQ, "0")); g(mfma(vS[1], vK1, vQ, "0"))
    for k in range(4): g(f"v_mov_b32 v{vQC+k}, v{vQ+k}")
    g("s_nop 6")
    vMX = 28
    def maxtree(first):
        regs = list(range(vS[0], vS[0]+32))
        if first: g(f"v_max3_f32 v{vMX}, v{regs[0]}, v{regs[1]}, v{regs[2]}\nv_max_f32 v{vMX}, v{vMX}, v{regs[3]}"); regs = regs[4:]
        for k in range(0, len(regs), 2): g(f"v_max3_f32 v{vMX}, v{vMX}, v{regs[k]}, v{regs[k+1]}")
    maxtree(True)
    def finish_m(bias):
        g(f"""
        v_mov_b32 v31, v{vMX}
        s_nop 1
        v_permlane32_swap_b32 v31, v{vMX}
        s_nop 1
        v_max_f32 v{vMX}, v{vMX}, v31
        v_add_f32 v{vMX}, {fb(bias):#x}, v{vMX}
        v_xor_b32 v{vC}, 0x80000000, v{vMX}
        """)
        for r in range(1, 16): g(f"v_mov_b32 v{vC+r}, v{vC}")
    finish_m(opt.BIAS)
    ATT = g.label("ATT")
    g(f"{ATT}:")
    g.vmreset(); g.vm.append(("kv", 2))
    g("s_nop 1")
    g(mfma(vS[0], vK, vQ, vC))
    g(kread(1, vK))
    g("s_nop 7\ns_nop 2")
    side = {}
    t0 = 4*opt.HFLAG_C + 1
    free = [t for t in range(t0, 64) if t % 4 != 0 or t >= 52]
    if opt.TOUCH3: side[free.pop(0)] = ("touch",)
    free.remove(opt.HPOLL_T); side[opt.HPOLL_T] = ("hpoll",)
    hcheck = opt.HPOLL_T + 3
    early = [t for t in free if t < hcheck]; late = [t for t in free if t >= hcheck]
    jobs_w = [("w2", i) for i in range(NRES)]
    for t in early:
        if jobs_w: side[t] = jobs_w.pop(0)
    jobs = [("h", i) for i in range(28)]
    allj = []
    while jobs or jobs_w:
        for _ in range(2):
            if jobs: allj.append(jobs.pop(0))
        if jobs_w: allj.append(jobs_w.pop(0))
    assert len(allj) <= len(late), (len(allj), len(late))
    for t, jb in zip(late, allj): side[t] = jb
    hpoll = [f"buffer_load_dword v29, v30, {srd(SWS)}, s{sT1} offen sc1"]
    def pair_flag_addr(base):
        g(f"""
        s_lshl_b32 s{sT1}, s{sTB}, 3
        s_lshl_b32 s{sT0}, s{sKQ}, 1
        s_add_u32 s{sT1}, s{sT1}, s{sT0}
        s_lshl_b32 s{sT1}, s{sT1}, 4
        s_add_u32 s{sT1}, s{sT1}, {base}
        v_and_b32 v30, 16, v{vL16}
        """)
    AC2 = 64
    AF = [112, 120, 96]
    OB = [HB + 4*i for i in range(8)]
    slot_of = {i: i for i in range(NRES)}
    def lds_base(off):
        return (0, off) if off < 0x10000 else ((1, off - 0x10000) if off < 130048 else (2, off - 130048))
    def a_reads(step):
        b, o = lds_base(T2[slot_of[step]])
        return [f"ds_read_b64_tr_b16 {vr(AF[step%3]+4*n+2*q,2)}, v{vG0+b} offset:{o + n*1024 + q*512}" for n in range(2) for q in range(2)]
    for t in range(64):
        c = t // 4
        S = vS[t & 1]; Sn = vS[(t+1) & 1]
        ex = lambda k: f"v_exp_f32 v{S+k}, v{S+k}"
        def sidejob():
            if t == hcheck and not opt.X_NOSIDE:
                g.vmwait("hpoll")
                check_or_spin(hpoll, [29])
            if t % 4 == 0 and c + 3 < 16:
                if opt.X_NOKV: g.vm.append(("kv", c+3))
                else: kv_dma(c + 3)
            jb = side.get(t)
            if jb is not None and (opt.X_NOSIDE or jb[0] == opt.X_SKIP):
                g.vm.append(jb if len(jb) > 1 else jb[0])
            elif jb is not None:
                if jb[0] == "w2": w2_dma(jb[1], jb[1])
                elif jb[0] == "h":
                    i = jb[1]
                    if i % 4 == 0: g(f"s_add_u32 s{sT2}, s{sHB}, {i*1024}")
                    g.vmop(f"buffer_load_dwordx4 {vr(HB+4*i,4)}, v{vL16}, {srd(SWS)}, s{sT2} offen offset:{(i%4)*1024} sc1", ("h", i))
                elif jb[0] == "hpoll":
                    pair_flag_addr(WS_FH)
                    g.vmop(hpoll[0], "hpoll")
                elif jb[0] == "touch":
                    a, b = g.label("T3"), g.label("T3")
                    g(f"""
                    s_lshr_b32 s{sT0}, s{sHG}, 2
                    s_lshl_b32 s{sT0}, s{sT0}, 9
                    s_cmp_eq_u32 s{sWV}, 7
                    s_cbranch_scc1 {a}
                    s_lshl_b32 s{sT1}, s{sWV}, 5
                    s_add_u32 s{sT1}, s{sT1}, s{sJ}
                    s_lshl_b32 s{sT1}, s{sT1}, 13
                    s_add_u32 s{sT0}, s{sT0}, s{sT1}
                    s_mov_b32 exec_hi, 0
                    buffer_load_dword v{vJ}, v{vT3}, {srd(SW2)}, s{sT0} offen
                    s_mov_b64 exec, -1
                    s_branch {b}
                    {a}:
                    s_lshl_b32 s{sT1}, s{sJ}, 14
                    s_add_u32 s{sT0}, s{sT0}, s{sT1}
                    buffer_load_dword v{vJ}, v{vT3}, {srd(SWO)}, s{sT0} offen
                    {b}:
                    """)
                    g.vm.append("touch")
        for k in range(0, 4): g(ex(k))
        if t > 0: g(smf(vO, vV1[(t-1) & 1], vS[(t-1) & 1] + 8, vIDX))
        if t % 4 == 0 and t > 0:
            if c == opt.HFLAG_C: g.vmall()
            elif c + 1 < 16: g.vmwait(("kv", c+1))
            else: g.vmwait(("w2", 7))
            if not opt.X_NOBAR: g("s_barrier")
            if c < 15: g.ts(c, True)
            if c == opt.HFLAG_C:
                sk = g.label("HF")
                g(f"s_cmp_lg_u32 s{sWV}, 0\ns_cbranch_scc1 {sk}")
                flag_store(WS_FH)
                g(f"{sk}:")
        if opt.PRIO: g(f"s_setprio {3 - t % 4}")
        g("s_waitcnt lgkmcnt(0)")
        if opt.SIDEPOS == 1: sidejob()
        for k in range(4, 8): g(ex(k))
        if t + 1 < 64: g(mfma(Sn, vK, vQ, vC))
        if t + 2 < 64: g(kread(t+2, vK))
        if opt.SIDEPOS == 0: sidejob()
        for k in range(8, 12): g(ex(k))
        g(smf(vO, vV0, S, vIDX))
        if t + 1 < 64: v01(t+1)
        else:
            for s in a_reads(0) + a_reads(1): g(s)
        if opt.SIDEPOS == 2: sidejob()
        for k in range(12, 16): g(ex(k))
    XRES = 24
    g.vmop(f"buffer_load_dwordx4 {vr(XRES,4)}, v{vXO}, {srd(SX)}, s{sXO} offen", "xres")
    g("s_nop 0")
    g(smf(vO, vV1[1], vS[1] + 8, vIDX))
    g.ts(9)
    FBK = g.label("FBK")
    stages = [list(range(6*s, 6*s+6)) for s in range(6)]
    nxt_load = NRES
    freeslots = []
    for si, st in enumerate(stages):
        extra = 0
        if si > 0:
            need = min(35, st[-1] + 2)
            if si == 1: g.vmall()
            else: g.vmwait(("w2", need))
            g("s_barrier")
            freeslots += [slot_of[x] for x in stages[si-1]]
            if si == 1:
                if not opt.TSH: g.ts(10)
                freeslots = [NRES + k for k in range(4)] + freeslots
                g(f"v_mov_b32 v30, {VOTE}\nds_read_b128 {vr(16,4)}, v30\nds_read_b128 {vr(20,4)}, v30 offset:16")
                extra = 2
        for step in st:
            if step + 2 < 36:
                for s in a_reads(step + 2): g(s)
            if step == opt.OPOLL_ISSUE:
                pair_flag_addr(WS_FO)
                g.vmop(hpoll[0], "opoll")
            if step == opt.OPOLL_CHECK:
                if not opt.TSH: g.ts(11)
                g.vmwait("opoll")
                check_or_spin(hpoll, [29])
                g(f"s_lshl_b32 s{sT2}, s{sKQ}, 13\ns_add_u32 s{sT2}, s{sT2}, s{sOB}\ns_add_u32 s{sT3}, s{sT2}, 4096")
                for i in range(8):
                    g.vmop(f"buffer_load_dwordx4 {vr(OB[i],4)}, v{vL16}, {srd(SWS)}, s{sT2 + i//4} offen offset:{(i%4)*1024} sc1", ("o", i))
                if not opt.TSH: g.ts(12)
            nout = 4*min(2, 35 - step) + extra + (1 if step == 1 else 0)
            extra = 0
            if step < 28: g.vmwait(("h", step))
            else: g.vmwait(("o", step - 28))
            g(f"s_waitcnt lgkmcnt({nout})")
            b = HB + 4*step if step < 28 else OB[step - 28]
            for n in range(2):
                g(mfma(AC2 + 16*n, AF[step % 3] + 4*n, b, AC2 + 16*n if step else "0"))
                if step > 6 and freeslots and nxt_load < 36:
                    slot_of[nxt_load] = freeslots.pop(0)
                    w2_dma(nxt_load, slot_of[nxt_load]); nxt_load += 1
            if step == 0:
                g(f"""
                s_lshl_b32 s{sT2}, s{sHG}, 2
                s_add_u32 s{sT2}, s{sT2}, s{sKQ}
                s_lshl_b32 s{sT2}, s{sT2}, 10
                s_add_u32 s{sT2}, s{sT2}, s{sOB}
                s_lshl_b32 s{sT3}, s{sWV}, 2
                s_add_u32 s{sT3}, s{sT3}, {VOTE}
                v_mov_b32 v30, {fb(2.0**115):#x}
                v_mov_b32 v31, {fb(2.0**126):#x}
                """)
                g(f"v_rcp_f32 v29, v{vO+8}\nv_add_f32 v28, |v{vO}|, |v{vO+1}|")
                for k in range(2, 8): g(f"v_add_f32 v28, v28, |v{vO+k}|")
                g(f"v_cmp_lt_f32 vcc, v{vO+8}, v30\nv_cmp_lt_f32 s[{sT0}:{sT1}], v28, v31")
                for k in range(8): g(f"v_mul_f32 v{vO+k}, v{vO+k}, v29")
                for k in range(4): g(f"v_cvt_pk_bf16_f32 v{vO+k}, v{vO+2*k}, v{vO+2*k+1}")
                g.vmop(f"buffer_store_dwordx4 {vr(vO,4)}, v{vL16}, {srd(SWS)}, s{sT2} offen sc1", "ost")
                g(f"""
                s_and_b64 vcc, vcc, s[{sT0}:{sT1}]
                s_cmp_eq_u64 vcc, -1
                s_cselect_b32 s{sT0}, 0, 1
                s_cmp_lg_u32 s{sFB}, 0
                s_cselect_b32 s{sT0}, 0, s{sT0}
                v_mov_b32 v30, s{sT3}
                v_mov_b32 v31, s{sT0}
                ds_write_b32 v30, v31
                """)
            if step == 6:
                sk = g.label("OF")
                g(f"""
                s_waitcnt lgkmcnt(4)
                v_or3_b32 v16, v16, v17, v18
                v_or3_b32 v20, v20, v21, v22
                v_or3_b32 v16, v16, v19, v23
                v_or_b32 v16, v16, v20
                s_nop 0
                v_readfirstlane_b32 s{sT0}, v16
                s_nop 3
                s_cmp_lg_u32 s{sT0}, 0
                s_cbranch_scc1 {FBK}
                s_cmp_lg_u32 s{sWV}, 0
                s_cbranch_scc1 {sk}
                """)
                flag_store(WS_FO)
                g(f"{sk}:")
    assert nxt_load == 36
    g.ts(13)
    busy = {slot_of[x] for x in stages[5]}
    F = [T2[x] for x in range(len(T2)) if x not in busy][:6]
    g(f"v_add_u32 v28, 0x10000, v{vRB}\nv_add_u32 v29, 130048, v{vRB}")
    for k in range(4):
        g(f"v_lshlrev_b32 v{16+2*k}, 16, v{XRES+k}\nv_and_b32 v{17+2*k}, 0xffff0000, v{XRES+k}")
    rbase = [vRB, 28, 29]
    def blk(gq, src):
        p = gq*3 + (src - gq - 1) % 4
        b, o = lds_base(F[p // 2] + (p % 2)*4096)
        return rbase[b], o
    FIN = g.label("FIN")
    RD = 96
    for kq in range(4):
        nxt = g.label("FK")
        if kq < 3: g(f"s_cmp_lg_u32 s{sKQ}, {kq}\ns_cbranch_scc1 {nxt}")
        else: g("s_nop 1")
        for d in range(1, 4):
            gq = (kq + d) % 4
            v, o = blk(gq, kq)
            for u in range(2): g(f"ds_write_b128 v{v}, {vr(AC2+8*gq+4*u,4)} offset:{o + u*1024}")
        for e in range(8): g(f"v_mov_b32 v{120+e}, v{AC2+8*kq+e}")
        g("s_waitcnt lgkmcnt(0)\ns_barrier")
        for d in range(1, 4):
            v, o = blk(kq, (kq + d) % 4)
            for u in range(2): g(f"ds_read_b128 {vr(RD+8*(d-1)+4*u,4)}, v{v} offset:{o + u*1024}")
        if kq < 3: g(f"s_branch {FIN}\n{nxt}:")
    g(f"{FIN}:\ns_waitcnt lgkmcnt(4)")
    for e in range(8): g(f"v_add_f32 v{120+e}, v{120+e}, v{RD+e}")
    g("s_waitcnt lgkmcnt(0)")
    for e in range(8): g(f"v_add_f32 v{RD+8+e}, v{RD+8+e}, v{RD+16+e}")
    for e in range(8): g(f"v_add_f32 v{120+e}, v{120+e}, v{RD+8+e}")
    g("s_nop 1")
    for e in range(4): g(f"v_permlane32_swap_b32 v{120+e}, v{124+e}")
    g("s_nop 1")
    for e in range(8): g(f"v_add_f32 v{120+e}, v{120+e}, v{16+e}")
    for k in range(4): g(f"v_cvt_pk_bf16_f32 v{120+k}, v{120+2*k}, v{120+2*k+1}")
    g(f"buffer_store_dwordx4 {vr(120,4)}, v{vXO}, {srd(SOUT)}, s{sXO} offen")
    sk = g.label("EP")
    g(f"""
    s_or_b32 s{sT0}, s{sTB}, s{sHG}
    s_or_b32 s{sT0}, s{sT0}, s{sWV}
    s_cmp_lg_u32 s{sT0}, 0
    s_cbranch_scc1 {sk}
    v_mov_b32 v28, 0
    v_mov_b32 v29, s{sTAG}
    s_mov_b64 exec, 1
    buffer_store_dword v29, v28, {srd(SWS)}, 0 offen offset:{WS_EPOCH}
    s_mov_b64 exec, -1
    {sk}:
    """)
    if opt.TS:
        g.ts(14)
        g(f"""
        s_lshl_b32 s{sT0}, s2, 3
        s_add_u32 s{sT0}, s{sT0}, s{sWV}
        s_lshl_b32 s{sT0}, s{sT0}, 7
        s_add_u32 s{sT0}, s{sT0}, {WS_TSB}
        s_waitcnt vmcnt(0)
        """)
        g.ts(15)
        g(f"s_memrealtime s[{sT4}:{sT5}]\ns_waitcnt lgkmcnt(0)\ns_mov_b32 s{sTS+17}, s{sT4}")
        for k in range(18): g(f"v_mov_b32 v{32+k}, s{sTS+k}")
        g("v_mov_b32 v28, 0\ns_mov_b64 exec, 1")
        for k in range(5): g(f"buffer_store_dwordx4 {vr(32+4*k,4)}, v28, {srd(SWS)}, s{sT0} offen offset:{16*k}")
    g("s_endpgm")
    FL = g.label("FL")
    g(f"""
    {FBK}:
    s_mov_b32 s{sFB}, 1
    s_mov_b32 s{sT2}, {WS_KV}
    v_mov_b32 v{vMX}, 0xff800000
    s_waitcnt vmcnt(0) lgkmcnt(0)
    s_barrier
    """)
    g.vmreset()
    for c in range(3): kv_dma(c)
    for k in range(4): g(f"v_mov_b32 v{vQ+k}, v{vQC+k}")
    for r in range(16): g(f"v_mov_b32 v{vO+r}, 0")
    g(f"""
    {FL}:
    buffer_load_dwordx4 {vr(vK,4)}, v{vKG}, {srd(SWS)}, s{sT2} offen sc1
    buffer_load_dwordx4 {vr(vK1,4)}, v{vKG}, {srd(SWS)}, s{sT2} offen offset:2048 sc1
    s_waitcnt vmcnt(0)
    """)
    g(mfma(vS[0], vK, vQ, "0")); g(mfma(vS[1], vK1, vQ, "0"))
    g("s_nop 7\ns_nop 3")
    maxtree(False)
    g(f"s_add_u32 s{sT2}, s{sT2}, 4096\ns_cmp_lt_u32 s{sT2}, {WS_KV + 131072}\ns_cbranch_scc1 {FL}")
    finish_m(0.0)
    g("s_barrier")
    g(kread(0, vK)); v01(0)
    g(f"s_waitcnt lgkmcnt(0)\ns_branch {ATT}")
    g("L_END:\ns_endpgm")
    keep = g.l; g.l = []
    att_setup()
    setup = g.l; g.l = keep
    k = g.l.index("    " + SETUP_MARK)
    g.l[k:k+1] = setup
    body = g.text()
    hdr = open("parallel_sum__grouped_kv_mqa__dense_activation_relu__prompt.s.ref").read().split("; Override launch")[0]
    out = hdr + f"; @launch grid=(256,1,1) block=(512,1,1) lds={LDS_SIZE}\n"
    out += f""".amdgcn_target "amdgcn-amd-amdhsa--gfx950"
.text
.globl {NAME}
.p2align 8
.type {NAME},@function
{NAME}:
""" + body + f""".section .rodata,"a"
.p2align 6
.amdhsa_kernel {NAME}
  .amdhsa_next_free_vgpr 256
  .amdhsa_next_free_sgpr 102
  .amdhsa_accum_offset 256
  .amdhsa_group_segment_fixed_size 0
  .amdhsa_kernarg_size 88
  .amdhsa_user_sgpr_count 2
  .amdhsa_user_sgpr_kernarg_segment_ptr 1
  .amdhsa_system_sgpr_workgroup_id_x 1
.end_amdhsa_kernel
"""
    return out

if __name__ == "__main__":
    outp = sys.argv[1]
    for a in sys.argv[2:]:
        k, v = a.split("=")
        setattr(opt, k, type(getattr(opt, k))(eval(v)))
    open(outp, "w").write(build())
```

```python
import sys, struct
NAME = "parallel_sum__grouped_kv_mqa__dense_activation_relu__prompt_kernel"
fb = lambda x: struct.unpack("<I", struct.pack("<f", x))[0]

class Opt:
    TS = False
    BIAS = 88.0
    SPIN = 200000
    TOUCH = 1
    TOUCH2 = 1
    TOUCH3 = 1
    PRIO = 1
    KVFLAG_AT = 4
    KVPOLL_AT = 11
    KVCHECK_AT = 13
    ROT = 1
    DMA_AFTER = (-1, 5, 8, 8, 8)
    DMA_AFTER0 = (-1, -1, 8, 8, 8)
    TSG = False
    HFLAG_C = 2
    OPOLL_ISSUE = 15
    OPOLL_CHECK = 21
    HPOLL_T = 21
    X_NOSIDE = False
    X_NOBAR = False
    TSA = False
    X_NOKV = False
    X_SKIP = ''
    SIDEPOS = 0
    XBAR = 1
    KROT = 1
    TSH = False
    SC1T = ''
opt = Opt()

WS_EPOCH = 0
WS_FKV = 0x1000
WS_FH  = 0x2000
WS_FO  = 0x3000
WS_TSB = 0xC00000
WS_KV  = 0x10000
WS_O   = 0x40000
WS_H   = 0x300000
WS_SIZE = 0x1000000

XN = 0; XPITCH = 1040; XN_END = 64*XPITCH
SLOT = 18432; NSLOT = 5
RING_END = XN_END + NSLOT*SLOT
PART = RING_END
RARR = PART + 4096
R4 = RARR + 256
VOTE = 162816
LDS_SIZE = 163840
KVR = XN_END + SLOT
QX = XN_END + 3*SLOT
T2 = [i*8192 for i in range(10)] + [QX + i*8192 for i in range(5)] + [KVR + i*8192 for i in range(4)]
NRES = 15
RED = 0; RPITCH = 272

sTB, sHG, sWV, sTAG, sTH, sG = 26, 27, 28, 29, 30, 31
SX, SG_, SKV, SWS, SW2, SWO, SOUT = 32, 36, 40, 44, 48, 52, 56
sVAR, sLB, sK, sP32, sKQ, sFB = 60, 61, 62, 63, 64, 65
sONE2, sLO, sHI, sJ = 66, 67, 68, 69
sVM = 70
sT0, sT1, sT2, sT3, sT4, sT5 = 72, 73, 74, 75, 76, 77
sHB, sOB, sCNT, sW2B, sKVS, sKVL = 78, 79, 80, 81, 82, 83
sRB = 3
sCH = 80
sKVO = 65
sKVO2 = 79
SXO = 44
STC = 56
sW2S, sXO = 14, 15
sTS = 84
def srd(b): return f"s[{b}:{b+3}]"
def vr(b, n): return f"v[{b}:{b+n-1}]" if n > 1 else f"v{b}"

class Gen:
    def __init__(self): self.l = []; self.nl = 0; self.vm = []; self.done = -1
    def __call__(self, s):
        for x in s.strip("\n").split("\n"):
            x = x.strip()
            if x: self.l.append(("" if x.endswith(":") else "    ") + x)
    def label(self, p="L"):
        self.nl += 1; return f"{p}_{self.nl}"
    def vmop(self, s, tag=None):
        self(s); self.vm.append(tag)
    def vmwait(self, tag, extra=""):
        idx = max(i for i, t in enumerate(self.vm) if t == tag)
        if idx <= self.done:
            if extra: self(f"s_waitcnt {extra}")
            return
        n = len(self.vm) - 1 - idx
        assert n <= 63, n
        self.done = idx
        self(f"s_waitcnt vmcnt({n}) {extra}")
    def vmall(self, extra=""):
        self.done = len(self.vm) - 1
        self(f"s_waitcnt vmcnt(0) {extra}")
    def vmreset(self): self.vm = []; self.done = -1
    def ts(self, i, att=False):
        if opt.TS and (att == opt.TSA or i in (0, 15)):
            self(f"s_memtime s[{sT4}:{sT5}]\ns_waitcnt lgkmcnt(0)\ns_mov_b32 s{sTS+i}, s{sT4}")
    def text(self): return "\n".join(self.l) + "\n"

def mfma(d, a, b, c):
    cs = vr(c, 16) if isinstance(c, int) else c
    return f"v_mfma_f32_32x32x16_bf16 {vr(d,16)}, {vr(a,4)}, {vr(b,4)}, {cs}"
def mfma16(d, a, b, c):
    cs = vr(c, 4) if isinstance(c, int) else c
    return f"v_mfma_f32_16x16x32_bf16 {vr(d,4)}, {vr(a,4)}, {vr(b,4)}, {cs}"
def smf(d, a, b, idx): return f"v_smfmac_f32_32x32x32_bf16 {vr(d,16)}, {vr(a,4)}, {vr(b,8)}, v{idx}"

def build():
    g = Gen()
    vL, vX, vL16, vROW = 1, 2, 3, 29
    vJ = 255
    vW, vA, vA2, vB, vTR, vXW, vKB, vKA = 4, 5, 6, 7, 8, 9, 10, 11
    XR = 32
    g(f"""
    s_cmp_ge_u32 s2, 256
    s_cbranch_scc1 L_END
    s_load_dwordx16 s[4:19], s[0:1], 0
    s_load_dwordx4 s[20:23], s[0:1], 64
    s_load_dwordx2 s[24:25], s[0:1], 80
    """)
    if opt.TS:
        g(f"s_memtime s[{sTS}:{sTS+1}]\ns_memrealtime s[{sTS+16}:{sTS+17}]")
    g(f"""
    v_lshrrev_b32 v16, 6, v0
    s_lshr_b32 s{sJ}, s2, 3
    s_mov_b32 s{SG_+3}, 0x20000
    v_readfirstlane_b32 s{sWV}, v16
    """)
    if opt.TOUCH:
        g(f"""
        s_getpc_b64 s[{SG_}:{SG_+1}]
        L_PC:
        s_mov_b32 s{SG_+2}, L_END-L_PC
        v_and_b32 v17, 1, v0
        v_lshl_add_u32 v16, v16, 1, v17
        v_lshlrev_b32 v16, 7, v16
        s_lshl_b32 s{sT1}, s{sJ}, 11
        buffer_load_dword v{vJ}, v16, {srd(SG_)}, s{sT1} offen
        """)
    g(f"""
    v_and_b32 v{vL}, 63, v0
    s_and_b32 s{sT0}, s2, 7
    s_lshr_b32 s{sTB}, s{sT0}, 1
    s_and_b32 s{sT2}, s{sJ}, 7
    s_lshl3_add_u32 s{sTB}, s{sTB}, s{sT2}
    s_and_b32 s{sCH}, s{sT0}, 1
    s_lshr_b32 s{sT2}, s{sJ}, 3
    s_lshl2_add_u32 s{sHG}, s{sCH}, s{sT2}
    s_lshl_b32 s{sT2}, s{sT2}, {1 if opt.ROT else 5}
    s_add_u32 s{sRB}, s{sWV}, s{sT2}
    s_and_b32 s{sRB}, s{sRB}, 7
    s_lshl_b32 s{sT2}, s{sRB}, 3
    v_lshrrev_b32 v16, 3, v{vL}
    v_add_u32 v{vROW}, s{sT2}, v16
    v_lshlrev_b32 v16, 10, v{vROW}
    v_and_b32 v17, 7, v0
    v_lshl_add_u32 v{vX}, v17, 4, v16
    v_lshlrev_b32 v{vL16}, 4, v{vL}
    v_mul_u32_u24 v16, {XPITCH}, v{vROW}
    v_lshl_add_u32 v{vXW}, v17, 4, v16
    s_lshl_b32 s{sT0}, s{sHG}, 3
    v_add_u32 v17, s{sT0}, v17
    v_mul_u32_u24 v17, {XPITCH}, v17
    v_lshrrev_b32 v18, 4, v{vL}
    v_lshl_add_u32 v17, v18, 4, v17
    s_and_b32 s{sT5}, s{sWV}, 3
    s_lshl_b32 s{sT1}, s{sT5}, 8
    v_add_u32 v{vKB}, s{sT1}, v17
    v_bfe_u32 v19, v{vL}, 2, 2
    v_lshl_add_u32 v16, v18, 3, v19
    v_lshlrev_b32 v16, 5, v16
    v_and_b32 v20, 3, v{vL}
    v_lshl_add_u32 v16, v20, 3, v16
    s_mul_i32 s{sT2}, s{sRB}, {8*XPITCH}
    v_add_u32 v{vKA}, s{sT2}, v16
    s_mov_b32 m0, s{sT2}
    s_and_b32 s{sTH}, s{sWV}, 1
    s_lshr_b32 s{sG}, s{sWV}, 1
    v_lshlrev_b32 v{vTR}, 6, v19
    v_bfe_u32 v16, v{vL}, 4, 1
    v_lshl_add_u32 v{vTR}, v16, 5, v{vTR}
    v_lshl_add_u32 v{vTR}, v20, 3, v{vTR}
    v_lshrrev_b32 v21, 5, v{vL}
    v_lshl_add_u32 v{vA}, v21, 9, v{vTR}
    v_and_b32 v16, 31, v{vL}
    s_lshl_b32 s{sT0}, s{sTH}, 5
    v_add_u32 v16, s{sT0}, v16
    v_mul_u32_u24 v16, {XPITCH}, v16
    v_lshl_add_u32 v{vB}, v21, 4, v16
    s_cmp_eq_u32 s{sG}, 1
    s_movk_i32 s{sT1}, 3584
    s_cselect_b32 s{sT1}, 1024, s{sT1}
    s_movk_i32 s{sT2}, 448
    s_cselect_b32 s{sT2}, 128, s{sT2}
    s_lshl_b32 s{SG_+2}, s{sT1}, 9
    s_mul_i32 s{sT2}, s{sT2}, s{sHG}
    s_lshl_b32 s{sP32}, s{sT1}, 5
    s_lshl_b32 s{sK}, s{sT1}, 4
    s_mul_i32 s{sK}, s{sK}, s{sTH}
    s_cmp_eq_u32 s{sG}, 2
    s_cselect_b32 s{sT3}, 192, 0
    s_cmp_eq_u32 s{sG}, 3
    s_cselect_b32 s{sT3}, 320, s{sT3}
    s_add_u32 s{sT2}, s{sT2}, s{sT3}
    v_lshrrev_b32 v16, 2, v{vL}
    v_mul_lo_u32 v16, v16, s{sT1}
    v_lshl_add_u32 v16, v20, 4, v16
    v_add_u32 v{vW}, s{sT2}, v16
    s_lshl2_add_u32 s{sT3}, s{sG}, 2
    s_cmp_eq_u32 s{sG}, 0
    s_cselect_b32 s{sT3}, 0, s{sT3}
    s_cselect_b32 s{sVAR}, 0, 1
    s_lshl_b32 s{sT4}, s{sT3}, 10
    s_add_u32 s{sT4}, s{sT4}, {XN_END}
    s_lshl_b32 s{sLB}, s{sTH}, 10
    s_add_u32 s{sLB}, s{sLB}, s{sT4}
    v_add_u32 v{vA}, s{sT4}, v{vA}
    v_add_u32 v{vA2}, {3*SLOT}, v{vA}
    s_cmp_eq_u32 s{sWV}, 6
    s_cselect_b32 s{sVAR}, 2, s{sVAR}
    s_cmp_eq_u32 s{sWV}, 7
    s_cselect_b32 s{sVAR}, 3, s{sVAR}
    s_mov_b32 s{SX+2}, 0x200000
    s_mov_b32 s{SX+3}, 0x20000
    s_movk_i32 s{SKV+2}, 16384
    s_mov_b32 s{SKV+3}, 0x20000
    s_lshl_b32 s{sT0}, s{sTB}, 16
    s_and_b32 s{sT2}, s{sJ}, {7 if opt.KROT else 0}
    s_mul_i32 s{sT3}, s{sP32}, s{sT2}
    s_lshl1_add_u32 s{sK}, s{sT3}, s{sK}
    s_lshl1_add_u32 s{sT3}, s{sT5}, s{sT2}
    s_and_b32 s{sKVO}, s{sT3}, 7
    s_lshl_b32 s{sKVO}, s{sKVO}, 11
    s_add_u32 s{sT3}, s{sT3}, 1
    s_and_b32 s{sKVO2}, s{sT3}, 7
    s_lshl_b32 s{sKVO2}, s{sKVO2}, 11
    s_lshl_b32 s{sT2}, s{sT2}, 7
    """ + "".join(f"s_add_u32 s{SXO+n}, s{sT2}, {n*128}\ns_and_b32 s{SXO+n}, s{SXO+n}, 0x380\ns_or_b32 s{SXO+n}, s{SXO+n}, s{sT0}\n" for n in range(8)) + f"""
    s_lshl2_add_u32 s{sT1}, s{sJ}, s{sT5}
    s_lshl_b32 s{sT1}, s{sT1}, 7
    s_cmp_lt_u32 s{sWV}, 4
    s_waitcnt lgkmcnt(0)
    s_cselect_b32 s{SKV}, s8, s10
    s_cselect_b32 s{SKV+1}, s9, s11
    s_mov_b32 s{SX}, s4
    s_mov_b32 s{SX+1}, s5
    """)
    if opt.TOUCH: g(f"buffer_load_dword v{vJ}, off, {srd(SKV)}, s{sT1}")
    def xloads():
        for i in range(8):
            g(f"buffer_load_dwordx4 {vr(XR+4*i,4)}, v{vX}, {srd(SX)}, s{SXO+i} offen")
    def kvdma():
        for i in range(2):
            g(f"buffer_load_dwordx4 v{vL16}, {srd(SKV)}, s{sKVO} offen offset:{i*1024} lds")
        g("s_add_u32 m0, m0, 2048\ns_nop 0")
        for i in range(2):
            g(f"buffer_load_dwordx4 v{vL16}, {srd(SKV)}, s{sKVO2} offen offset:{i*1024} lds")
    def w1_touch_addr():
        g(f"""
        s_mov_b32 s{STC}, s16
        s_mov_b32 s{STC+1}, s17
        s_mov_b32 s{STC+2}, {512*3584}
        s_lshl_b32 s{sT4}, s{sJ}, 2
        v_lshrrev_b32 v16, 4, v{vL}
        v_add_u32 v16, s{sT4}, v16
        v_mul_u32_u24 v16, 3584, v16
        v_and_b32 v17, 15, v{vL}
        v_min_u32 v17, 13, v17
        v_lshl_add_u32 v16, v17, 7, v16
        s_mul_i32 s{sT4}, s{sCH}, 1792
        """)
    def wq_touch_addr():
        g(f"""
        s_mov_b32 s{STC}, s6
        s_mov_b32 s{STC+1}, s7
        s_mov_b32 s{STC+2}, 0x80000
        v_bfe_u32 v16, v{vL}, 2, 3
        s_lshl_b32 s{sT4}, s{sJ}, 3
        v_add_u32 v16, s{sT4}, v16
        v_lshlrev_b32 v16, 10, v16
        v_and_b32 v17, 3, v{vL}
        v_lshl_add_u32 v16, v17, 7, v16
        s_lshl_b32 s{sT4}, s{sCH}, 9
        """)
    touch = f"buffer_load_dword v{vJ}, v16, {srd(STC)}, s{sT4} offen"
    lb, lj = g.label("X"), g.label("X")
    g(f"s_cmp_ge_u32 s{sWV}, 2\ns_cbranch_scc1 {lb}")
    xloads(); kvdma()
    g(f"s_barrier\ns_branch {lj}\n{lb}:\ns_barrier")
    xloads(); kvdma()
    g(f"{lj}:")
    if opt.TSH: g.ts(11, opt.TSA)
    g(f"s_load_dword s{sTAG}, s[24:25], {WS_EPOCH}")
    NB2 = 0
    g(f"""
    s_cmp_eq_u32 s{sG}, 1
    s_cselect_b32 s{SG_}, s6, s16
    s_cselect_b32 s{SG_+1}, s7, s17
    """)
    NTV = [3, 2, 2, 2]
    NDMA = [3, 2, 4, 0]
    def g1_dma(var, chunk):
        slot = chunk % NSLOT
        if var == 3: return
        for jj in range(NTV[var]):
            g(f"s_add_u32 m0, s{sLB}, {slot*SLOT + jj*(2048-64)}")
            g("s_nop 0")
            g.vmop(f"buffer_load_dwordx4 v{vW}, {srd(SG_)}, s{sK} offen offset:{64*jj} lds", ("w", chunk))
        if var == 2:
            g(f"s_add_u32 s{sT0}, s{sK}, {16*3584}")
            for jj in range(2):
                g(f"s_add_u32 m0, s{sLB}, {slot*SLOT + jj*(2048-64) + 1024}")
                g("s_nop 0")
                g.vmop(f"buffer_load_dwordx4 v{vW}, {srd(SG_)}, s{sT0} offen offset:{64*jj} lds", ("w", chunk))
        g(f"s_add_u32 s{sK}, s{sK}, s{sP32}\ns_sub_u32 s{sT0}, s{sK}, s{SG_+2}\ns_cselect_b32 s{sK}, s{sK}, s{sT0}")
    def dma_block(chunks, vars_=(0, 1, 2)):
        lj = g.label("J")
        for var in vars_:
            nxt = g.label("V")
            g(f"s_cmp_lg_u32 s{sVAR}, {var}\ns_cbranch_scc1 {nxt}")
            for c in chunks: g1_dma(var, c)
            if var != vars_[-1]: g(f"s_branch {lj}")
            g(f"{nxt}:")
        g(f"{lj}:")
    def waitv(cnt):
        done = g.label("WD")
        groups = {}
        for v, c in enumerate(cnt): groups.setdefault(c, []).append(v)
        if len(groups) == 1: g(f"s_waitcnt vmcnt({cnt[0]})"); return
        for var in range(3):
            nxt = g.label("WV")
            g(f"s_cmp_lg_u32 s{sVAR}, {var}\ns_cbranch_scc1 {nxt}\ns_waitcnt vmcnt({cnt[var]})\ns_branch {done}\n{nxt}:")
        g(f"s_waitcnt vmcnt({cnt[3]})\n{done}:")
    def wait01(a, b):
        l1, l2 = g.label("W"), g.label("W")
        g(f"s_cmp_lg_u32 s{sVAR}, 0\ns_cbranch_scc1 {l1}\ns_waitcnt vmcnt({a})\ns_branch {l2}\n{l1}:\ns_waitcnt vmcnt({b})\n{l2}:")
    g(f"""
    s_mov_b32 s{SWS}, s24
    s_mov_b32 s{SWS+1}, s25
    s_mov_b32 s{SWS+2}, {WS_SIZE}
    s_mov_b32 s{SWS+3}, 0x20000
    s_mov_b32 s{SW2}, s18
    s_mov_b32 s{SW2+1}, s19
    s_mov_b32 s{SW2+2}, {1792*1024}
    s_mov_b32 s{SW2+3}, 0x20000
    s_mov_b32 s{SWO}, s12
    s_mov_b32 s{SWO+1}, s13
    s_mov_b32 s{SWO+2}, 0x80000
    s_mov_b32 s{SWO+3}, 0x20000
    s_mov_b32 s{sONE2}, 0x3f803f80
    s_mov_b32 s{sLO}, 0x00003f80
    s_mov_b32 s{sHI}, 0x3f800000
    s_mov_b32 s{sVM}, 0x0000ffff
    s_mov_b32 s{sVM+1}, 0x0000ffff
    s_lshl_b32 s{sKVL}, s{sWV}, 10
    s_add_u32 s{sKVS}, s{sKVL}, {WS_KV}
    s_add_u32 s{sKVL}, s{sKVL}, {KVR}
    """)
    a0, a1, vM, vD, E = 12, 13, 14, 15, 16
    Q2 = 24
    WK = 96
    g(f"v_mov_b32 v{a0}, 0\nv_mov_b32 v{a1}, 0")
    for r in range(4): g(f"v_mov_b32 v{Q2+r}, 0")
    g("@@SETUP@@")
    if opt.TSH: g.ts(12, opt.TSA)
    g("s_waitcnt vmcnt(8)")
    g.ts(1)
    for j in range(16): g(f"v_dot2_f32_bf16 v{a0+(j&1)}, v{XR+j}, s{sONE2}, v{a0+(j&1)}")
    g("s_waitcnt vmcnt(4)")
    g.ts(2)
    for j in range(16, 32): g(f"v_dot2_f32_bf16 v{a0+(j&1)}, v{XR+j}, s{sONE2}, v{a0+(j&1)}")
    def dpp_reduce(v):
        for m in ("quad_perm:[1,0,3,2]", "quad_perm:[2,3,0,1]", "row_half_mirror"):
            g(f"s_nop 1\nv_add_f32_dpp v{v}, v{v}, v{v} {m} row_mask:0xf bank_mask:0xf")
    g(f"s_nop 2\nv_add_f32 v{a0}, v{a0}, v{a1}")
    dpp_reduce(a0)
    g(f"""
    v_mul_f32 v{a0}, 0x3b000000, v{a0}
    v_cvt_pk_bf16_f32 v{vM}, v{a0}, v{a0}
    v_and_b32 v{vM}, 0xffff0000, v{vM}
    v_sub_f32 v{vD}, v{a0}, v{vM}
    v_xor_b32 v{vM}, 0x80000000, v{vM}
    """)
    g("s_waitcnt vmcnt(0)")
    for s in range(4):
        for q in range(2):
            g(f"ds_read_b64_tr_b16 {vr(WK+4*s+2*q,2)}, v{vKA} offset:{s*1024+q*128}")
    def issue_at(pos):
        cb = [c for c in range(NSLOT) if opt.DMA_AFTER[c] == pos]
        ca = [c for c in range(NSLOT) if opt.DMA_AFTER0[c] == pos]
        if cb == ca and cb: dma_block(cb)
        else:
            if cb: dma_block(cb, (1, 2))
            if ca: dma_block(ca, (0,))
    issue_at(-1)
    for i in range(8):
        for jj in range(4):
            j = XR + 4*i + jj
            g(f"v_dot2_f32_bf16 v{E+2*jj}, v{j}, s{sLO}, v{vM}\nv_dot2_f32_bf16 v{E+2*jj+1}, v{j}, s{sHI}, v{vM}")
        for jj in range(4):
            j = XR + 4*i + jj
            acc = Q2 + 2*(jj & 1)
            g(f"v_pk_fma_f32 {vr(acc,2)}, {vr(E+2*jj,2)}, {vr(E+2*jj,2)}, {vr(acc,2)}\nv_cvt_pk_bf16_f32 v{j}, v{E+2*jj}, v{E+2*jj+1}")
        g(f"ds_write_b128 v{vXW}, {vr(XR+4*i,4)} offset:{XN + i*128}")
        issue_at(i)
    g(f"""
    s_mov_b32 s{SOUT}, s20
    s_mov_b32 s{SOUT+1}, s21
    s_mov_b32 s{SOUT+2}, 0x200000
    s_mov_b32 s{SOUT+3}, 0x20000
    s_mov_b32 s{sFB}, 0
    """)
    vR = 13
    g(f"""
    v_pk_add_f32 {vr(Q2,2)}, {vr(Q2,2)}, {vr(Q2+2,2)}
    v_add_f32 v{a0}, v{Q2}, v{Q2+1}
    """)
    dpp_reduce(a0)
    skip = g.label("R4")
    g(f"""
    v_mul_f32 v{a0}, 0x3b000000, v{a0}
    v_fma_f32 v{a0}, -v{vD}, v{vD}, v{a0}
    v_max_f32 v{a0}, 0, v{a0}
    v_cvt_pk_bf16_f32 v{a0}, v{a0}, v{a0}
    v_and_b32 v{a0}, 0xffff0000, v{a0}
    v_add_f32 v{a0}, 0x3727c5ac, v{a0}
    v_cvt_pk_bf16_f32 v{a0}, v{a0}, v{a0}
    v_and_b32 v{a0}, 0xffff0000, v{a0}
    v_sqrt_f32 v{a0}, v{a0}
    v_lshlrev_b32 v{E}, 2, v{vROW}
    v_cvt_pk_bf16_f32 v{a0}, v{a0}, v{a0}
    v_and_b32 v{a0}, 0xffff0000, v{a0}
    v_rcp_f32 v{vR}, v{a0}
    v_add_u32 v{E}, {RARR}, v{E}
    ds_write_b32 v{E}, v{vR}
    s_cmp_lg_u32 s{sRB}, s{sHG}
    s_cbranch_scc1 {skip}
    v_lshrrev_b32 v{E}, 3, v{vL}
    v_lshlrev_b32 v{E}, 4, v{E}
    v_and_b32 v{E+1}, 3, v{vL}
    v_lshl_add_u32 v{E}, v{E+1}, 2, v{E}
    v_add_u32 v{E}, {R4}, v{E}
    ds_write_b32 v{E}, v{vR}
    {skip}:
    """)
    g.ts(3)
    issue_at(8)
    vKG, vKA2, vVA, vIDX, vW2, vG0, vG1, vG2, vT3, vQA, vXO, vRB = range(132, 144)
    vQ, vK, vK1, vQC, vV0, vV1, vO, vC, vS = 16, 20, 24, 32, 36, [40, 44], 48, 64, [80, 96]
    HB = 144
    def att_setup():
        g(f"""
        s_lshr_b32 s{sKQ}, s{sWV}, 1
        v_bfe_u32 v28, v{vL}, 3, 2
        v_lshlrev_b32 v{vKG}, 9, v28
        v_lshrrev_b32 v28, 1, v28
        v_lshrrev_b32 v31, 5, v{vL}
        v_xor_b32 v28, v28, v31
        v_lshl_add_u32 v{vKG}, v28, 7, v{vKG}
        v_and_b32 v28, 7, v{vL}
        v_lshl_add_u32 v{vKG}, v28, 4, v{vKG}
        v_add_u32 v{vKA2}, {KVR}, v{vKG}
        v_lshlrev_b32 v{vVA}, 9, v31
        v_and_b32 v28, 15, v{vL}
        v_lshl_add_u32 v{vVA}, v28, 4, v{vVA}
        v_add_u32 v{vVA}, {KVR + 256}, v{vVA}
        v_mov_b32 v{vIDX}, 0xdddddddd
        v_lshrrev_b32 v28, 2, v{vL}
        v_lshlrev_b32 v28, 10, v28
        v_and_b32 v30, 3, v{vL}
        v_lshl_add_u32 v{vT3}, v30, 7, v28
        v_lshl_add_u32 v28, v30, 4, v28
        s_lshl_b32 s{sT0}, s{sHG}, 7
        s_lshl_b32 s{sT1}, s{sTH}, 6
        s_add_u32 s{sT0}, s{sT0}, s{sT1}
        v_add_u32 v{vW2}, s{sT0}, v28
        v_lshl_add_u32 v{vG0}, v31, 8, v{vTR}
        s_lshl_b32 s{sT0}, s{sKQ}, 11
        v_add_u32 v{vG0}, s{sT0}, v{vG0}
        v_add_u32 v{vG1}, 0x10000, v{vG0}
        v_add_u32 v{vG2}, 130048, v{vG0}
        s_lshl_b32 s{sW2B}, s{sTH}, 10
        s_add_u32 s{sW2B}, s{sW2B}, s{sT0}
        s_lshl_b32 s{sT0}, s{sTB}, 1
        s_add_u32 s{sT0}, s{sT0}, s{sTH}
        s_mul_i32 s{sHB}, s{sT0}, 112
        s_mul_i32 s{sT1}, s{sKQ}, 28
        s_add_u32 s{sHB}, s{sHB}, s{sT1}
        s_lshl_b32 s{sHB}, s{sHB}, 10
        s_add_u32 s{sHB}, s{sHB}, {WS_H}
        s_lshl_b32 s{sXO}, s{sT0}, 15
        s_add_u32 s{sOB}, s{sXO}, {WS_O}
        s_lshl_b32 s{sT1}, s{sHG}, 7
        s_add_u32 s{sXO}, s{sXO}, s{sT1}
        s_lshl_b32 s{sT1}, s{sKQ}, 5
        s_add_u32 s{sXO}, s{sXO}, s{sT1}
        s_mul_i32 s{sW2S}, s{sKQ}, {28*16384}
        s_lshl_b32 s{sT0}, s{sWV}, 10
        s_add_u32 s{sT0}, s{sT0}, {QX}
        v_add_u32 v{vQA}, s{sT0}, v{vL16}
        v_and_b32 v28, 31, v{vL}
        v_lshlrev_b32 v28, 10, v28
        v_lshl_add_u32 v{vXO}, v31, 4, v28
        s_lshl_b32 s{sT0}, s{sTH}, 11
        v_add_u32 v{vRB}, s{sT0}, v{vL16}
        """)
    SETUP_MARK = "@@SETUP@@"
    vRT = 12
    g(f"""
    v_and_b32 v16, 31, v{vL}
    s_lshl_b32 s{sT0}, s{sTH}, 5
    v_add_u32 v16, s{sT0}, v16
    v_lshlrev_b32 v16, 2, v16
    v_add_u32 v16, {RARR}, v16
    s_and_b32 s{sT0}, s{sWV}, 3
    s_lshl_b32 s{sT0}, s{sT0}, 10
    s_add_u32 s{sT0}, s{sT0}, {PART}
    v_and_b32 v15, 15, v{vL}
    v_lshlrev_b32 v15, 5, v15
    v_add_u32 v15, s{sT0}, v15
    v_lshrrev_b32 v14, 4, v{vL}
    v_lshl_add_u32 v17, v14, 4, v15
    v_and_b32 v18, 1, v14
    v_lshl_add_u32 v15, v18, 8, v15
    v_lshrrev_b32 v14, 1, v14
    v_lshl_add_u32 v15, v14, 4, v15
    """)
    ACC = 144
    FR = [64, 96]
    KB, KD = 112, 128
    def g1_reads(var, chunk, ks):
        slot = chunk % NSLOT
        base = FR[chunk & 1] + 16*ks
        out = [f"ds_read_b128 {vr(base,4)}, v{vB} offset:{XN + (2*chunk+ks)*32}"]
        va, so = (vA, slot*SLOT) if slot < 3 else (vA2, (slot-3)*SLOT)
        for jj in range(NTV[var]):
            for q in range(2):
                out.append(f"ds_read_b64_tr_b16 {vr(base+4+4*jj+2*q,2)}, v{va} offset:{so + jj*2048 + ks*1024 + q*256}")
        return out
    def flag_store(base):
        g(f"""
        s_lshl_b32 s{sT0}, s{sTB}, 3
        s_add_u32 s{sT0}, s{sT0}, s{sHG}
        s_lshl_b32 s{sT0}, s{sT0}, 4
        s_add_u32 s{sT0}, s{sT0}, {base}
        v_mov_b32 v28, 0
        v_mov_b32 v31, s{sTAG}
        s_mov_b64 exec, 1
        buffer_store_dword v31, v28, {srd(SWS)}, s{sT0} offen sc1
        s_mov_b64 exec, -1
        """)
    def check_or_spin(loads, regs):
        done, lab = g.label("PD"), g.label("PL")
        g(f"s_mov_b32 s{sCNT}, 0\n{lab}:")
        for r in regs: g(f"v_xor_b32 v{r}, s{sTAG}, v{r}")
        for r in regs[1:]: g(f"v_or_b32 v{regs[0]}, v{regs[0]}, v{r}")
        g(f"""
        v_cmp_ne_u32 vcc, 0, v{regs[0]}
        s_nop 4
        s_cbranch_vccz {done}
        s_add_u32 s{sCNT}, s{sCNT}, 1
        s_cmp_gt_u32 s{sCNT}, {opt.SPIN}
        s_cbranch_scc1 {done}
        s_sleep 8
        """)
        for s in loads: g(s)
        g(f"s_waitcnt vmcnt(0)\ns_branch {lab}\n{done}:")
    def kv_dma(c):
        g(f"s_add_u32 m0, s{sKVL}, {(c%4)*8192}\ns_add_u32 s{sT0}, s{sKVS}, {c*8192}")
        g.vmop(f"buffer_load_dwordx4 v{vL16}, {srd(SWS)}, s{sT0} offen sc1 lds", ("kv", c))
    G1END = g.label("G1END")
    kvpoll = [f"buffer_load_dword v{16+k}, v{vL16}, {srd(SWS)}, s{sT1} offen offset:{k*1024} sc1" for k in range(4)]
    def kv_mini(role, mid):
        for s in range(4):
            g(mfma16(KD, WK+4*s, KB+4*s, KD if s else "0") if role == 0 else mfma16(KD, KB+4*s, WK+4*s, KD if s else "0"))
        for s in mid: g(s)
        pad = max(0, 8 - len(mid) - 2)
        if pad: g(f"s_nop {pad-1}")
        if role == 0:
            g(f"s_mov_b32 exec_lo, 0x00ff00ff\ns_mov_b32 exec_hi, 0x00ff00ff\nds_write_b128 v15, {vr(KD,4)}")
        else:
            g(f"s_mov_b32 exec_hi, 0\ns_nop 0\nds_write_b128 v17, {vr(KD,4)} offset:512")
        g("s_mov_b64 exec, -1")
    for var in range(4):
        nxt = g.label("G1V")
        if var < 3: g(f"s_cmp_lg_u32 s{sVAR}, {var}\ns_cbranch_scc1 {nxt}")
        g.vmreset()
        for c in range(NSLOT):
            for _ in range(NDMA[var]): g.vm.append(("w", c))
        NT = NTV[var]
        if NDMA[var]: g.vmwait(("w", 1), "lgkmcnt(0)")
        else: g("s_waitcnt lgkmcnt(0)")
        g(f"s_add_u32 s{sTAG}, s{sTAG}, 1\ns_barrier")
        g.ts(4)
        for s in range(4): g(f"ds_read_b128 {vr(KB+4*s,4)}, v{vKB} offset:{XN + s*64}")
        r0 = g1_reads(var, 0, 0); r1 = g1_reads(var, 0, 1)
        for s in r0: g(s)
        g(f"s_waitcnt lgkmcnt({len(r0)})")
        mid = r1 + [f"ds_read_b32 v{vRT}, v16", f"ds_read_b32 v{vRT+1}, v16"]
        if var == 1:
            lv, lj = g.label("KVV"), g.label("KVJ")
            g(f"s_cmp_ge_u32 s{sWV}, 4\ns_cbranch_scc1 {lv}")
            kv_mini(0, mid)
            g(f"s_branch {lj}\n{lv}:")
            kv_mini(1, mid)
            g(f"{lj}:")
        else:
            kv_mini(0 if var == 0 else 1, mid)
        for j in range(16):
            if j == 0:
                g("s_waitcnt lgkmcnt(1)")
                g.ts(5)
            else:
                if j + 1 < 16 and NDMA[var]: g.vmwait(("w", j + 1), "lgkmcnt(0)")
                else: g("s_waitcnt lgkmcnt(0)")
                if var == 3 and j == opt.KVFLAG_AT:
                    g("s_waitcnt vmcnt(0)")
                    flag_store(WS_FKV)
                if var == 3 and j == opt.KVCHECK_AT:
                    g("s_waitcnt vmcnt(0)")
                    check_or_spin(kvpoll, [16, 17, 18, 19])
                g("s_barrier")
                if opt.TSG and j < 15: g.ts(j, True)
            if var == 3 and j == 1:
                S0 = 16
                g(f"v_add_u32 v14, {PART}, v{vL16}")
                for k in range(4): g(f"ds_read_b128 {vr(S0+4*k,4)}, v14 offset:{k*1024}")
                g(f"""
                v_bfe_u32 v14, v{vL}, 1, 3
                v_lshlrev_b32 v14, 4, v14
                v_add_u32 v14, {R4}, v14
                v_and_b32 v15, 1, v{vL}
                v_lshlrev_b32 v15, 4, v15
                s_lshl_b32 s{sT0}, s{sHG}, 5
                s_add_u32 s{sT0}, s{sT0}, {RARR}
                v_add_u32 v15, s{sT0}, v15
                v_cmp_gt_u32 vcc, 32, v{vL}
                s_lshr_b32 s{sT0}, s{sHG}, 1
                s_and_b32 s{sT0}, s{sT0}, 1
                v_cndmask_b32 v14, v15, v14, vcc
                ds_read_b128 {vr(32,4)}, v14
                s_lshl_b32 s{sT0}, s{sT0}, 7
                v_mov_b32 v14, s{sT0}
                v_lshlrev_b32 v15, 3, v{vL}
                v_cndmask_b32 v14, 0, v14, vcc
                v_xor_b32 v14, v14, v15
                s_lshl_b32 s{sT0}, s{sTB}, 3
                s_add_u32 s{sT0}, s{sT0}, s{sHG}
                s_lshl_b32 s{sT0}, s{sT0}, 9
                s_add_u32 s{sT0}, s{sT0}, {WS_KV}
                s_waitcnt lgkmcnt(0)
                """)
                for k in range(4): g(f"v_add_f32 v{S0+k}, v{S0+k}, v{S0+4+k}\nv_add_f32 v{S0+8+k}, v{S0+8+k}, v{S0+12+k}")
                for k in range(4): g(f"v_add_f32 v{S0+k}, v{S0+k}, v{S0+8+k}")
                for k in range(4): g(f"v_mul_f32 v{S0+k}, v{S0+k}, v{32+k}")
                g(f"""
                v_cvt_pk_bf16_f32 v{S0}, v{S0}, v{S0+1}
                v_cvt_pk_bf16_f32 v{S0+1}, v{S0+2}, v{S0+3}
                buffer_store_dwordx2 {vr(S0,2)}, v14, {srd(SWS)}, s{sT0} offen sc1
                """)
            if var == 3 and j == opt.KVPOLL_AT:
                g(f"s_mov_b32 s{sT1}, {WS_FKV}")
                for s in kvpoll: g(s)
            cur = FR[j & 1]
            rd = g1_reads(var, j+1, 0) + g1_reads(var, j+1, 1) if j + 1 < 16 else []
            n = 0
            tot = 2*NT
            keep = g.l; g.l = []
            if j == 1: g1_dma(var, 5)
            if j >= 1 and j + NSLOT < 16: g1_dma(var, j + NSLOT)
            if 0 <= j - opt.KVCHECK_AT < 3: kv_dma(j - opt.KVCHECK_AT)
            dm = g.l; g.l = keep
            groups = []; curg = []
            for x in dm:
                curg.append(x)
                if "buffer_load" in x: groups.append(curg); curg = []
            if curg: groups[-1] = groups[-1] + curg
            for ks in range(2):
                b = cur + 16*ks
                for jj in range(NT):
                    g(mfma(ACC+16*jj, b+4+4*jj, b, ACC+16*jj if (j or ks) else "0"))
                    if n < tot - 1:
                        for s in rd[n*len(rd)//(tot-1):(n+1)*len(rd)//(tot-1)]: g(s)
                    for gr in groups[n*len(groups)//tot:(n+1)*len(groups)//tot]: g.l += gr
                    if n == tot - 1:
                        if j == 3:
                            for r in range(vV0, vV0+6): g(f"v_mov_b32 v{r}, s{sONE2}")
                        if j == 4:
                            for r in range(vV0+6, vV0+12): g(f"v_mov_b32 v{r}, s{sONE2}")
                        if 5 <= j <= 8:
                            for r in range(4): g(f"v_mov_b32 v{vO+4*(j-5)+r}, 0")
                    n += 1
        g.ts(6)
        isq = g.label("G1Q")
        def scale_cvt(jj, rreg):
            a = ACC + 16*jj
            for k in range(8): g(f"v_pk_mul_f32 {vr(a+2*k,2)}, {vr(a+2*k,2)}, {vr(rreg,2)}")
            for k in range(8): g(f"v_cvt_pk_bf16_f32 v{a+k}, v{a+2*k}, v{a+2*k+1}")
        if var == 1:
            g(f"s_cmp_eq_u32 s{sG}, 1\ns_cbranch_scc1 {isq}")
        g(f"""
        s_lshl_b32 s{sT0}, s{sTB}, 1
        s_add_u32 s{sT0}, s{sT0}, s{sTH}
        s_mul_i32 s{sT0}, s{sT0}, 112
        s_mul_i32 s{sT1}, s{sHG}, 14
        s_add_u32 s{sT0}, s{sT0}, s{sT1}
        s_add_u32 s{sT0}, s{sT0}, {[0,6,10,10][var]}
        s_lshl_b32 s{sT0}, s{sT0}, 10
        s_add_u32 s{sT0}, s{sT0}, {WS_H}
        s_nop 3
        """)
        vmsave = (list(g.vm), g.done)
        for jj in range(NT):
            scale_cvt(jj, vRT)
            a = ACC + 16*jj
            for k in range(8): g(f"v_pk_max_i16 v{a+k}, v{a+k}, 0")
            if jj == 2: g(f"s_add_u32 s{sT0}, s{sT0}, 4096")
            for u in range(2):
                g.vmop(f"buffer_store_dwordx4 {vr(a+4*u,4)}, v{vL16}, {srd(SWS)}, s{sT0} offen offset:{((jj%2)*2+u)*1024} sc1", "hst")
        g.vmwait(("kv", 1))
        g(f"s_branch {G1END}")
        if var == 1:
            g.vm, g.done = vmsave
            g(f"{isq}:")
            cb = fb(0.25 * 1.4426950408889634)
            g(f"""
            v_mul_f32 v14, {cb:#x}, v{vRT}
            v_mul_f32 v15, {cb:#x}, v{vRT}
            s_lshl_b32 s{sT0}, s{sTH}, 10
            s_add_u32 s{sT0}, s{sT0}, {QX}
            v_add_u32 v16, s{sT0}, v{vL16}
            s_nop 6
            """)
            for jj in range(2):
                scale_cvt(jj, 14)
                for u in range(2):
                    g(f"ds_write_b128 v16, {vr(ACC+16*jj+4*u,4)} offset:{(2*jj+u)*2048}")
            g.vmwait(("kv", 1))
            g(f"s_branch {G1END}")
        if var < 3: g(f"{nxt}:")
    g(f"{G1END}:")
    g.ts(7)
    def w2_dma(step, slot):
        g(f"s_add_u32 m0, s{sW2B}, {T2[slot]}")
        if step < 28:
            g(f"s_add_u32 s{sT0}, s{sW2S}, {step*16384}")
            S = SW2
        else:
            g(f"s_lshl_b32 s{sT0}, s{sKQ}, 17\ns_add_u32 s{sT0}, s{sT0}, {(step-28)*16384}")
            S = SWO
        g.vmop(f"buffer_load_dwordx4 v{vW2}, {srd(S)}, s{sT0} offen lds", ("w2", step))
    g("s_waitcnt lgkmcnt(0)\ns_barrier")
    g.ts(8)
    def kread(t, dst): return f"ds_read_b128 {vr(dst,4)}, v{vKA2} offset:{((t//4)%4)*8192 + (t%4)*2048}"
    def vread(t, u, dst): return f"ds_read_b128 {vr(dst,4)}, v{vVA} offset:{((t//4)%4)*8192 + (t%4)*2048 + u*1024}"
    def v01(t):
        g(f"s_mov_b64 exec, s[{sVM}:{sVM+1}]"); g(vread(t, 0, vV0)); g(vread(t, 1, vV1[t & 1])); g("s_mov_b64 exec, -1")
    g(f"ds_read_b128 {vr(vQ,4)}, v{vQA}")
    g(kread(0, vK)); g(kread(1, vK1))
    v01(0)
    g("s_waitcnt lgkmcnt(2)")
    g(mfma(vS[0], vK, vQ, "0")); g(mfma(vS[1], vK1, vQ, "0"))
    for k in range(4): g(f"v_mov_b32 v{vQC+k}, v{vQ+k}")
    g("s_nop 6")
    vMX = 28
    def maxtree(first):
        regs = list(range(vS[0], vS[0]+32))
        if first: g(f"v_max3_f32 v{vMX}, v{regs[0]}, v{regs[1]}, v{regs[2]}\nv_max_f32 v{vMX}, v{vMX}, v{regs[3]}"); regs = regs[4:]
        for k in range(0, len(regs), 2): g(f"v_max3_f32 v{vMX}, v{vMX}, v{regs[k]}, v{regs[k+1]}")
    maxtree(True)
    def finish_m(bias):
        g(f"""
        v_mov_b32 v31, v{vMX}
        s_nop 1
        v_permlane32_swap_b32 v31, v{vMX}
        s_nop 1
        v_max_f32 v{vMX}, v{vMX}, v31
        v_add_f32 v{vMX}, {fb(bias):#x}, v{vMX}
        v_xor_b32 v{vC}, 0x80000000, v{vMX}
        """)
        for r in range(1, 16): g(f"v_mov_b32 v{vC+r}, v{vC}")
    finish_m(opt.BIAS)
    ATT = g.label("ATT")
    g(f"{ATT}:")
    g.vmreset(); g.vm.append(("kv", 2))
    g("s_nop 1")
    g(mfma(vS[0], vK, vQ, vC))
    g(kread(1, vK))
    g("s_nop 7\ns_nop 2")
    side = {}
    t0 = 4*opt.HFLAG_C + 1
    free = [t for t in range(t0, 64) if t % 4 != 0 or t >= 52]
    if opt.TOUCH3: side[free.pop(0)] = ("touch",)
    free.remove(opt.HPOLL_T); side[opt.HPOLL_T] = ("hpoll",)
    hcheck = opt.HPOLL_T + 3
    early = [t for t in free if t < hcheck]; late = [t for t in free if t >= hcheck]
    jobs_w = [("w2", i) for i in range(NRES)]
    for t in early:
        if jobs_w: side[t] = jobs_w.pop(0)
    jobs = [("h", i) for i in range(28)]
    allj = []
    while jobs or jobs_w:
        for _ in range(2):
            if jobs: allj.append(jobs.pop(0))
        if jobs_w: allj.append(jobs_w.pop(0))
    assert len(allj) <= len(late), (len(allj), len(late))
    for t, jb in zip(late, allj): side[t] = jb
    hpoll = [f"buffer_load_dword v29, v30, {srd(SWS)}, s{sT1} offen sc1"]
    def pair_flag_addr(base):
        g(f"""
        s_lshl_b32 s{sT1}, s{sTB}, 3
        s_lshl_b32 s{sT0}, s{sKQ}, 1
        s_add_u32 s{sT1}, s{sT1}, s{sT0}
        s_lshl_b32 s{sT1}, s{sT1}, 4
        s_add_u32 s{sT1}, s{sT1}, {base}
        v_and_b32 v30, 16, v{vL16}
        """)
    AC2 = 64
    AF = [112, 120, 96]
    OB = [HB + 4*i for i in range(8)]
    slot_of = {i: i for i in range(NRES)}
    def lds_base(off):
        return (0, off) if off < 0x10000 else ((1, off - 0x10000) if off < 130048 else (2, off - 130048))
    def a_reads(step):
        b, o = lds_base(T2[slot_of[step]])
        return [f"ds_read_b64_tr_b16 {vr(AF[step%3]+4*n+2*q,2)}, v{vG0+b} offset:{o + n*1024 + q*512}" for n in range(2) for q in range(2)]
    for t in range(64):
        c = t // 4
        S = vS[t & 1]; Sn = vS[(t+1) & 1]
        ex = lambda k: f"v_exp_f32 v{S+k}, v{S+k}"
        def sidejob():
            if t == hcheck and not opt.X_NOSIDE:
                g.vmwait("hpoll")
                check_or_spin(hpoll, [29])
            if t % 4 == 0 and c + 3 < 16:
                if opt.X_NOKV: g.vm.append(("kv", c+3))
                else: kv_dma(c + 3)
            jb = side.get(t)
            if jb is not None and (opt.X_NOSIDE or jb[0] == opt.X_SKIP):
                g.vm.append(jb if len(jb) > 1 else jb[0])
            elif jb is not None:
                if jb[0] == "w2": w2_dma(jb[1], jb[1])
                elif jb[0] == "h":
                    i = jb[1]
                    if i % 4 == 0: g(f"s_add_u32 s{sT2}, s{sHB}, {i*1024}")
                    g.vmop(f"buffer_load_dwordx4 {vr(HB+4*i,4)}, v{vL16}, {srd(SWS)}, s{sT2} offen offset:{(i%4)*1024} sc1", ("h", i))
                elif jb[0] == "hpoll":
                    pair_flag_addr(WS_FH)
                    g.vmop(hpoll[0], "hpoll")
                elif jb[0] == "touch":
                    a, b = g.label("T3"), g.label("T3")
                    g(f"""
                    s_lshr_b32 s{sT0}, s{sHG}, 2
                    s_lshl_b32 s{sT0}, s{sT0}, 9
                    s_cmp_eq_u32 s{sWV}, 7
                    s_cbranch_scc1 {a}
                    s_lshl_b32 s{sT1}, s{sWV}, 5
                    s_add_u32 s{sT1}, s{sT1}, s{sJ}
                    s_lshl_b32 s{sT1}, s{sT1}, 13
                    s_add_u32 s{sT0}, s{sT0}, s{sT1}
                    s_mov_b32 exec_hi, 0
                    buffer_load_dword v{vJ}, v{vT3}, {srd(SW2)}, s{sT0} offen
                    s_mov_b64 exec, -1
                    s_branch {b}
                    {a}:
                    s_lshl_b32 s{sT1}, s{sJ}, 14
                    s_add_u32 s{sT0}, s{sT0}, s{sT1}
                    buffer_load_dword v{vJ}, v{vT3}, {srd(SWO)}, s{sT0} offen
                    {b}:
                    """)
                    g.vm.append("touch")
        for k in range(0, 4): g(ex(k))
        if t > 0: g(smf(vO, vV1[(t-1) & 1], vS[(t-1) & 1] + 8, vIDX))
        if t % 4 == 0 and t > 0:
            if c == opt.HFLAG_C: g.vmall()
            elif c + 1 < 16: g.vmwait(("kv", c+1))
            else: g.vmwait(("w2", 7))
            if not opt.X_NOBAR: g("s_barrier")
            if c < 15 and not opt.TSG: g.ts(c, True)
            if c == opt.HFLAG_C:
                sk = g.label("HF")
                g(f"s_cmp_lg_u32 s{sWV}, 0\ns_cbranch_scc1 {sk}")
                flag_store(WS_FH)
                g(f"{sk}:")
        if opt.PRIO: g(f"s_setprio {3 - t % 4}")
        g("s_waitcnt lgkmcnt(0)")
        if opt.SIDEPOS == 1: sidejob()
        for k in range(4, 8): g(ex(k))
        if t + 1 < 64: g(mfma(Sn, vK, vQ, vC))
        if t + 2 < 64: g(kread(t+2, vK))
        if opt.SIDEPOS == 0: sidejob()
        for k in range(8, 12): g(ex(k))
        g(smf(vO, vV0, S, vIDX))
        if t + 1 < 64: v01(t+1)
        else:
            for s in a_reads(0) + a_reads(1): g(s)
        if opt.SIDEPOS == 2: sidejob()
        for k in range(12, 16): g(ex(k))
    XRES = 24
    g.vmop(f"buffer_load_dwordx4 {vr(XRES,4)}, v{vXO}, {srd(SX)}, s{sXO} offen", "xres")
    g("s_nop 0")
    g(smf(vO, vV1[1], vS[1] + 8, vIDX))
    g.ts(9)
    FBK = g.label("FBK")
    stages = [list(range(6*s, 6*s+6)) for s in range(6)]
    nxt_load = NRES
    freeslots = []
    for si, st in enumerate(stages):
        extra = 0
        if si > 0:
            need = min(35, st[-1] + 2)
            if si == 1: g.vmall()
            else: g.vmwait(("w2", need))
            g("s_barrier")
            freeslots += [slot_of[x] for x in stages[si-1]]
            if si == 1:
                if not opt.TSH: g.ts(10)
                freeslots = [NRES + k for k in range(4)] + freeslots
                g(f"v_mov_b32 v30, {VOTE}\nds_read_b128 {vr(16,4)}, v30\nds_read_b128 {vr(20,4)}, v30 offset:16")
                extra = 2
        for step in st:
            if step + 2 < 36:
                for s in a_reads(step + 2): g(s)
            if step == opt.OPOLL_ISSUE:
                pair_flag_addr(WS_FO)
                g.vmop(hpoll[0], "opoll")
            if step == opt.OPOLL_CHECK:
                if not opt.TSH: g.ts(11)
                g.vmwait("opoll")
                check_or_spin(hpoll, [29])
                g(f"s_lshl_b32 s{sT2}, s{sKQ}, 13\ns_add_u32 s{sT2}, s{sT2}, s{sOB}\ns_add_u32 s{sT3}, s{sT2}, 4096")
                for i in range(8):
                    g.vmop(f"buffer_load_dwordx4 {vr(OB[i],4)}, v{vL16}, {srd(SWS)}, s{sT2 + i//4} offen offset:{(i%4)*1024} sc1", ("o", i))
                if not opt.TSH: g.ts(12)
            nout = 4*min(2, 35 - step) + extra + (1 if step == 1 else 0)
            extra = 0
            if step < 28: g.vmwait(("h", step))
            else: g.vmwait(("o", step - 28))
            g(f"s_waitcnt lgkmcnt({nout})")
            b = HB + 4*step if step < 28 else OB[step - 28]
            for n in range(2):
                g(mfma(AC2 + 16*n, AF[step % 3] + 4*n, b, AC2 + 16*n if step else "0"))
                if step > 6 and freeslots and nxt_load < 36:
                    slot_of[nxt_load] = freeslots.pop(0)
                    w2_dma(nxt_load, slot_of[nxt_load]); nxt_load += 1
            if step == 0:
                g(f"""
                s_lshl_b32 s{sT2}, s{sHG}, 2
                s_add_u32 s{sT2}, s{sT2}, s{sKQ}
                s_lshl_b32 s{sT2}, s{sT2}, 10
                s_add_u32 s{sT2}, s{sT2}, s{sOB}
                s_lshl_b32 s{sT3}, s{sWV}, 2
                s_add_u32 s{sT3}, s{sT3}, {VOTE}
                v_mov_b32 v30, {fb(2.0**115):#x}
                v_mov_b32 v31, {fb(2.0**126):#x}
                """)
                g(f"v_rcp_f32 v29, v{vO+8}\nv_add_f32 v28, |v{vO}|, |v{vO+1}|")
                for k in range(2, 8): g(f"v_add_f32 v28, v28, |v{vO+k}|")
                g(f"v_cmp_lt_f32 vcc, v{vO+8}, v30\nv_cmp_lt_f32 s[{sT0}:{sT1}], v28, v31")
                for k in range(8): g(f"v_mul_f32 v{vO+k}, v{vO+k}, v29")
                for k in range(4): g(f"v_cvt_pk_bf16_f32 v{vO+k}, v{vO+2*k}, v{vO+2*k+1}")
                g.vmop(f"buffer_store_dwordx4 {vr(vO,4)}, v{vL16}, {srd(SWS)}, s{sT2} offen sc1", "ost")
                g(f"""
                s_and_b64 vcc, vcc, s[{sT0}:{sT1}]
                s_cmp_eq_u64 vcc, -1
                s_cselect_b32 s{sT0}, 0, 1
                s_cmp_lg_u32 s{sFB}, 0
                s_cselect_b32 s{sT0}, 0, s{sT0}
                v_mov_b32 v30, s{sT3}
                v_mov_b32 v31, s{sT0}
                ds_write_b32 v30, v31
                """)
            if step == 6:
                sk = g.label("OF")
                g(f"""
                s_waitcnt lgkmcnt(4)
                v_or3_b32 v16, v16, v17, v18
                v_or3_b32 v20, v20, v21, v22
                v_or3_b32 v16, v16, v19, v23
                v_or_b32 v16, v16, v20
                s_nop 0
                v_readfirstlane_b32 s{sT0}, v16
                s_nop 3
                s_cmp_lg_u32 s{sT0}, 0
                s_cbranch_scc1 {FBK}
                s_cmp_lg_u32 s{sWV}, 0
                s_cbranch_scc1 {sk}
                """)
                flag_store(WS_FO)
                g(f"{sk}:")
    assert nxt_load == 36
    g.ts(13)
    busy = {slot_of[x] for x in stages[5]}
    F = [T2[x] for x in range(len(T2)) if x not in busy][:6]
    g(f"v_add_u32 v28, 0x10000, v{vRB}\nv_add_u32 v29, 130048, v{vRB}")
    for k in range(4):
        g(f"v_lshlrev_b32 v{16+2*k}, 16, v{XRES+k}\nv_and_b32 v{17+2*k}, 0xffff0000, v{XRES+k}")
    rbase = [vRB, 28, 29]
    def blk(gq, src):
        p = gq*3 + (src - gq - 1) % 4
        b, o = lds_base(F[p // 2] + (p % 2)*4096)
        return rbase[b], o
    FIN = g.label("FIN")
    RD = 96
    for kq in range(4):
        nxt = g.label("FK")
        if kq < 3: g(f"s_cmp_lg_u32 s{sKQ}, {kq}\ns_cbranch_scc1 {nxt}")
        else: g("s_nop 1")
        for d in range(1, 4):
            gq = (kq + d) % 4
            v, o = blk(gq, kq)
            for u in range(2): g(f"ds_write_b128 v{v}, {vr(AC2+8*gq+4*u,4)} offset:{o + u*1024}")
        for e in range(8): g(f"v_mov_b32 v{120+e}, v{AC2+8*kq+e}")
        g("s_waitcnt lgkmcnt(0)\ns_barrier")
        for d in range(1, 4):
            v, o = blk(kq, (kq + d) % 4)
            for u in range(2): g(f"ds_read_b128 {vr(RD+8*(d-1)+4*u,4)}, v{v} offset:{o + u*1024}")
        if kq < 3: g(f"s_branch {FIN}\n{nxt}:")
    g(f"{FIN}:\ns_waitcnt lgkmcnt(4)")
    for e in range(8): g(f"v_add_f32 v{120+e}, v{120+e}, v{RD+e}")
    g("s_waitcnt lgkmcnt(0)")
    for e in range(8): g(f"v_add_f32 v{RD+8+e}, v{RD+8+e}, v{RD+16+e}")
    for e in range(8): g(f"v_add_f32 v{120+e}, v{120+e}, v{RD+8+e}")
    g("s_nop 1")
    for e in range(4): g(f"v_permlane32_swap_b32 v{120+e}, v{124+e}")
    g("s_nop 1")
    for e in range(8): g(f"v_add_f32 v{120+e}, v{120+e}, v{16+e}")
    for k in range(4): g(f"v_cvt_pk_bf16_f32 v{120+k}, v{120+2*k}, v{120+2*k+1}")
    g(f"buffer_store_dwordx4 {vr(120,4)}, v{vXO}, {srd(SOUT)}, s{sXO} offen")
    sk = g.label("EP")
    g(f"""
    s_or_b32 s{sT0}, s{sTB}, s{sHG}
    s_or_b32 s{sT0}, s{sT0}, s{sWV}
    s_cmp_lg_u32 s{sT0}, 0
    s_cbranch_scc1 {sk}
    v_mov_b32 v28, 0
    v_mov_b32 v29, s{sTAG}
    s_mov_b64 exec, 1
    buffer_store_dword v29, v28, {srd(SWS)}, 0 offen offset:{WS_EPOCH}
    s_mov_b64 exec, -1
    {sk}:
    """)
    if opt.TS:
        g.ts(14)
        g(f"""
        s_lshl_b32 s{sT0}, s2, 3
        s_add_u32 s{sT0}, s{sT0}, s{sWV}
        s_lshl_b32 s{sT0}, s{sT0}, 7
        s_add_u32 s{sT0}, s{sT0}, {WS_TSB}
        s_waitcnt vmcnt(0)
        """)
        g.ts(15)
        g(f"s_memrealtime s[{sT4}:{sT5}]\ns_waitcnt lgkmcnt(0)\ns_mov_b32 s{sTS+17}, s{sT4}")
        for k in range(18): g(f"v_mov_b32 v{32+k}, s{sTS+k}")
        g("v_mov_b32 v28, 0\ns_mov_b64 exec, 1")
        for k in range(5): g(f"buffer_store_dwordx4 {vr(32+4*k,4)}, v28, {srd(SWS)}, s{sT0} offen offset:{16*k}")
    g("s_endpgm")
    FL = g.label("FL")
    g(f"""
    {FBK}:
    s_mov_b32 s{sFB}, 1
    s_mov_b32 s{sT2}, {WS_KV}
    v_mov_b32 v{vMX}, 0xff800000
    s_waitcnt vmcnt(0) lgkmcnt(0)
    s_barrier
    """)
    g.vmreset()
    for c in range(3): kv_dma(c)
    for k in range(4): g(f"v_mov_b32 v{vQ+k}, v{vQC+k}")
    for r in range(16): g(f"v_mov_b32 v{vO+r}, 0")
    g(f"""
    {FL}:
    buffer_load_dwordx4 {vr(vK,4)}, v{vKG}, {srd(SWS)}, s{sT2} offen sc1
    buffer_load_dwordx4 {vr(vK1,4)}, v{vKG}, {srd(SWS)}, s{sT2} offen offset:2048 sc1
    s_waitcnt vmcnt(0)
    """)
    g(mfma(vS[0], vK, vQ, "0")); g(mfma(vS[1], vK1, vQ, "0"))
    g("s_nop 7\ns_nop 3")
    maxtree(False)
    g(f"s_add_u32 s{sT2}, s{sT2}, 4096\ns_cmp_lt_u32 s{sT2}, {WS_KV + 131072}\ns_cbranch_scc1 {FL}")
    finish_m(0.0)
    g("s_barrier")
    g(kread(0, vK)); v01(0)
    g(f"s_waitcnt lgkmcnt(0)\ns_branch {ATT}")
    g("L_END:\ns_endpgm")
    keep = g.l; g.l = []
    att_setup()
    setup = g.l; g.l = keep
    k = g.l.index("    " + SETUP_MARK)
    g.l[k:k+1] = setup
    body = g.text()
    hdr = open("parallel_sum__grouped_kv_mqa__dense_activation_relu__prompt.s.ref").read().split("; Override launch")[0]
    out = hdr + f"; @launch grid=(256,1,1) block=(512,1,1) lds={LDS_SIZE}\n"
    out += f""".amdgcn_target "amdgcn-amd-amdhsa--gfx950"
.text
.globl {NAME}
.p2align 8
.type {NAME},@function
{NAME}:
""" + body + f""".section .rodata,"a"
.p2align 6
.amdhsa_kernel {NAME}
  .amdhsa_next_free_vgpr 256
  .amdhsa_next_free_sgpr 102
  .amdhsa_accum_offset 256
  .amdhsa_group_segment_fixed_size 0
  .amdhsa_kernarg_size 88
  .amdhsa_user_sgpr_count 2
  .amdhsa_user_sgpr_kernarg_segment_ptr 1
  .amdhsa_system_sgpr_workgroup_id_x 1
.end_amdhsa_kernel
"""
    return out

if __name__ == "__main__":
    outp = sys.argv[1]
    for a in sys.argv[2:]:
        k, v = a.split("=")
        setattr(opt, k, type(getattr(opt, k))(eval(v)))
    open(outp, "w").write(build())
```

```python
import sys, struct
NAME = "parallel_sum__grouped_kv_mqa__dense_activation_relu__prompt_kernel"
fb = lambda x: struct.unpack("<I", struct.pack("<f", x))[0]

class Opt:
    TS = False
    BIAS = 88.0
    SPIN = 200000
    TOUCH = 1
    TOUCH2 = 1
    TOUCH3 = 1
    PRIO = 1
    KVFLAG_AT = 4
    KVPOLL_AT = 11
    KVCHECK_AT = 13
    ROT = 1
    DMA_AFTER = (-1, 5, 8, 8, 8)
    DMA_AFTER0 = (-1, -1, 8, 8, 8)
    TSG = False
    HFLAG_C = 2
    OPOLL_ISSUE = 15
    OPOLL_CHECK = 21
    HPOLL_T = 21
    X_NOSIDE = False
    X_NOBAR = False
    TSA = False
    X_NOKV = False
    X_SKIP = ''
    SIDEPOS = 0
    XBAR = 1
    KROT = 1
    X_DELAY = 0
    X_RDELAY = 0
    X_TWICE = 0
    DBG = 0
    X_UNTIL = 0
    X_UPOS = 8
    TSH = False
    SC1T = ''
opt = Opt()

WS_EPOCH = 0
WS_FKV = 0x1000
WS_FH  = 0x2000
WS_FO  = 0x3000
WS_TSB = 0xC00000
WS_KV  = 0x10000
WS_O   = 0x40000
WS_H   = 0x300000
WS_SIZE = 0x1000000

XN = 0; XPITCH = 1040; XN_END = 64*XPITCH
SLOT = 18432; NSLOT = 5
RING_END = XN_END + NSLOT*SLOT
PART = RING_END
RARR = PART + 4096
R4 = RARR + 256
VOTE = 162816
LDS_SIZE = 163840
KVR = XN_END + SLOT
QX = XN_END + 3*SLOT
T2 = [i*8192 for i in range(10)] + [QX + i*8192 for i in range(5)] + [KVR + i*8192 for i in range(4)]
NRES = 15
RED = 0; RPITCH = 272

sTB, sHG, sWV, sTAG, sTH, sG = 26, 27, 28, 29, 30, 31
SX, SG_, SKV, SWS, SW2, SWO, SOUT = 32, 36, 40, 44, 48, 52, 56
sVAR, sLB, sK, sP32, sKQ, sFB = 60, 61, 62, 63, 64, 65
sONE2, sLO, sHI, sJ = 66, 67, 68, 69
sVM = 70
sT0, sT1, sT2, sT3, sT4, sT5 = 72, 73, 74, 75, 76, 77
sHB, sOB, sCNT, sW2B, sKVS, sKVL = 78, 79, 80, 81, 82, 83
sRB = 3
sCH = 80
sKVO = 65
sKVO2 = 79
SXO = 44
STC = 56
sW2S, sXO = 14, 15
sTS = 84
def srd(b): return f"s[{b}:{b+3}]"
def vr(b, n): return f"v[{b}:{b+n-1}]" if n > 1 else f"v{b}"

class Gen:
    def __init__(self): self.l = []; self.nl = 0; self.vm = []; self.done = -1
    def __call__(self, s):
        for x in s.strip("\n").split("\n"):
            x = x.strip()
            if x: self.l.append(("" if x.endswith(":") else "    ") + x)
    def label(self, p="L"):
        self.nl += 1; return f"{p}_{self.nl}"
    def vmop(self, s, tag=None):
        self(s); self.vm.append(tag)
    def vmwait(self, tag, extra=""):
        idx = max(i for i, t in enumerate(self.vm) if t == tag)
        if idx <= self.done:
            if extra: self(f"s_waitcnt {extra}")
            return
        n = len(self.vm) - 1 - idx
        assert n <= 63, n
        self.done = idx
        self(f"s_waitcnt vmcnt({n}) {extra}")
    def vmall(self, extra=""):
        self.done = len(self.vm) - 1
        self(f"s_waitcnt vmcnt(0) {extra}")
    def vmreset(self): self.vm = []; self.done = -1
    def ts(self, i, att=False):
        if opt.X_UNTIL and i == opt.X_UPOS and not att:
            l = self.label("U")
            self(f"{l}:\ns_memrealtime s[98:99]\ns_waitcnt lgkmcnt(0)\ns_sub_u32 s98, s98, s100\ns_cmp_lt_u32 s98, {opt.X_UNTIL}\ns_cbranch_scc1 {l}")
        if opt.TS and (att == opt.TSA or i in (0, 15)):
            self(f"s_memtime s[{sT4}:{sT5}]\ns_waitcnt lgkmcnt(0)\ns_mov_b32 s{sTS+i}, s{sT4}")
    def text(self): return "\n".join(self.l) + "\n"

def mfma(d, a, b, c):
    cs = vr(c, 16) if isinstance(c, int) else c
    return f"v_mfma_f32_32x32x16_bf16 {vr(d,16)}, {vr(a,4)}, {vr(b,4)}, {cs}"
def mfma16(d, a, b, c):
    cs = vr(c, 4) if isinstance(c, int) else c
    return f"v_mfma_f32_16x16x32_bf16 {vr(d,4)}, {vr(a,4)}, {vr(b,4)}, {cs}"
def smf(d, a, b, idx): return f"v_smfmac_f32_32x32x32_bf16 {vr(d,16)}, {vr(a,4)}, {vr(b,8)}, v{idx}"

def build():
    g = Gen()
    vL, vX, vL16, vROW = 1, 2, 3, 29
    vJ = 255
    vW, vA, vA2, vB, vTR, vXW, vKB, vKA = 4, 5, 6, 7, 8, 9, 10, 11
    XR = 32
    g(f"""
    s_cmp_ge_u32 s2, 256
    s_cbranch_scc1 L_END
    s_load_dwordx16 s[4:19], s[0:1], 0
    s_load_dwordx4 s[20:23], s[0:1], 64
    s_load_dwordx2 s[24:25], s[0:1], 80
    """)
    if opt.TS:
        g(f"s_memtime s[{sTS}:{sTS+1}]\ns_memrealtime s[{sTS+16}:{sTS+17}]")
    if opt.X_UNTIL: g("s_memrealtime s[100:101]")
    g(f"""
    v_lshrrev_b32 v16, 6, v0
    s_lshr_b32 s{sJ}, s2, 3
    s_mov_b32 s{SG_+3}, 0x20000
    v_readfirstlane_b32 s{sWV}, v16
    """)
    if opt.TOUCH:
        g(f"""
        s_getpc_b64 s[{SG_}:{SG_+1}]
        L_PC:
        s_mov_b32 s{SG_+2}, L_END-L_PC
        v_and_b32 v17, 1, v0
        v_lshl_add_u32 v16, v16, 1, v17
        v_lshlrev_b32 v16, 7, v16
        s_lshl_b32 s{sT1}, s{sJ}, 11
        buffer_load_dword v{vJ}, v16, {srd(SG_)}, s{sT1} offen
        """)
    g(f"""
    v_and_b32 v{vL}, 63, v0
    s_and_b32 s{sT0}, s2, 7
    s_lshr_b32 s{sTB}, s{sT0}, 1
    s_and_b32 s{sT2}, s{sJ}, 7
    s_lshl3_add_u32 s{sTB}, s{sTB}, s{sT2}
    s_and_b32 s{sCH}, s{sT0}, 1
    s_lshr_b32 s{sT2}, s{sJ}, 3
    s_lshl2_add_u32 s{sHG}, s{sCH}, s{sT2}
    s_lshl_b32 s{sT2}, s{sT2}, {1 if opt.ROT else 5}
    s_add_u32 s{sRB}, s{sWV}, s{sT2}
    s_and_b32 s{sRB}, s{sRB}, 7
    s_lshl_b32 s{sT2}, s{sRB}, 3
    v_lshrrev_b32 v16, 3, v{vL}
    v_add_u32 v{vROW}, s{sT2}, v16
    v_lshlrev_b32 v16, 10, v{vROW}
    v_and_b32 v17, 7, v0
    v_lshl_add_u32 v{vX}, v17, 4, v16
    v_lshlrev_b32 v{vL16}, 4, v{vL}
    v_mul_u32_u24 v16, {XPITCH}, v{vROW}
    v_lshl_add_u32 v{vXW}, v17, 4, v16
    s_lshl_b32 s{sT0}, s{sHG}, 3
    v_add_u32 v17, s{sT0}, v17
    v_mul_u32_u24 v17, {XPITCH}, v17
    v_lshrrev_b32 v18, 4, v{vL}
    v_lshl_add_u32 v17, v18, 4, v17
    s_and_b32 s{sT5}, s{sWV}, 3
    s_lshl_b32 s{sT1}, s{sT5}, 8
    v_add_u32 v{vKB}, s{sT1}, v17
    v_bfe_u32 v19, v{vL}, 2, 2
    v_lshl_add_u32 v16, v18, 3, v19
    v_lshlrev_b32 v16, 5, v16
    v_and_b32 v20, 3, v{vL}
    v_lshl_add_u32 v16, v20, 3, v16
    s_mul_i32 s{sT2}, s{sRB}, {8*XPITCH}
    v_add_u32 v{vKA}, s{sT2}, v16
    s_mov_b32 m0, s{sT2}
    s_and_b32 s{sTH}, s{sWV}, 1
    s_lshr_b32 s{sG}, s{sWV}, 1
    v_lshlrev_b32 v{vTR}, 6, v19
    v_bfe_u32 v16, v{vL}, 4, 1
    v_lshl_add_u32 v{vTR}, v16, 5, v{vTR}
    v_lshl_add_u32 v{vTR}, v20, 3, v{vTR}
    v_lshrrev_b32 v21, 5, v{vL}
    v_lshl_add_u32 v{vA}, v21, 9, v{vTR}
    v_and_b32 v16, 31, v{vL}
    s_lshl_b32 s{sT0}, s{sTH}, 5
    v_add_u32 v16, s{sT0}, v16
    v_mul_u32_u24 v16, {XPITCH}, v16
    v_lshl_add_u32 v{vB}, v21, 4, v16
    s_cmp_eq_u32 s{sG}, 1
    s_movk_i32 s{sT1}, 3584
    s_cselect_b32 s{sT1}, 1024, s{sT1}
    s_movk_i32 s{sT2}, 448
    s_cselect_b32 s{sT2}, 128, s{sT2}
    s_lshl_b32 s{SG_+2}, s{sT1}, 9
    s_mul_i32 s{sT2}, s{sT2}, s{sHG}
    s_lshl_b32 s{sP32}, s{sT1}, 5
    s_lshl_b32 s{sK}, s{sT1}, 4
    s_mul_i32 s{sK}, s{sK}, s{sTH}
    s_cmp_eq_u32 s{sG}, 2
    s_cselect_b32 s{sT3}, 192, 0
    s_cmp_eq_u32 s{sG}, 3
    s_cselect_b32 s{sT3}, 320, s{sT3}
    s_add_u32 s{sT2}, s{sT2}, s{sT3}
    v_lshrrev_b32 v16, 2, v{vL}
    v_mul_lo_u32 v16, v16, s{sT1}
    v_lshl_add_u32 v16, v20, 4, v16
    v_add_u32 v{vW}, s{sT2}, v16
    s_lshl2_add_u32 s{sT3}, s{sG}, 2
    s_cmp_eq_u32 s{sG}, 0
    s_cselect_b32 s{sT3}, 0, s{sT3}
    s_cselect_b32 s{sVAR}, 0, 1
    s_lshl_b32 s{sT4}, s{sT3}, 10
    s_add_u32 s{sT4}, s{sT4}, {XN_END}
    s_lshl_b32 s{sLB}, s{sTH}, 10
    s_add_u32 s{sLB}, s{sLB}, s{sT4}
    v_add_u32 v{vA}, s{sT4}, v{vA}
    v_add_u32 v{vA2}, {3*SLOT}, v{vA}
    s_cmp_eq_u32 s{sWV}, 6
    s_cselect_b32 s{sVAR}, 2, s{sVAR}
    s_cmp_eq_u32 s{sWV}, 7
    s_cselect_b32 s{sVAR}, 3, s{sVAR}
    s_mov_b32 s{SX+2}, 0x200000
    s_mov_b32 s{SX+3}, 0x20000
    s_movk_i32 s{SKV+2}, 16384
    s_mov_b32 s{SKV+3}, 0x20000
    s_lshl_b32 s{sT0}, s{sTB}, 16
    s_and_b32 s{sT2}, s{sJ}, {7 if opt.KROT else 0}
    s_mul_i32 s{sT3}, s{sP32}, s{sT2}
    s_lshl1_add_u32 s{sK}, s{sT3}, s{sK}
    s_lshl1_add_u32 s{sT3}, s{sT5}, s{sT2}
    s_and_b32 s{sKVO}, s{sT3}, 7
    s_lshl_b32 s{sKVO}, s{sKVO}, 11
    s_add_u32 s{sT3}, s{sT3}, 1
    s_and_b32 s{sKVO2}, s{sT3}, 7
    s_lshl_b32 s{sKVO2}, s{sKVO2}, 11
    s_lshl_b32 s{sT2}, s{sT2}, 7
    """ + "".join(f"s_add_u32 s{SXO+n}, s{sT2}, {n*128}\ns_and_b32 s{SXO+n}, s{SXO+n}, 0x380\ns_or_b32 s{SXO+n}, s{SXO+n}, s{sT0}\n" for n in range(8)) + f"""
    s_lshl2_add_u32 s{sT1}, s{sJ}, s{sT5}
    s_lshl_b32 s{sT1}, s{sT1}, 7
    s_cmp_lt_u32 s{sWV}, 4
    s_waitcnt lgkmcnt(0)
    s_cselect_b32 s{SKV}, s8, s10
    s_cselect_b32 s{SKV+1}, s9, s11
    s_mov_b32 s{SX}, s4
    s_mov_b32 s{SX+1}, s5
    """)
    if opt.TOUCH: g(f"buffer_load_dword v{vJ}, off, {srd(SKV)}, s{sT1}")
    def xloads():
        for i in range(8):
            g(f"buffer_load_dwordx4 {vr(XR+4*i,4)}, v{vX}, {srd(SX)}, s{SXO+i} offen")
    def kvdma():
        for i in range(2):
            g(f"buffer_load_dwordx4 v{vL16}, {srd(SKV)}, s{sKVO} offen offset:{i*1024} lds")
        g("s_add_u32 m0, m0, 2048\ns_nop 0")
        for i in range(2):
            g(f"buffer_load_dwordx4 v{vL16}, {srd(SKV)}, s{sKVO2} offen offset:{i*1024} lds")
    def w1_touch_addr():
        g(f"""
        s_mov_b32 s{STC}, s16
        s_mov_b32 s{STC+1}, s17
        s_mov_b32 s{STC+2}, {512*3584}
        s_lshl_b32 s{sT4}, s{sJ}, 2
        v_lshrrev_b32 v16, 4, v{vL}
        v_add_u32 v16, s{sT4}, v16
        v_mul_u32_u24 v16, 3584, v16
        v_and_b32 v17, 15, v{vL}
        v_min_u32 v17, 13, v17
        v_lshl_add_u32 v16, v17, 7, v16
        s_mul_i32 s{sT4}, s{sCH}, 1792
        """)
    def wq_touch_addr():
        g(f"""
        s_mov_b32 s{STC}, s6
        s_mov_b32 s{STC+1}, s7
        s_mov_b32 s{STC+2}, 0x80000
        v_bfe_u32 v16, v{vL}, 2, 3
        s_lshl_b32 s{sT4}, s{sJ}, 3
        v_add_u32 v16, s{sT4}, v16
        v_lshlrev_b32 v16, 10, v16
        v_and_b32 v17, 3, v{vL}
        v_lshl_add_u32 v16, v17, 7, v16
        s_lshl_b32 s{sT4}, s{sCH}, 9
        """)
    touch = f"buffer_load_dword v{vJ}, v16, {srd(STC)}, s{sT4} offen"
    lb, lj = g.label("X"), g.label("X")
    g(f"s_cmp_ge_u32 s{sWV}, 2\ns_cbranch_scc1 {lb}")
    xloads(); kvdma()
    g(f"s_barrier\ns_branch {lj}\n{lb}:\ns_barrier")
    xloads(); kvdma()
    g(f"{lj}:")
    if opt.TSH: g.ts(11, opt.TSA)
    g(f"s_load_dword s{sTAG}, s[24:25], {WS_EPOCH}")
    NB2 = 0
    g(f"""
    s_cmp_eq_u32 s{sG}, 1
    s_cselect_b32 s{SG_}, s6, s16
    s_cselect_b32 s{SG_+1}, s7, s17
    """)
    NTV = [3, 2, 2, 2]
    NDMA = [3, 2, 4, 0]
    def g1_dma(var, chunk):
        slot = chunk % NSLOT
        if var == 3: return
        for jj in range(NTV[var]):
            g(f"s_add_u32 m0, s{sLB}, {slot*SLOT + jj*(2048-64)}")
            g("s_nop 0")
            g.vmop(f"buffer_load_dwordx4 v{vW}, {srd(SG_)}, s{sK} offen offset:{64*jj} lds", ("w", chunk))
        if var == 2:
            g(f"s_add_u32 s{sT0}, s{sK}, {16*3584}")
            for jj in range(2):
                g(f"s_add_u32 m0, s{sLB}, {slot*SLOT + jj*(2048-64) + 1024}")
                g("s_nop 0")
                g.vmop(f"buffer_load_dwordx4 v{vW}, {srd(SG_)}, s{sT0} offen offset:{64*jj} lds", ("w", chunk))
        g(f"s_add_u32 s{sK}, s{sK}, s{sP32}\ns_sub_u32 s{sT0}, s{sK}, s{SG_+2}\ns_cselect_b32 s{sK}, s{sK}, s{sT0}")
    def dma_block(chunks, vars_=(0, 1, 2)):
        lj = g.label("J")
        for var in vars_:
            nxt = g.label("V")
            g(f"s_cmp_lg_u32 s{sVAR}, {var}\ns_cbranch_scc1 {nxt}")
            for c in chunks: g1_dma(var, c)
            if var != vars_[-1]: g(f"s_branch {lj}")
            g(f"{nxt}:")
        g(f"{lj}:")
    def waitv(cnt):
        done = g.label("WD")
        groups = {}
        for v, c in enumerate(cnt): groups.setdefault(c, []).append(v)
        if len(groups) == 1: g(f"s_waitcnt vmcnt({cnt[0]})"); return
        for var in range(3):
            nxt = g.label("WV")
            g(f"s_cmp_lg_u32 s{sVAR}, {var}\ns_cbranch_scc1 {nxt}\ns_waitcnt vmcnt({cnt[var]})\ns_branch {done}\n{nxt}:")
        g(f"s_waitcnt vmcnt({cnt[3]})\n{done}:")
    def wait01(a, b):
        l1, l2 = g.label("W"), g.label("W")
        g(f"s_cmp_lg_u32 s{sVAR}, 0\ns_cbranch_scc1 {l1}\ns_waitcnt vmcnt({a})\ns_branch {l2}\n{l1}:\ns_waitcnt vmcnt({b})\n{l2}:")
    g(f"""
    s_mov_b32 s{SWS}, s24
    s_mov_b32 s{SWS+1}, s25
    s_mov_b32 s{SWS+2}, {WS_SIZE}
    s_mov_b32 s{SWS+3}, 0x20000
    s_mov_b32 s{SW2}, s18
    s_mov_b32 s{SW2+1}, s19
    s_mov_b32 s{SW2+2}, {1792*1024}
    s_mov_b32 s{SW2+3}, 0x20000
    s_mov_b32 s{SWO}, s12
    s_mov_b32 s{SWO+1}, s13
    s_mov_b32 s{SWO+2}, 0x80000
    s_mov_b32 s{SWO+3}, 0x20000
    s_mov_b32 s{sONE2}, 0x3f803f80
    s_mov_b32 s{sLO}, 0x00003f80
    s_mov_b32 s{sHI}, 0x3f800000
    s_mov_b32 s{sVM}, 0x0000ffff
    s_mov_b32 s{sVM+1}, 0x0000ffff
    s_lshl_b32 s{sKVL}, s{sWV}, 10
    s_add_u32 s{sKVS}, s{sKVL}, {WS_KV}
    s_add_u32 s{sKVL}, s{sKVL}, {KVR}
    """)
    a0, a1, vM, vD, E = 12, 13, 14, 15, 16
    Q2 = 24
    WK = 96
    g(f"v_mov_b32 v{a0}, 0\nv_mov_b32 v{a1}, 0")
    for r in range(4): g(f"v_mov_b32 v{Q2+r}, 0")
    g("@@SETUP@@")
    if opt.TSH: g.ts(12, opt.TSA)
    g("s_waitcnt vmcnt(8)")
    g.ts(1)
    for j in range(16): g(f"v_dot2_f32_bf16 v{a0+(j&1)}, v{XR+j}, s{sONE2}, v{a0+(j&1)}")
    g("s_waitcnt vmcnt(4)")
    g.ts(2)
    for j in range(16, 32): g(f"v_dot2_f32_bf16 v{a0+(j&1)}, v{XR+j}, s{sONE2}, v{a0+(j&1)}")
    def dpp_reduce(v):
        for m in ("quad_perm:[1,0,3,2]", "quad_perm:[2,3,0,1]", "row_half_mirror"):
            g(f"s_nop 1\nv_add_f32_dpp v{v}, v{v}, v{v} {m} row_mask:0xf bank_mask:0xf")
    g(f"s_nop 2\nv_add_f32 v{a0}, v{a0}, v{a1}")
    dpp_reduce(a0)
    g(f"""
    v_mul_f32 v{a0}, 0x3b000000, v{a0}
    v_cvt_pk_bf16_f32 v{vM}, v{a0}, v{a0}
    v_and_b32 v{vM}, 0xffff0000, v{vM}
    v_sub_f32 v{vD}, v{a0}, v{vM}
    v_xor_b32 v{vM}, 0x80000000, v{vM}
    """)
    g("s_waitcnt vmcnt(0)")
    for s in range(4):
        for q in range(2):
            g(f"ds_read_b64_tr_b16 {vr(WK+4*s+2*q,2)}, v{vKA} offset:{s*1024+q*128}")
    def issue_at(pos):
        cb = [c for c in range(NSLOT) if opt.DMA_AFTER[c] == pos]
        ca = [c for c in range(NSLOT) if opt.DMA_AFTER0[c] == pos]
        if cb == ca and cb: dma_block(cb)
        else:
            if cb: dma_block(cb, (1, 2))
            if ca: dma_block(ca, (0,))
    issue_at(-1)
    for i in range(8):
        for jj in range(4):
            j = XR + 4*i + jj
            g(f"v_dot2_f32_bf16 v{E+2*jj}, v{j}, s{sLO}, v{vM}\nv_dot2_f32_bf16 v{E+2*jj+1}, v{j}, s{sHI}, v{vM}")
        for jj in range(4):
            j = XR + 4*i + jj
            acc = Q2 + 2*(jj & 1)
            g(f"v_pk_fma_f32 {vr(acc,2)}, {vr(E+2*jj,2)}, {vr(E+2*jj,2)}, {vr(acc,2)}\nv_cvt_pk_bf16_f32 v{j}, v{E+2*jj}, v{E+2*jj+1}")
        g(f"ds_write_b128 v{vXW}, {vr(XR+4*i,4)} offset:{XN + i*128}")
        issue_at(i)
    g(f"""
    s_mov_b32 s{SOUT}, s20
    s_mov_b32 s{SOUT+1}, s21
    s_mov_b32 s{SOUT+2}, 0x200000
    s_mov_b32 s{SOUT+3}, 0x20000
    s_mov_b32 s{sFB}, 0
    """)
    vR = 13
    g(f"""
    v_pk_add_f32 {vr(Q2,2)}, {vr(Q2,2)}, {vr(Q2+2,2)}
    v_add_f32 v{a0}, v{Q2}, v{Q2+1}
    """)
    dpp_reduce(a0)
    skip = g.label("R4")
    g(f"""
    v_mul_f32 v{a0}, 0x3b000000, v{a0}
    v_fma_f32 v{a0}, -v{vD}, v{vD}, v{a0}
    v_max_f32 v{a0}, 0, v{a0}
    v_cvt_pk_bf16_f32 v{a0}, v{a0}, v{a0}
    v_and_b32 v{a0}, 0xffff0000, v{a0}
    v_add_f32 v{a0}, 0x3727c5ac, v{a0}
    v_cvt_pk_bf16_f32 v{a0}, v{a0}, v{a0}
    v_and_b32 v{a0}, 0xffff0000, v{a0}
    v_sqrt_f32 v{a0}, v{a0}
    v_lshlrev_b32 v{E}, 2, v{vROW}
    v_cvt_pk_bf16_f32 v{a0}, v{a0}, v{a0}
    v_and_b32 v{a0}, 0xffff0000, v{a0}
    v_rcp_f32 v{vR}, v{a0}
    v_add_u32 v{E}, {RARR}, v{E}
    ds_write_b32 v{E}, v{vR}
    s_cmp_lg_u32 s{sRB}, s{sHG}
    s_cbranch_scc1 {skip}
    v_lshrrev_b32 v{E}, 3, v{vL}
    v_lshlrev_b32 v{E}, 4, v{E}
    v_and_b32 v{E+1}, 3, v{vL}
    v_lshl_add_u32 v{E}, v{E+1}, 2, v{E}
    v_add_u32 v{E}, {R4}, v{E}
    ds_write_b32 v{E}, v{vR}
    {skip}:
    """)
    g.ts(3)
    issue_at(8)
    vKG, vKA2, vVA, vIDX, vW2, vG0, vG1, vG2, vT3, vQA, vXO, vRB = range(132, 144)
    vQ, vK, vK1, vQC, vV0, vV1, vO, vC, vS = 16, 20, 24, 32, 36, [40, 44], 48, 64, [80, 96]
    HB = 144
    def att_setup():
        g(f"""
        s_lshr_b32 s{sKQ}, s{sWV}, 1
        v_bfe_u32 v28, v{vL}, 3, 2
        v_lshlrev_b32 v{vKG}, 9, v28
        v_lshrrev_b32 v28, 1, v28
        v_lshrrev_b32 v31, 5, v{vL}
        v_xor_b32 v28, v28, v31
        v_lshl_add_u32 v{vKG}, v28, 7, v{vKG}
        v_and_b32 v28, 7, v{vL}
        v_lshl_add_u32 v{vKG}, v28, 4, v{vKG}
        v_add_u32 v{vKA2}, {KVR}, v{vKG}
        v_lshlrev_b32 v{vVA}, 9, v31
        v_and_b32 v28, 15, v{vL}
        v_lshl_add_u32 v{vVA}, v28, 4, v{vVA}
        v_add_u32 v{vVA}, {KVR + 256}, v{vVA}
        v_mov_b32 v{vIDX}, 0xdddddddd
        v_lshrrev_b32 v28, 2, v{vL}
        v_lshlrev_b32 v28, 10, v28
        v_and_b32 v30, 3, v{vL}
        v_lshl_add_u32 v{vT3}, v30, 7, v28
        v_lshl_add_u32 v28, v30, 4, v28
        s_lshl_b32 s{sT0}, s{sHG}, 7
        s_lshl_b32 s{sT1}, s{sTH}, 6
        s_add_u32 s{sT0}, s{sT0}, s{sT1}
        v_add_u32 v{vW2}, s{sT0}, v28
        v_lshl_add_u32 v{vG0}, v31, 8, v{vTR}
        s_lshl_b32 s{sT0}, s{sKQ}, 11
        v_add_u32 v{vG0}, s{sT0}, v{vG0}
        v_add_u32 v{vG1}, 0x10000, v{vG0}
        v_add_u32 v{vG2}, 130048, v{vG0}
        s_lshl_b32 s{sW2B}, s{sTH}, 10
        s_add_u32 s{sW2B}, s{sW2B}, s{sT0}
        s_lshl_b32 s{sT0}, s{sTB}, 1
        s_add_u32 s{sT0}, s{sT0}, s{sTH}
        s_mul_i32 s{sHB}, s{sT0}, 112
        s_mul_i32 s{sT1}, s{sKQ}, 28
        s_add_u32 s{sHB}, s{sHB}, s{sT1}
        s_lshl_b32 s{sHB}, s{sHB}, 10
        s_add_u32 s{sHB}, s{sHB}, {WS_H}
        s_lshl_b32 s{sXO}, s{sT0}, 15
        s_add_u32 s{sOB}, s{sXO}, {WS_O}
        s_lshl_b32 s{sT1}, s{sHG}, 7
        s_add_u32 s{sXO}, s{sXO}, s{sT1}
        s_lshl_b32 s{sT1}, s{sKQ}, 5
        s_add_u32 s{sXO}, s{sXO}, s{sT1}
        s_mul_i32 s{sW2S}, s{sKQ}, {28*16384}
        s_lshl_b32 s{sT0}, s{sWV}, 10
        s_add_u32 s{sT0}, s{sT0}, {QX}
        v_add_u32 v{vQA}, s{sT0}, v{vL16}
        v_and_b32 v28, 31, v{vL}
        v_lshlrev_b32 v28, 10, v28
        v_lshl_add_u32 v{vXO}, v31, 4, v28
        s_lshl_b32 s{sT0}, s{sTH}, 11
        v_add_u32 v{vRB}, s{sT0}, v{vL16}
        """)
    SETUP_MARK = "@@SETUP@@"
    vRT = 12
    g(f"""
    v_and_b32 v16, 31, v{vL}
    s_lshl_b32 s{sT0}, s{sTH}, 5
    v_add_u32 v16, s{sT0}, v16
    v_lshlrev_b32 v16, 2, v16
    v_add_u32 v16, {RARR}, v16
    s_and_b32 s{sT0}, s{sWV}, 3
    s_lshl_b32 s{sT0}, s{sT0}, 10
    s_add_u32 s{sT0}, s{sT0}, {PART}
    v_and_b32 v15, 15, v{vL}
    v_lshlrev_b32 v15, 5, v15
    v_add_u32 v15, s{sT0}, v15
    v_lshrrev_b32 v14, 4, v{vL}
    v_lshl_add_u32 v17, v14, 4, v15
    v_and_b32 v18, 1, v14
    v_lshl_add_u32 v15, v18, 8, v15
    v_lshrrev_b32 v14, 1, v14
    v_lshl_add_u32 v15, v14, 4, v15
    """)
    ACC = 144
    FR = [64, 96]
    KB, KD = 112, 128
    def g1_reads(var, chunk, ks):
        slot = chunk % NSLOT
        base = FR[chunk & 1] + 16*ks
        out = [f"ds_read_b128 {vr(base,4)}, v{vB} offset:{XN + (2*chunk+ks)*32}"]
        va, so = (vA, slot*SLOT) if slot < 3 else (vA2, (slot-3)*SLOT)
        for jj in range(NTV[var]):
            for q in range(2):
                out.append(f"ds_read_b64_tr_b16 {vr(base+4+4*jj+2*q,2)}, v{va} offset:{so + jj*2048 + ks*1024 + q*256}")
        return out
    def flag_store(base):
        g(f"""
        s_lshl_b32 s{sT0}, s{sTB}, 3
        s_add_u32 s{sT0}, s{sT0}, s{sHG}
        s_lshl_b32 s{sT0}, s{sT0}, 4
        s_add_u32 s{sT0}, s{sT0}, {base}
        v_mov_b32 v28, 0
        v_mov_b32 v31, s{sTAG}
        s_mov_b64 exec, 1
        buffer_store_dword v31, v28, {srd(SWS)}, s{sT0} offen sc1
        s_mov_b64 exec, -1
        """)
    def check_or_spin(loads, regs):
        done, lab = g.label("PD"), g.label("PL")
        g(f"s_mov_b32 s{sCNT}, 0\n{lab}:")
        for r in regs: g(f"v_xor_b32 v{r}, s{sTAG}, v{r}")
        for r in regs[1:]: g(f"v_or_b32 v{regs[0]}, v{regs[0]}, v{r}")
        g(f"""
        v_cmp_ne_u32 vcc, 0, v{regs[0]}
        s_nop 4
        s_cbranch_vccz {done}
        s_add_u32 s{sCNT}, s{sCNT}, 1
        s_cmp_gt_u32 s{sCNT}, {opt.SPIN}
        s_cbranch_scc1 {done}
        s_sleep 8
        """)
        for s in loads: g(s)
        g(f"s_waitcnt vmcnt(0)\ns_branch {lab}\n{done}:")
    def kv_dma(c):
        g(f"s_add_u32 m0, s{sKVL}, {(c%4)*8192}\ns_add_u32 s{sT0}, s{sKVS}, {c*8192}")
        g.vmop(f"buffer_load_dwordx4 v{vL16}, {srd(SWS)}, s{sT0} offen sc1 lds", ("kv", c))
    G1END = g.label("G1END")
    kvpoll = [f"buffer_load_dword v{16+k}, v{vL16}, {srd(SWS)}, s{sT1} offen offset:{k*1024} sc1" for k in range(4)]
    def kv_mini(role, mid):
        for s in range(4):
            g(mfma16(KD, WK+4*s, KB+4*s, KD if s else "0") if role == 0 else mfma16(KD, KB+4*s, WK+4*s, KD if s else "0"))
        for s in mid: g(s)
        pad = max(0, 8 - len(mid) - 2)
        if pad: g(f"s_nop {pad-1}")
        if role == 0:
            g(f"s_mov_b32 exec_lo, 0x00ff00ff\ns_mov_b32 exec_hi, 0x00ff00ff\nds_write_b128 v15, {vr(KD,4)}")
        else:
            g(f"s_mov_b32 exec_hi, 0\ns_nop 0\nds_write_b128 v17, {vr(KD,4)} offset:512")
        g("s_mov_b64 exec, -1")
    for var in range(4):
        nxt = g.label("G1V")
        if var < 3: g(f"s_cmp_lg_u32 s{sVAR}, {var}\ns_cbranch_scc1 {nxt}")
        g.vmreset()
        for c in range(NSLOT):
            for _ in range(NDMA[var]): g.vm.append(("w", c))
        NT = NTV[var]
        if NDMA[var]: g.vmwait(("w", 1), "lgkmcnt(0)")
        else: g("s_waitcnt lgkmcnt(0)")
        g(f"s_add_u32 s{sTAG}, s{sTAG}, 1\ns_barrier")
        g.ts(4)
        for s in range(4): g(f"ds_read_b128 {vr(KB+4*s,4)}, v{vKB} offset:{XN + s*64}")
        r0 = g1_reads(var, 0, 0); r1 = g1_reads(var, 0, 1)
        for s in r0: g(s)
        g(f"s_waitcnt lgkmcnt({len(r0)})")
        mid = r1 + [f"ds_read_b32 v{vRT}, v16", f"ds_read_b32 v{vRT+1}, v16"]
        if var == 1:
            lv, lj = g.label("KVV"), g.label("KVJ")
            g(f"s_cmp_ge_u32 s{sWV}, 4\ns_cbranch_scc1 {lv}")
            kv_mini(0, mid)
            g(f"s_branch {lj}\n{lv}:")
            kv_mini(1, mid)
            g(f"{lj}:")
        else:
            kv_mini(0 if var == 0 else 1, mid)
        for j in range(16):
            if j == 0:
                g("s_waitcnt lgkmcnt(1)")
                g.ts(5)
            else:
                if j + 1 < 16 and NDMA[var]: g.vmwait(("w", j + 1), "lgkmcnt(0)")
                else: g("s_waitcnt lgkmcnt(0)")
                if var == 3 and j == opt.KVFLAG_AT:
                    g("s_waitcnt vmcnt(0)")
                    flag_store(WS_FKV)
                if var == 3 and j == opt.KVCHECK_AT:
                    g("s_waitcnt vmcnt(0)")
                    check_or_spin(kvpoll, [16, 17, 18, 19])
                g("s_barrier")
                if opt.TSG and j < 15: g.ts(j, True)
            if var == 3 and j == 1:
                S0 = 16
                g(f"v_add_u32 v14, {PART}, v{vL16}")
                for k in range(4): g(f"ds_read_b128 {vr(S0+4*k,4)}, v14 offset:{k*1024}")
                g(f"""
                v_bfe_u32 v14, v{vL}, 1, 3
                v_lshlrev_b32 v14, 4, v14
                v_add_u32 v14, {R4}, v14
                v_and_b32 v15, 1, v{vL}
                v_lshlrev_b32 v15, 4, v15
                s_lshl_b32 s{sT0}, s{sHG}, 5
                s_add_u32 s{sT0}, s{sT0}, {RARR}
                v_add_u32 v15, s{sT0}, v15
                v_cmp_gt_u32 vcc, 32, v{vL}
                s_lshr_b32 s{sT0}, s{sHG}, 1
                s_and_b32 s{sT0}, s{sT0}, 1
                v_cndmask_b32 v14, v15, v14, vcc
                ds_read_b128 {vr(32,4)}, v14
                s_lshl_b32 s{sT0}, s{sT0}, 7
                v_mov_b32 v14, s{sT0}
                v_lshlrev_b32 v15, 3, v{vL}
                v_cndmask_b32 v14, 0, v14, vcc
                v_xor_b32 v14, v14, v15
                s_lshl_b32 s{sT0}, s{sTB}, 3
                s_add_u32 s{sT0}, s{sT0}, s{sHG}
                s_lshl_b32 s{sT0}, s{sT0}, 9
                s_add_u32 s{sT0}, s{sT0}, {WS_KV}
                s_waitcnt lgkmcnt(0)
                """)
                for k in range(4): g(f"v_add_f32 v{S0+k}, v{S0+k}, v{S0+4+k}\nv_add_f32 v{S0+8+k}, v{S0+8+k}, v{S0+12+k}")
                for k in range(4): g(f"v_add_f32 v{S0+k}, v{S0+k}, v{S0+8+k}")
                for k in range(4): g(f"v_mul_f32 v{S0+k}, v{S0+k}, v{32+k}")
                g(f"""
                v_cvt_pk_bf16_f32 v{S0}, v{S0}, v{S0+1}
                v_cvt_pk_bf16_f32 v{S0+1}, v{S0+2}, v{S0+3}
                buffer_store_dwordx2 {vr(S0,2)}, v14, {srd(SWS)}, s{sT0} offen sc1
                """)
            if var == 3 and j == opt.KVPOLL_AT:
                g(f"s_mov_b32 s{sT1}, {WS_FKV}")
                for s in kvpoll: g(s)
            cur = FR[j & 1]
            rd = g1_reads(var, j+1, 0) + g1_reads(var, j+1, 1) if j + 1 < 16 else []
            n = 0
            tot = 2*NT
            keep = g.l; g.l = []
            if j == 1: g1_dma(var, 5)
            if j >= 1 and j + NSLOT < 16: g1_dma(var, j + NSLOT)
            if 0 <= j - opt.KVCHECK_AT < 3: kv_dma(j - opt.KVCHECK_AT)
            dm = g.l; g.l = keep
            groups = []; curg = []
            for x in dm:
                curg.append(x)
                if "buffer_load" in x: groups.append(curg); curg = []
            if curg: groups[-1] = groups[-1] + curg
            for ks in range(2):
                b = cur + 16*ks
                for jj in range(NT):
                    g(mfma(ACC+16*jj, b+4+4*jj, b, ACC+16*jj if (j or ks) else "0"))
                    if n < tot - 1:
                        for s in rd[n*len(rd)//(tot-1):(n+1)*len(rd)//(tot-1)]: g(s)
                    for gr in groups[n*len(groups)//tot:(n+1)*len(groups)//tot]: g.l += gr
                    if n == tot - 1:
                        if j == 3:
                            for r in range(vV0, vV0+6): g(f"v_mov_b32 v{r}, s{sONE2}")
                        if j == 4:
                            for r in range(vV0+6, vV0+12): g(f"v_mov_b32 v{r}, s{sONE2}")
                        if 5 <= j <= 8:
                            for r in range(4): g(f"v_mov_b32 v{vO+4*(j-5)+r}, 0")
                    n += 1
        g.ts(6)
        isq = g.label("G1Q")
        def scale_cvt(jj, rreg):
            a = ACC + 16*jj
            for k in range(8): g(f"v_pk_mul_f32 {vr(a+2*k,2)}, {vr(a+2*k,2)}, {vr(rreg,2)}")
            for k in range(8): g(f"v_cvt_pk_bf16_f32 v{a+k}, v{a+2*k}, v{a+2*k+1}")
        if var == 1:
            g(f"s_cmp_eq_u32 s{sG}, 1\ns_cbranch_scc1 {isq}")
        g(f"""
        s_lshl_b32 s{sT0}, s{sTB}, 1
        s_add_u32 s{sT0}, s{sT0}, s{sTH}
        s_mul_i32 s{sT0}, s{sT0}, 112
        s_mul_i32 s{sT1}, s{sHG}, 14
        s_add_u32 s{sT0}, s{sT0}, s{sT1}
        s_add_u32 s{sT0}, s{sT0}, {[0,6,10,10][var]}
        s_lshl_b32 s{sT0}, s{sT0}, 10
        s_add_u32 s{sT0}, s{sT0}, {WS_H}
        s_nop 3
        """)
        vmsave = (list(g.vm), g.done)
        for jj in range(NT):
            scale_cvt(jj, vRT)
            a = ACC + 16*jj
            for k in range(8): g(f"v_pk_max_i16 v{a+k}, v{a+k}, 0")
            if jj == 2: g(f"s_add_u32 s{sT0}, s{sT0}, 4096")
            for u in range(2):
                g.vmop(f"buffer_store_dwordx4 {vr(a+4*u,4)}, v{vL16}, {srd(SWS)}, s{sT0} offen offset:{((jj%2)*2+u)*1024} sc1", "hst")
        g.vmwait(("kv", 1))
        g(f"s_branch {G1END}")
        if var == 1:
            g.vm, g.done = vmsave
            g(f"{isq}:")
            cb = fb(0.25 * 1.4426950408889634)
            g(f"""
            v_mul_f32 v14, {cb:#x}, v{vRT}
            v_mul_f32 v15, {cb:#x}, v{vRT}
            s_lshl_b32 s{sT0}, s{sTH}, 10
            s_add_u32 s{sT0}, s{sT0}, {QX}
            v_add_u32 v16, s{sT0}, v{vL16}
            s_nop 6
            """)
            for jj in range(2):
                scale_cvt(jj, 14)
                for u in range(2):
                    g(f"ds_write_b128 v16, {vr(ACC+16*jj+4*u,4)} offset:{(2*jj+u)*2048}")
            g.vmwait(("kv", 1))
            g(f"s_branch {G1END}")
        if var < 3: g(f"{nxt}:")
    g(f"{G1END}:")
    g.ts(7)
    def w2_dma(step, slot):
        g(f"s_add_u32 m0, s{sW2B}, {T2[slot]}")
        if step < 28:
            g(f"s_add_u32 s{sT0}, s{sW2S}, {step*16384}")
            S = SW2
        else:
            g(f"s_lshl_b32 s{sT0}, s{sKQ}, 17\ns_add_u32 s{sT0}, s{sT0}, {(step-28)*16384}")
            S = SWO
        g.vmop(f"buffer_load_dwordx4 v{vW2}, {srd(S)}, s{sT0} offen lds", ("w2", step))
    g("s_waitcnt lgkmcnt(0)\ns_barrier")
    if opt.X_DELAY or opt.X_RDELAY:
        ins = "s_memtime" if opt.X_DELAY else "s_memrealtime"
        g(f"{ins} s[{sT0}:{sT1}]\ns_waitcnt lgkmcnt(0)\nL_DLY:\n{ins} s[{sT2}:{sT3}]\ns_waitcnt lgkmcnt(0)\ns_sub_u32 s{sT2}, s{sT2}, s{sT0}\ns_cmp_lt_u32 s{sT2}, {opt.X_DELAY or opt.X_RDELAY}\ns_cbranch_scc1 L_DLY")
    g.ts(8)
    def kread(t, dst): return f"ds_read_b128 {vr(dst,4)}, v{vKA2} offset:{((t//4)%4)*8192 + (t%4)*2048}"
    def vread(t, u, dst): return f"ds_read_b128 {vr(dst,4)}, v{vVA} offset:{((t//4)%4)*8192 + (t%4)*2048 + u*1024}"
    def v01(t):
        g(f"s_mov_b64 exec, s[{sVM}:{sVM+1}]"); g(vread(t, 0, vV0)); g(vread(t, 1, vV1[t & 1])); g("s_mov_b64 exec, -1")
    g(f"ds_read_b128 {vr(vQ,4)}, v{vQA}")
    g(kread(0, vK)); g(kread(1, vK1))
    v01(0)
    g("s_waitcnt lgkmcnt(2)")
    g(mfma(vS[0], vK, vQ, "0")); g(mfma(vS[1], vK1, vQ, "0"))
    for k in range(4): g(f"v_mov_b32 v{vQC+k}, v{vQ+k}")
    g("s_nop 6")
    vMX = 28
    def maxtree(first):
        regs = list(range(vS[0], vS[0]+32))
        if first: g(f"v_max3_f32 v{vMX}, v{regs[0]}, v{regs[1]}, v{regs[2]}\nv_max_f32 v{vMX}, v{vMX}, v{regs[3]}"); regs = regs[4:]
        for k in range(0, len(regs), 2): g(f"v_max3_f32 v{vMX}, v{vMX}, v{regs[k]}, v{regs[k+1]}")
    maxtree(True)
    def finish_m(bias):
        g(f"""
        v_mov_b32 v31, v{vMX}
        s_nop 1
        v_permlane32_swap_b32 v31, v{vMX}
        s_nop 1
        v_max_f32 v{vMX}, v{vMX}, v31
        v_add_f32 v{vMX}, {fb(bias):#x}, v{vMX}
        v_xor_b32 v{vC}, 0x80000000, v{vMX}
        """)
        for r in range(1, 16): g(f"v_mov_b32 v{vC+r}, v{vC}")
    finish_m(opt.BIAS)
    ATT = g.label("ATT")
    g(f"{ATT}:")
    g.vmreset(); g.vm.append(("kv", 2))
    g("s_nop 1")
    g(mfma(vS[0], vK, vQ, vC))
    g(kread(1, vK))
    g("s_nop 7\ns_nop 2")
    side = {}
    t0 = 4*opt.HFLAG_C + 1
    free = [t for t in range(t0, 64) if t % 4 != 0 or t >= 52]
    if opt.TOUCH3: side[free.pop(0)] = ("touch",)
    free.remove(opt.HPOLL_T); side[opt.HPOLL_T] = ("hpoll",)
    hcheck = opt.HPOLL_T + 3
    early = [t for t in free if t < hcheck]; late = [t for t in free if t >= hcheck]
    jobs_w = [("w2", i) for i in range(NRES)]
    for t in early:
        if jobs_w: side[t] = jobs_w.pop(0)
    jobs = [("h", i) for i in range(28)]
    allj = []
    while jobs or jobs_w:
        for _ in range(2):
            if jobs: allj.append(jobs.pop(0))
        if jobs_w: allj.append(jobs_w.pop(0))
    assert len(allj) <= len(late), (len(allj), len(late))
    for t, jb in zip(late, allj): side[t] = jb
    hpoll = [f"buffer_load_dword v29, v30, {srd(SWS)}, s{sT1} offen sc1"]
    def pair_flag_addr(base):
        g(f"""
        s_lshl_b32 s{sT1}, s{sTB}, 3
        s_lshl_b32 s{sT0}, s{sKQ}, 1
        s_add_u32 s{sT1}, s{sT1}, s{sT0}
        s_lshl_b32 s{sT1}, s{sT1}, 4
        s_add_u32 s{sT1}, s{sT1}, {base}
        v_and_b32 v30, 16, v{vL16}
        """)
    AC2 = 64
    AF = [112, 120, 96]
    OB = [HB + 4*i for i in range(8)]
    slot_of = {i: i for i in range(NRES)}
    def lds_base(off):
        return (0, off) if off < 0x10000 else ((1, off - 0x10000) if off < 130048 else (2, off - 130048))
    def a_reads(step):
        b, o = lds_base(T2[slot_of[step]])
        return [f"ds_read_b64_tr_b16 {vr(AF[step%3]+4*n+2*q,2)}, v{vG0+b} offset:{o + n*1024 + q*512}" for n in range(2) for q in range(2)]
    for t in range(64):
        c = t // 4
        S = vS[t & 1]; Sn = vS[(t+1) & 1]
        ex = lambda k: f"v_exp_f32 v{S+k}, v{S+k}"
        def sidejob():
            if t == hcheck and not opt.X_NOSIDE:
                g.vmwait("hpoll")
                check_or_spin(hpoll, [29])
            if t % 4 == 0 and c + 3 < 16:
                if opt.X_NOKV: g.vm.append(("kv", c+3))
                else: kv_dma(c + 3)
            jb = side.get(t)
            if jb is not None and (opt.X_NOSIDE or jb[0] == opt.X_SKIP):
                g.vm.append(jb if len(jb) > 1 else jb[0])
            elif jb is not None:
                if jb[0] == "w2": w2_dma(jb[1], jb[1])
                elif jb[0] == "h":
                    i = jb[1]
                    if i % 4 == 0: g(f"s_add_u32 s{sT2}, s{sHB}, {i*1024}")
                    g.vmop(f"buffer_load_dwordx4 {vr(HB+4*i,4)}, v{vL16}, {srd(SWS)}, s{sT2} offen offset:{(i%4)*1024} sc1", ("h", i))
                elif jb[0] == "hpoll":
                    pair_flag_addr(WS_FH)
                    g.vmop(hpoll[0], "hpoll")
                elif jb[0] == "touch":
                    a, b = g.label("T3"), g.label("T3")
                    g(f"""
                    s_lshr_b32 s{sT0}, s{sHG}, 2
                    s_lshl_b32 s{sT0}, s{sT0}, 9
                    s_cmp_eq_u32 s{sWV}, 7
                    s_cbranch_scc1 {a}
                    s_lshl_b32 s{sT1}, s{sWV}, 5
                    s_add_u32 s{sT1}, s{sT1}, s{sJ}
                    s_lshl_b32 s{sT1}, s{sT1}, 13
                    s_add_u32 s{sT0}, s{sT0}, s{sT1}
                    s_mov_b32 exec_hi, 0
                    buffer_load_dword v{vJ}, v{vT3}, {srd(SW2)}, s{sT0} offen
                    s_mov_b64 exec, -1
                    s_branch {b}
                    {a}:
                    s_lshl_b32 s{sT1}, s{sJ}, 14
                    s_add_u32 s{sT0}, s{sT0}, s{sT1}
                    buffer_load_dword v{vJ}, v{vT3}, {srd(SWO)}, s{sT0} offen
                    {b}:
                    """)
                    g.vm.append("touch")
        for k in range(0, 4): g(ex(k))
        if t > 0: g(smf(vO, vV1[(t-1) & 1], vS[(t-1) & 1] + 8, vIDX))
        if t % 4 == 0 and t > 0:
            if c == opt.HFLAG_C: g.vmall()
            elif c + 1 < 16: g.vmwait(("kv", c+1))
            else: g.vmwait(("w2", 7))
            if not opt.X_NOBAR: g("s_barrier")
            if c < 15 and not opt.TSG: g.ts(c, True)
            if c == opt.HFLAG_C:
                sk = g.label("HF")
                g(f"s_cmp_lg_u32 s{sWV}, 0\ns_cbranch_scc1 {sk}")
                flag_store(WS_FH)
                g(f"{sk}:")
        if opt.PRIO: g(f"s_setprio {3 - t % 4}")
        g("s_waitcnt lgkmcnt(0)")
        if opt.SIDEPOS == 1: sidejob()
        for k in range(4, 8): g(ex(k))
        if t + 1 < 64: g(mfma(Sn, vK, vQ, vC))
        if t + 2 < 64: g(kread(t+2, vK))
        if opt.SIDEPOS == 0: sidejob()
        for k in range(8, 12): g(ex(k))
        g(smf(vO, vV0, S, vIDX))
        if t + 1 < 64: v01(t+1)
        else:
            for s in a_reads(0) + a_reads(1): g(s)
        if opt.SIDEPOS == 2: sidejob()
        for k in range(12, 16): g(ex(k))
    XRES = 24
    g.vmop(f"buffer_load_dwordx4 {vr(XRES,4)}, v{vXO}, {srd(SX)}, s{sXO} offen", "xres")
    g("s_nop 0")
    g(smf(vO, vV1[1], vS[1] + 8, vIDX))
    g.ts(9)
    FBK = g.label("FBK")
    stages = [list(range(6*s, 6*s+6)) for s in range(6)]
    nxt_load = NRES
    freeslots = []
    for si, st in enumerate(stages):
        extra = 0
        if si > 0:
            need = min(35, st[-1] + 2)
            if si == 1: g.vmall()
            else: g.vmwait(("w2", need))
            g("s_barrier")
            freeslots += [slot_of[x] for x in stages[si-1]]
            if si == 1:
                if not opt.TSH: g.ts(10)
                freeslots = [NRES + k for k in range(4)] + freeslots
                g(f"v_mov_b32 v30, {VOTE}\nds_read_b128 {vr(16,4)}, v30\nds_read_b128 {vr(20,4)}, v30 offset:16")
                extra = 2
        for step in st:
            if step + 2 < 36:
                for s in a_reads(step + 2): g(s)
            if step == opt.OPOLL_ISSUE:
                pair_flag_addr(WS_FO)
                g.vmop(hpoll[0], "opoll")
            if step == opt.OPOLL_CHECK:
                if not opt.TSH: g.ts(11)
                g.vmwait("opoll")
                check_or_spin(hpoll, [29])
                g(f"s_lshl_b32 s{sT2}, s{sKQ}, 13\ns_add_u32 s{sT2}, s{sT2}, s{sOB}\ns_add_u32 s{sT3}, s{sT2}, 4096")
                for i in range(8):
                    g.vmop(f"buffer_load_dwordx4 {vr(OB[i],4)}, v{vL16}, {srd(SWS)}, s{sT2 + i//4} offen offset:{(i%4)*1024} sc1", ("o", i))
                if not opt.TSH: g.ts(12)
            nout = 4*min(2, 35 - step) + extra + (1 if step == 1 else 0)
            extra = 0
            if step < 28: g.vmwait(("h", step))
            else: g.vmwait(("o", step - 28))
            g(f"s_waitcnt lgkmcnt({nout})")
            b = HB + 4*step if step < 28 else OB[step - 28]
            for n in range(2):
                g(mfma(AC2 + 16*n, AF[step % 3] + 4*n, b, AC2 + 16*n if step else "0"))
                if step > 6 and freeslots and nxt_load < 36:
                    slot_of[nxt_load] = freeslots.pop(0)
                    w2_dma(nxt_load, slot_of[nxt_load]); nxt_load += 1
            if step == 0:
                g(f"""
                s_lshl_b32 s{sT2}, s{sHG}, 2
                s_add_u32 s{sT2}, s{sT2}, s{sKQ}
                s_lshl_b32 s{sT2}, s{sT2}, 10
                s_add_u32 s{sT2}, s{sT2}, s{sOB}
                s_lshl_b32 s{sT3}, s{sWV}, 2
                s_add_u32 s{sT3}, s{sT3}, {VOTE}
                v_mov_b32 v30, {fb(2.0**115):#x}
                v_mov_b32 v31, {fb(2.0**126):#x}
                """)
                g(f"v_rcp_f32 v29, v{vO+8}\nv_add_f32 v28, |v{vO}|, |v{vO+1}|")
                for k in range(2, 8): g(f"v_add_f32 v28, v28, |v{vO+k}|")
                g(f"v_cmp_lt_f32 vcc, v{vO+8}, v30\nv_cmp_lt_f32 s[{sT0}:{sT1}], v28, v31")
                for k in range(8): g(f"v_mul_f32 v{vO+k}, v{vO+k}, v29")
                for k in range(4): g(f"v_cvt_pk_bf16_f32 v{vO+k}, v{vO+2*k}, v{vO+2*k+1}")
                g.vmop(f"buffer_store_dwordx4 {vr(vO,4)}, v{vL16}, {srd(SWS)}, s{sT2} offen sc1", "ost")
                g(f"""
                s_and_b64 vcc, vcc, s[{sT0}:{sT1}]
                s_cmp_eq_u64 vcc, -1
                s_cselect_b32 s{sT0}, {opt.X_TWICE}, 1
                s_cmp_lg_u32 s{sFB}, 0
                s_cselect_b32 s{sT0}, 0, s{sT0}
                v_mov_b32 v30, s{sT3}
                v_mov_b32 v31, s{sT0}
                ds_write_b32 v30, v31
                """)
            if step == 6:
                sk = g.label("OF")
                g(f"""
                s_waitcnt lgkmcnt(4)
                v_or3_b32 v16, v16, v17, v18
                v_or3_b32 v20, v20, v21, v22
                v_or3_b32 v16, v16, v19, v23
                v_or_b32 v16, v16, v20
                s_nop 0
                v_readfirstlane_b32 s{sT0}, v16
                s_nop 3
                s_cmp_lg_u32 s{sT0}, 0
                s_cbranch_scc1 {FBK}
                s_cmp_lg_u32 s{sWV}, 0
                s_cbranch_scc1 {sk}
                """)
                flag_store(WS_FO)
                g(f"{sk}:")
    assert nxt_load == 36
    g.ts(13)
    busy = {slot_of[x] for x in stages[5]}
    F = [T2[x] for x in range(len(T2)) if x not in busy][:6]
    g(f"v_add_u32 v28, 0x10000, v{vRB}\nv_add_u32 v29, 130048, v{vRB}")
    for k in range(4):
        g(f"v_lshlrev_b32 v{16+2*k}, 16, v{XRES+k}\nv_and_b32 v{17+2*k}, 0xffff0000, v{XRES+k}")
    rbase = [vRB, 28, 29]
    def blk(gq, src):
        p = gq*3 + (src - gq - 1) % 4
        b, o = lds_base(F[p // 2] + (p % 2)*4096)
        return rbase[b], o
    FIN = g.label("FIN")
    RD = 96
    for kq in range(4):
        nxt = g.label("FK")
        if kq < 3: g(f"s_cmp_lg_u32 s{sKQ}, {kq}\ns_cbranch_scc1 {nxt}")
        else: g("s_nop 1")
        for d in range(1, 4):
            gq = (kq + d) % 4
            v, o = blk(gq, kq)
            for u in range(2): g(f"ds_write_b128 v{v}, {vr(AC2+8*gq+4*u,4)} offset:{o + u*1024}")
        for e in range(8): g(f"v_mov_b32 v{120+e}, v{AC2+8*kq+e}")
        g("s_waitcnt lgkmcnt(0)\ns_barrier")
        for d in range(1, 4):
            v, o = blk(kq, (kq + d) % 4)
            for u in range(2): g(f"ds_read_b128 {vr(RD+8*(d-1)+4*u,4)}, v{v} offset:{o + u*1024}")
        if kq < 3: g(f"s_branch {FIN}\n{nxt}:")
    g(f"{FIN}:\ns_waitcnt lgkmcnt(4)")
    for e in range(8): g(f"v_add_f32 v{120+e}, v{120+e}, v{RD+e}")
    g("s_waitcnt lgkmcnt(0)")
    for e in range(8): g(f"v_add_f32 v{RD+8+e}, v{RD+8+e}, v{RD+16+e}")
    for e in range(8): g(f"v_add_f32 v{120+e}, v{120+e}, v{RD+8+e}")
    g("s_nop 1")
    for e in range(4): g(f"v_permlane32_swap_b32 v{120+e}, v{124+e}")
    g("s_nop 1")
    for e in range(8): g(f"v_add_f32 v{120+e}, v{120+e}, v{16+e}")
    for k in range(4): g(f"v_cvt_pk_bf16_f32 v{120+k}, v{120+2*k}, v{120+2*k+1}")
    g(f"buffer_store_dwordx4 {vr(120,4)}, v{vXO}, {srd(SOUT)}, s{sXO} offen")
    sk = g.label("EP")
    g(f"""
    s_or_b32 s{sT0}, s{sTB}, s{sHG}
    s_or_b32 s{sT0}, s{sT0}, s{sWV}
    s_cmp_lg_u32 s{sT0}, 0
    s_cbranch_scc1 {sk}
    v_mov_b32 v28, 0
    v_mov_b32 v29, s{sTAG}
    s_mov_b64 exec, 1
    buffer_store_dword v29, v28, {srd(SWS)}, 0 offen offset:{WS_EPOCH}
    s_mov_b64 exec, -1
    {sk}:
    """)
    if opt.TS:
        g.ts(14)
        g(f"""
        s_lshl_b32 s{sT0}, s2, 3
        s_add_u32 s{sT0}, s{sT0}, s{sWV}
        s_lshl_b32 s{sT0}, s{sT0}, 7
        s_add_u32 s{sT0}, s{sT0}, {WS_TSB}
        s_waitcnt vmcnt(0)
        """)
        g.ts(15)
        g(f"s_memrealtime s[{sT4}:{sT5}]\ns_waitcnt lgkmcnt(0)\ns_mov_b32 s{sTS+17}, s{sT4}")
        for k in range(18): g(f"v_mov_b32 v{32+k}, s{sTS+k}")
        g("v_mov_b32 v28, 0\ns_mov_b64 exec, 1")
        for k in range(5): g(f"buffer_store_dwordx4 {vr(32+4*k,4)}, v28, {srd(SWS)}, s{sT0} offen offset:{16*k}")
        if opt.DBG:
            sk = g.label("DB")
            g(f"v_not_b32 v30, v{32+16}\nglobal_atomic_umax v28, v{32+17}, s[22:23]\nglobal_atomic_umax v28, v30, s[22:23] offset:4")
            g(f"s_cmp_lg_u32 s2, {opt.DBG-1}\ns_cbranch_scc1 {sk}\ns_cmp_lg_u32 s{sWV}, 0\ns_cbranch_scc1 {sk}")
            for k in range(1, 14): g(f"v_sub_u32 v{32+k}, v{32+k}, v32\nglobal_store_dword v28, v{32+k}, s[22:23] offset:{4+4*k}")
            g(f"v_sub_u32 v47, v47, v32\nglobal_store_dword v28, v47, s[22:23] offset:60")
            g(f"{sk}:")
    g("s_endpgm")
    FL = g.label("FL")
    g(f"""
    {FBK}:
    s_mov_b32 s{sFB}, 1
    s_mov_b32 s{sT2}, {WS_KV}
    v_mov_b32 v{vMX}, 0xff800000
    s_waitcnt vmcnt(0) lgkmcnt(0)
    s_barrier
    """)
    g.vmreset()
    for c in range(3): kv_dma(c)
    for k in range(4): g(f"v_mov_b32 v{vQ+k}, v{vQC+k}")
    for r in range(16): g(f"v_mov_b32 v{vO+r}, 0")
    g(f"""
    {FL}:
    buffer_load_dwordx4 {vr(vK,4)}, v{vKG}, {srd(SWS)}, s{sT2} offen sc1
    buffer_load_dwordx4 {vr(vK1,4)}, v{vKG}, {srd(SWS)}, s{sT2} offen offset:2048 sc1
    s_waitcnt vmcnt(0)
    """)
    g(mfma(vS[0], vK, vQ, "0")); g(mfma(vS[1], vK1, vQ, "0"))
    g("s_nop 7\ns_nop 3")
    maxtree(False)
    g(f"s_add_u32 s{sT2}, s{sT2}, 4096\ns_cmp_lt_u32 s{sT2}, {WS_KV + 131072}\ns_cbranch_scc1 {FL}")
    finish_m(0.0)
    g("s_barrier")
    g(kread(0, vK)); v01(0)
    g(f"s_waitcnt lgkmcnt(0)\ns_branch {ATT}")
    g("L_END:\ns_endpgm")
    keep = g.l; g.l = []
    att_setup()
    setup = g.l; g.l = keep
    k = g.l.index("    " + SETUP_MARK)
    g.l[k:k+1] = setup
    body = g.text()
    hdr = open("parallel_sum__grouped_kv_mqa__dense_activation_relu__prompt.s.ref").read().split("; Override launch")[0]
    out = hdr + f"; @launch grid=(256,1,1) block=(512,1,1) lds={LDS_SIZE}\n"
    out += f""".amdgcn_target "amdgcn-amd-amdhsa--gfx950"
.text
.globl {NAME}
.p2align 8
.type {NAME},@function
{NAME}:
""" + body + f""".section .rodata,"a"
.p2align 6
.amdhsa_kernel {NAME}
  .amdhsa_next_free_vgpr 256
  .amdhsa_next_free_sgpr 102
  .amdhsa_accum_offset 256
  .amdhsa_group_segment_fixed_size 0
  .amdhsa_kernarg_size 88
  .amdhsa_user_sgpr_count 2
  .amdhsa_user_sgpr_kernarg_segment_ptr 1
  .amdhsa_system_sgpr_workgroup_id_x 1
.end_amdhsa_kernel
"""
    return out

if __name__ == "__main__":
    outp = sys.argv[1]
    for a in sys.argv[2:]:
        k, v = a.split("=")
        setattr(opt, k, type(getattr(opt, k))(eval(v)))
    open(outp, "w").write(build())
```

```python
import sys, struct
NAME = "parallel_sum__grouped_kv_mqa__dense_activation_relu__prompt_kernel"
fb = lambda x: struct.unpack("<I", struct.pack("<f", x))[0]

class Opt:
    TS = False; TSA = False; TSR = False
    BIAS = 88.0
    SPIN = 200000
    NPRE = 6
    KVPOLL_Q = 99
    WQ_AT = (-1, -1, -1, -1, 7, 7, 8, 8)
    W1_AT = (10, 10); WQA = -2
    F1_START = 0; QMID = 99; KVCHECK_AT = 4; KVPOLL_PRE = 1
    HFLAG_T = 28; HPOLL_T = 31; HCHECK_T = 34; F2_START = 42; NF2 = 14
    NH = 20
    P = (4, 8, 12); XP = (14, 16)
    NTAILPRE = 17
    HEP = (1, 2); HST = (1, 2, 3, 4)
    SLOT_D = 'CBX'; SLOT_H = 'AB'
    TOUCH3 = 1; T3_T = 16; W2_T0 = 21; W2_LIM = 36
    OLOAD_AT = 11
    SKIPDUP = 1; HLEAD = 20; HROT = 0; OUTF = ""
    TAILBAR = (1, 8, 14)
    X_UNTIL = 0; X_UPOS = 8; X_FB = 0
opt = Opt()

WS_EPOCH = 0; WS_FKV = 0x1000; WS_FH = 0x2000; WS_FO = 0x3000
WS_TSB = 0xC00000; WS_KV = 0x10000; WS_O = 0x40000; WS_H = 0x300000; WS_SIZE = 0x1000000

XN = 0; XPITCH = 1040; XN_END = 64*XPITCH
WQ = XN_END; KVR = XN_END
W1BASE = 99328
S1 = [132096, 146432, 99328, 113664]
STG = 146432; RARR = 162816; SYNC = 163072
KVS = [0, 16384, 8192, 24576]
LDS_SIZE = 163840
T2 = [i*8192 for i in range(8)] + [W1BASE + i*8192 for i in range(7)] + [KVR + i*8192 for i in range(4)]
NRES = 15

sRB = 3
sW2S, sXO = 14, 15
sTB, sHG, sWV, sTAG, sTH, sKQ = 26, 27, 28, 29, 30, 31
SX, SW1, SKV, SWS, SW2, SWO, SOUT = 32, 36, 40, 44, 48, 52, 56
SXO = 44
SWQ = 8
sROT = 4
sR, sK, sM1a, sM1b, sHS, sHS2 = 60, 61, 62, 63, 64, 65
sONE2, sLO, sHI, sJ = 66, 67, 68, 69
sVM = 70
sT0, sT1, sT2, sT3, sT4, sT5 = 72, 73, 74, 75, 76, 77
sOS = 22
sHB, sOB, sCNT, sW2B, sKVS, sKVL = 78, 79, 80, 81, 82, 83
sTS = 84
def srd(b): return f"s[{b}:{b+3}]"
def vr(b, n): return f"v[{b}:{b+n-1}]" if n > 1 else f"v{b}"

class Gen:
    def __init__(self): self.l = []; self.nl = 0; self.vm = []; self.done = -1
    def __call__(self, s):
        for x in s.strip("\n").split("\n"):
            x = x.strip()
            if x: self.l.append(("" if x.endswith(":") else "    ") + x)
    def label(self, p="L"):
        self.nl += 1; return f"{p}_{self.nl}"
    def vmop(self, s, tag=None):
        self(s); self.vm.append(tag)
    def vmneed(self, tags):
        idx = -1
        for tag in tags:
            c = [i for i, t in enumerate(self.vm) if t == tag]
            assert c, tag
            idx = max(idx, c[-1])
        return idx
    def vmwait(self, *tags, extra=""):
        idx = self.vmneed(tags)
        if idx <= self.done:
            if extra: self(f"s_waitcnt {extra}")
            return
        n = len(self.vm) - 1 - idx
        assert n <= 63, n
        self.done = idx
        self(f"s_waitcnt vmcnt({n}) {extra}")
    def ts(self, i, att=False):
        if opt.X_UNTIL and i == opt.X_UPOS and not att:
            l = self.label("U")
            self(f"{l}:\ns_memrealtime s[98:99]\ns_waitcnt lgkmcnt(0)\ns_sub_u32 s98, s98, s100\ns_cmp_lt_u32 s98, {opt.X_UNTIL}\ns_cbranch_scc1 {l}")
        if opt.TS and (att == opt.TSA or i in (0, 15)):
            if opt.TSR: self(f"s_memrealtime s[{sTS+14}:{sTS+15}]\ns_waitcnt lgkmcnt(0)\ns_sub_u32 s{sTS+14}, s{sTS+14}, s{sTS+16}\ns_mul_i32 s{sTS+14}, s{sTS+14}, 10\ns_add_u32 s{sTS+i}, s{sTS+14}, s{sTS}")
            else: self(f"s_memtime s[{sTS+14}:{sTS+15}]\ns_waitcnt lgkmcnt(0)\ns_mov_b32 s{sTS+i}, s{sTS+14}")
    def text(self): return "\n".join(self.l) + "\n"

def mfma(d, a, b, c):
    cs = vr(c, 16) if isinstance(c, int) else c
    return f"v_mfma_f32_32x32x16_bf16 {vr(d,16)}, {vr(a,4)}, {vr(b,4)}, {cs}"
def mfma16(d, a, b, c):
    cs = vr(c, 4) if isinstance(c, int) else c
    return f"v_mfma_f32_16x16x32_bf16 {vr(d,4)}, {vr(a,4)}, {vr(b,4)}, {cs}"
def smf(d, a, b, idx): return f"v_smfmac_f32_32x32x32_bf16 {vr(d,16)}, {vr(a,4)}, {vr(b,8)}, v{idx}"

def build():
    g = Gen()
    NPRE = opt.NPRE
    vL, vX, vL16, vB, vA1, vA1b, vW1a, vW1b, vXW, vKB, vKA = 1, 2, 3, 4, 5, 6, 7, 8, 9, 10, 11
    vRT = 12
    vQ, vK, vK1, FB, vV0, vV1, vO, vC, vS, FA = 16, 20, 24, 32, 36, [40, 44], 48, 64, [80, 96], 112
    vKA2, vVA, vIDX, vW2, vG0, vG1, vG2, vT3, vXO, vRB, vWQ, vROW = range(120, 132)
    FACC, HB = 132, 164
    vQAa, vQB, vWQ2, vKR, vJ = 240, 241, 242, 243, 255
    XR, WK, KB, KD = 32, 164, 64, 228
    g(f"""
    s_cmp_ge_u32 s2, 256
    s_cbranch_scc1 L_END
    s_load_dwordx16 s[4:19], s[0:1], 0
    s_load_dwordx2 s[20:21], s[0:1], 64
    s_load_dwordx2 s[24:25], s[0:1], 80
    """)
    if opt.TS: g(f"s_memtime s[{sTS}:{sTS+1}]\ns_memrealtime s[{sTS+16}:{sTS+17}]")
    if opt.X_UNTIL: g("s_memrealtime s[100:101]")
    g(f"""
    v_lshrrev_b32 v16, 6, v0
    s_lshr_b32 s{sJ}, s2, 3
    s_mov_b32 s{SW1+3}, 0x20000
    v_readfirstlane_b32 s{sWV}, v16
    s_getpc_b64 s[{SW1}:{SW1+1}]
    L_PC:
    s_mov_b32 s{SW1+2}, L_END-L_PC
    v_and_b32 v17, 1, v0
    v_lshl_add_u32 v16, v16, 1, v17
    v_lshlrev_b32 v16, 7, v16
    s_lshl_b32 s{sT1}, s{sJ}, 11
    buffer_load_dword v{vJ}, v16, {srd(SW1)}, s{sT1} offen
    v_and_b32 v{vL}, 63, v0
    s_and_b32 s{sT0}, s2, 7
    s_lshr_b32 s{sTB}, s{sT0}, 1
    s_and_b32 s{sR}, s{sJ}, 7
    s_lshl3_add_u32 s{sTB}, s{sTB}, s{sR}
    s_and_b32 s{sT0}, s{sT0}, 1
    s_lshr_b32 s{sT2}, s{sJ}, 3
    s_lshl2_add_u32 s{sHG}, s{sT0}, s{sT2}
    s_and_b32 s{sTH}, s{sWV}, 1
    s_lshr_b32 s{sKQ}, s{sWV}, 1
    s_lshl2_add_u32 s{sRB}, s{sTH}, s{sKQ}
    s_add_u32 s{sRB}, s{sRB}, s{sHG}
    s_and_b32 s{sRB}, s{sRB}, 7
    s_lshl_b32 s{sT2}, s{sRB}, 3
    v_lshrrev_b32 v22, 3, v{vL}
    v_add_u32 v{vROW}, s{sT2}, v22
    v_lshlrev_b32 v16, 10, v{vROW}
    v_and_b32 v17, 7, v0
    v_lshl_add_u32 v{vX}, v17, 4, v16
    v_lshlrev_b32 v{vL16}, 4, v{vL}
    v_mul_u32_u24 v16, {XPITCH}, v{vROW}
    v_lshl_add_u32 v{vXW}, v17, 4, v16
    v_bfe_u32 v16, v{vL}, 3, 1
    v_lshlrev_b32 v16, 2, v16
    v_xor_b32 v16, s{sHG}, v16
    v_lshl_add_u32 v{vKR}, v16, 3, v17
    v_mul_u32_u24 v16, {XPITCH}, v{vKR}
    v_lshrrev_b32 v18, 4, v{vL}
    v_lshl_add_u32 v{vKB}, v18, 4, v16
    v_bfe_u32 v19, v{vL}, 2, 2
    v_lshl_add_u32 v16, v18, 3, v19
    v_lshlrev_b32 v16, 5, v16
    v_and_b32 v20, 3, v{vL}
    v_lshl_add_u32 v16, v20, 3, v16
    v_add_u32 v{vKA}, {STG}, v16
    v_bfe_u32 v16, v{vL}, 4, 1
    v_lshrrev_b32 v21, 1, v17
    v_xor_b32 v16, v16, v21
    s_lshl_b32 s{sT1}, s{sWV}, 3
    v_add_u32 v21, s{sT1}, v22
    v_lshlrev_b32 v21, 10, v21
    v_lshl_add_u32 v21, v16, 5, v21
    v_and_b32 v16, 1, v{vL}
    v_lshl_add_u32 v21, v16, 4, v21
    s_lshl_b32 s{sT1}, s{sHG}, 7
    v_add_u32 v{vWQ}, s{sT1}, v21
    s_lshl_b32 s{sT0}, s{sTB}, 16
    s_lshl_b32 s{sT2}, s{sR}, 7
    """ + "".join(f"s_add_u32 s{SXO+n}, s{sT2}, {n*128}\ns_and_b32 s{SXO+n}, s{SXO+n}, 0x380\ns_or_b32 s{SXO+n}, s{SXO+n}, s{sT0}\n" for n in range(8)) + f"""
    s_mov_b32 s{SX+2}, 0x200000
    s_mov_b32 s{SX+3}, 0x20000
    s_movk_i32 s{SKV+2}, 16384
    s_mov_b32 s{SKV+3}, 0x20000
    s_and_b32 s{sT1}, s{sWV}, 3
    s_lshl2_add_u32 s{sT1}, s{sJ}, s{sT1}
    s_lshl_b32 s{sT1}, s{sT1}, 7
    s_lshl_b32 s{sT4}, s{sTH}, 13
    s_add_u32 s{sT4}, s{sT4}, {STG}
    s_lshl2_add_u32 s{sT5}, s{sTH}, s{sR}
    v_mov_b32 v22, {SYNC}
    v_mov_b32 v23, 0
    s_lshl1_add_u32 s{sT0}, s{sTB}, s{sTH}
    s_lshl_b32 s{sOB}, s{sT0}, 15
    s_add_u32 s{sOB}, s{sOB}, {WS_O}
    s_lshl2_add_u32 s{sT2}, s{sHG}, s{sKQ}
    s_lshl_b32 s{sT2}, s{sT2}, 10
    s_add_u32 s{sOS}, s{sT2}, s{sOB}
    s_mov_b32 s{SOUT+2}, {WS_SIZE}
    s_mov_b32 s{SOUT+3}, 0x20000
    v_mov_b32 v24, -1
    v_mov_b32 v25, -1
    v_mov_b32 v26, -1
    v_mov_b32 v27, -1
    s_bitcmp0_b32 s{sHG}, 2
    s_waitcnt lgkmcnt(0)
    s_cselect_b32 s{SKV}, s8, s10
    s_cselect_b32 s{SKV+1}, s9, s11
    s_mov_b32 s{SX}, s4
    s_mov_b32 s{SX+1}, s5
    s_mov_b32 s{SOUT}, s24
    s_mov_b32 s{SOUT+1}, s25
    buffer_load_dword v{vJ}, off, {srd(SKV)}, s{sT1}
    """)
    def xloads():
        for i in range(8): g(f"buffer_load_dwordx4 {vr(XR+4*i,4)}, v{vX}, {srd(SX)}, s{SXO+i} offen")
    sentinel = f"buffer_store_dwordx4 v[24:27], v{vL16}, {srd(SOUT)}, s{sOS} offen sc1"
    lb, lj = g.label("X"), g.label("X")
    g(f"s_cmp_ge_u32 s{sWV}, 2\ns_cbranch_scc1 {lb}")
    xloads()
    for i in range(4):
        g(f"s_add_u32 m0, s{sT4}, {i*2048}\ns_add_u32 s{sT1}, s{sT5}, {i}\ns_and_b32 s{sT1}, s{sT1}, 7\ns_lshl_b32 s{sT1}, s{sT1}, 11")
        for u in range(2): g(f"buffer_load_dwordx4 v{vL16}, {srd(SKV)}, s{sT1} offen offset:{u*1024} lds")
    g(f"ds_write_b32 v22, v23\ns_waitcnt lgkmcnt(0)\ns_barrier\ns_branch {lj}\n{lb}:\ns_barrier")
    xloads()
    g(f"{lj}:\n{sentinel}\ns_load_dword s{sTAG}, s[24:25], {WS_EPOCH}")
    g(f"""
    s_mov_b32 s{SWQ}, s6
    s_mov_b32 s{SWQ+1}, s7
    s_mov_b32 s{SWQ+2}, 0x80000
    s_mov_b32 s{SWQ+3}, 0x20000
    s_mov_b32 s{SW1}, s16
    s_mov_b32 s{SW1+1}, s17
    s_mov_b32 s{SW1+2}, {512*3584}
    s_mov_b32 s{SWS}, s24
    s_mov_b32 s{SWS+1}, s25
    s_mov_b32 s{SWS+2}, {WS_SIZE}
    s_mov_b32 s{SWS+3}, 0x20000
    s_mov_b32 s{SW2}, s18
    s_mov_b32 s{SW2+1}, s19
    s_mov_b32 s{SW2+2}, {1792*1024}
    s_mov_b32 s{SW2+3}, 0x20000
    s_mov_b32 s{SWO}, s12
    s_mov_b32 s{SWO+1}, s13
    s_mov_b32 s{SWO+2}, 0x80000
    s_mov_b32 s{SWO+3}, 0x20000
    s_mov_b32 s{sONE2}, 0x3f803f80
    s_mov_b32 s{sLO}, 0x00003f80
    s_mov_b32 s{sHI}, 0x3f800000
    s_mov_b32 s{sVM}, 0x0000ffff
    s_mov_b32 s{sVM+1}, 0x0000ffff
    s_lshl_b32 s{sKVL}, s{sWV}, 10
    s_add_u32 s{sKVS}, s{sKVL}, {WS_KV}
    s_add_u32 s{sKVL}, s{sKVL}, {KVR}
    s_mul_i32 s{sK}, s{sR}, {64*3584}
    s_min_u32 s{sT3}, s{sWV}, 6
    s_lshl_b32 s{sM1a}, s{sT3}, 10
    s_add_u32 s{sT0}, s{sWV}, 8
    s_cmp_lt_u32 s{sWV}, 6
    s_cselect_b32 s{sT0}, s{sT0}, 7
    s_lshl_b32 s{sM1b}, s{sT0}, 10
    s_mul_i32 s{sT1}, s{sHG}, 448
    s_movk_i32 s{sT2}, 2341
    """)
    for dst, sm in ((vW1a, sT3), (vW1b, sT0)):
        g(f"""
        v_lshl_add_u32 v16, s{sm}, 6, v{vL}
        v_mul_lo_u32 v17, v16, s{sT2}
        v_lshrrev_b32 v17, 16, v17
        v_mul_u32_u24 v21, 28, v17
        v_sub_u32 v16, v16, v21
        v_mul_u32_u24 v17, 3584, v17
        v_lshl_add_u32 v16, v16, 4, v17
        v_add_u32 v{dst}, s{sT1}, v16
        """)
    g(f"""
    v_lshrrev_b32 v21, 5, v{vL}
    v_bfe_u32 v22, v{vL}, 4, 1
    v_lshl_add_u32 v16, v21, 3, v19
    v_mul_u32_u24 v16, 448, v16
    v_lshl_add_u32 v16, v22, 5, v16
    v_lshl_add_u32 v16, v20, 3, v16
    s_lshl_b32 s{sT0}, s{sKQ}, 7
    s_add_u32 s{sT0}, s{sT0}, {W1BASE}
    v_add_u32 v{vA1}, s{sT0}, v16
    s_cmp_lt_u32 s{sKQ}, 3
    s_cselect_b32 s{sT0}, 64, 0
    v_add_u32 v{vA1b}, s{sT0}, v{vA1}
    v_and_b32 v16, 31, v{vL}
    s_lshl_b32 s{sT0}, s{sTH}, 5
    v_add_u32 v17, s{sT0}, v16
    v_mul_u32_u24 v17, {XPITCH}, v17
    v_lshl_add_u32 v{vB}, v21, 4, v17
    v_lshlrev_b32 v16, 10, v16
    v_lshl_add_u32 v{vXO}, v21, 4, v16
    v_and_b32 v23, 15, v{vL}
    v_add_u32 v17, s{sT0}, v23
    v_mul_u32_u24 v17, {XPITCH}, v17
    v_lshl_add_u32 v{vQB}, v18, 8, v17
    v_xor_b32 v{vWQ2}, 64, v{vWQ}
    v_bfe_u32 v16, v{vL}, 3, 1
    v_lshl_or_b32 v16, v22, 1, v16
    v_xor_b32 v16, s{sKQ}, v16
    v_lshlrev_b32 v16, 5, v16
    v_lshl_add_u32 v16, v18, 14, v16
    v_lshl_add_u32 v16, v19, 7, v16
    v_lshl_add_u32 v16, v20, 3, v16
    v_add_u32 v{vQAa}, {WQ}, v16
    v_bfe_u32 v16, v{vL}, 3, 2
    v_lshlrev_b32 v17, 9, v16
    v_lshrrev_b32 v16, 1, v16
    v_xor_b32 v16, v16, v21
    v_lshl_add_u32 v17, v16, 7, v17
    v_and_b32 v16, 7, v{vL}
    v_lshl_add_u32 v17, v16, 4, v17
    v_add_u32 v{vKA2}, {KVR}, v17
    v_lshlrev_b32 v17, 9, v21
    v_lshl_add_u32 v17, v23, 4, v17
    v_add_u32 v{vVA}, {KVR + 256}, v17
    v_mov_b32 v{vIDX}, 0xdddddddd
    v_lshrrev_b32 v16, 2, v{vL}
    v_lshlrev_b32 v16, 10, v16
    v_lshl_add_u32 v{vT3}, v20, 7, v16
    v_lshl_add_u32 v16, v20, 4, v16
    s_lshl_b32 s{sT0}, s{sHG}, 7
    s_lshl_b32 s{sT1}, s{sTH}, 6
    s_add_u32 s{sT0}, s{sT0}, s{sT1}
    v_add_u32 v{vW2}, s{sT0}, v16
    v_lshlrev_b32 v16, 6, v19
    v_lshl_add_u32 v16, v22, 5, v16
    v_lshl_add_u32 v16, v20, 3, v16
    v_lshl_add_u32 v16, v21, 8, v16
    s_lshl_b32 s{sT0}, s{sKQ}, 11
    v_add_u32 v{vG0}, s{sT0}, v16
    v_add_u32 v{vG1}, {XN_END}, v{vG0}
    v_add_u32 v{vG2}, {W1BASE}, v{vG0}
    s_lshl_b32 s{sW2B}, s{sTH}, 10
    s_add_u32 s{sW2B}, s{sW2B}, s{sT0}
    s_lshl1_add_u32 s{sT0}, s{sTB}, s{sTH}
    s_mul_i32 s{sT2}, s{sT0}, 112
    s_mul_i32 s{sT1}, s{sKQ}, 28
    s_add_u32 s{sHB}, s{sT2}, s{sT1}
    s_lshl_b32 s{sHB}, s{sHB}, 10
    s_add_u32 s{sHB}, s{sHB}, {WS_H}
    s_mul_i32 s{sT1}, s{sHG}, 14
    s_add_u32 s{sT2}, s{sT2}, s{sT1}
    s_lshl2_add_u32 s{sT2}, s{sKQ}, s{sT2}
    s_lshl_b32 s{sHS}, s{sT2}, 10
    s_add_u32 s{sHS}, s{sHS}, {WS_H}
    s_cmp_lt_u32 s{sKQ}, 3
    s_cselect_b32 s{sHS2}, s{sHS}, 0x7f000000
    s_lshl_b32 s{sXO}, s{sT0}, 15
    s_lshl_b32 s{sT1}, s{sHG}, 7
    s_add_u32 s{sXO}, s{sXO}, s{sT1}
    s_lshl_b32 s{sT1}, s{sKQ}, 5
    s_add_u32 s{sXO}, s{sXO}, s{sT1}
    s_mul_i32 s{sW2S}, s{sKQ}, {28*16384}
    s_lshl_b32 s{sT0}, s{sTH}, 11
    v_add_u32 v{vRB}, s{sT0}, v{vL16}
    """)
    def wq_dma(i):
        g(f"s_add_u32 m0, s{sKVL}, {i*8192}\ns_add_u32 s{sT0}, s{sR}, {i}\ns_and_b32 s{sT0}, s{sT0}, 7\ns_lshl_b32 s{sT0}, s{sT0}, 16")
        g.vmop(f"buffer_load_dwordx4 v{vWQ2 if (i >> 1) & 1 else vWQ}, {srd(SWQ)}, s{sT0} offen lds", ("wq", i))
    def w1_dma(c, half):
        if half == 0:
            g(f"s_add_u32 m0, s{sM1a}, {S1[c % 4]}\ns_nop 0")
            g.vmop(f"buffer_load_dwordx4 v{vW1a}, {srd(SW1)}, s{sK} offen lds", ("w1", c))
        else:
            g(f"s_add_u32 m0, s{sM1b}, {S1[c % 4]}\ns_add_u32 s{sT0}, s{sK}, {32*3584}")
            g.vmop(f"buffer_load_dwordx4 v{vW1b}, {srd(SW1)}, s{sK} offen lds", ("w1", c))
            g(f"s_sub_u32 s{sK}, s{sT0}, s{SW1+2}\ns_cselect_b32 s{sK}, s{sT0}, s{sK}")
    a0, a1, vM, vD, E, Q2 = 12, 13, 14, 15, 16, 24
    def dpp_reduce(v):
        for m in ("quad_perm:[1,0,3,2]", "quad_perm:[2,3,0,1]", "row_half_mirror"):
            g(f"s_nop 1\nv_add_f32_dpp v{v}, v{v}, v{v} {m} row_mask:0xf bank_mask:0xf")
    def issue_at(pos):
        for i in range(8):
            if opt.WQ_AT[i] == pos: wq_dma(i)
        for c in range(2):
            if opt.W1_AT[c] == pos:
                l7, lj_ = g.label("W7"), g.label("W7")
                g(f"s_cmp_eq_u32 s{sWV}, 7\ns_cbranch_scc1 {l7}")
                w1_dma(c, 0); w1_dma(c, 1)
                g(f"s_branch {lj_}\n{l7}:\ns_add_u32 s{sT0}, s{sK}, {32*3584}")
                for _ in range(2): g(f"buffer_load_dword v{vJ}, off, {srd(SW1)}, s{sHS2}")
                g(f"s_sub_u32 s{sK}, s{sT0}, s{SW1+2}\ns_cselect_b32 s{sK}, s{sT0}, s{sK}\n{lj_}:")
    def layernorm(cls):
        ny = 9 if cls == 0 else 1
        if cls:
            n0 = len(g.vm); issue_at(-2); ny += len(g.vm) - n0
        g(f"v_mov_b32 v{a0}, 0\nv_mov_b32 v{a1}, 0\ns_waitcnt vmcnt({ny+4})")
        g.ts(1)
        for j in range(16): g(f"v_dot2_f32_bf16 v{a0+(j&1)}, v{XR+j}, s{sONE2}, v{a0+(j&1)}")
        g(f"s_waitcnt vmcnt({ny})")
        for j in range(16, 32): g(f"v_dot2_f32_bf16 v{a0+(j&1)}, v{XR+j}, s{sONE2}, v{a0+(j&1)}")
        for r in range(4): g(f"v_mov_b32 v{Q2+r}, 0")
        g(f"v_add_f32 v{a0}, v{a0}, v{a1}")
        dpp_reduce(a0)
        g(f"""
        v_mul_f32 v{a0}, 0x3b000000, v{a0}
        v_cvt_pk_bf16_f32 v{vM}, v{a0}, v{a0}
        v_and_b32 v{vM}, 0xffff0000, v{vM}
        v_sub_f32 v{vD}, v{a0}, v{vM}
        v_xor_b32 v{vM}, 0x80000000, v{vM}
        """)
        if cls: issue_at(-1)
        pend = []
        for i in range(8):
            for jj in range(4):
                j = XR + 4*i + jj
                g(f"v_dot2_f32_bf16 v{E+2*jj}, v{j}, s{sLO}, v{vM}\nv_dot2_f32_bf16 v{E+2*jj+1}, v{j}, s{sHI}, v{vM}")
            for jj in range(4):
                j = XR + 4*i + jj
                acc = Q2 + 2*(jj & 1)
                g(f"v_pk_fma_f32 {vr(acc,2)}, {vr(E+2*jj,2)}, {vr(E+2*jj,2)}, {vr(acc,2)}\nv_cvt_pk_bf16_f32 v{j}, v{E+2*jj}, v{E+2*jj+1}")
            g(f"ds_write_b128 v{vXW}, {vr(XR+4*i,4)} offset:{XN + i*128}")
            if cls: issue_at(i)
        g(f"v_pk_add_f32 {vr(Q2,2)}, {vr(Q2,2)}, {vr(Q2+2,2)}\nv_add_f32 v{a0}, v{Q2}, v{Q2+1}")
        dpp_reduce(a0)
        g(f"""
        v_mul_f32 v{a0}, 0x3b000000, v{a0}
        v_fma_f32 v{a0}, -v{vD}, v{vD}, v{a0}
        v_max_f32 v{a0}, 0, v{a0}
        v_cvt_pk_bf16_f32 v{a0}, v{a0}, v{a0}
        v_and_b32 v{a0}, 0xffff0000, v{a0}
        v_add_f32 v{a0}, 0x3727c5ac, v{a0}
        v_cvt_pk_bf16_f32 v{a0}, v{a0}, v{a0}
        v_and_b32 v{a0}, 0xffff0000, v{a0}
        v_sqrt_f32 v{a0}, v{a0}
        v_lshlrev_b32 v{E}, 2, v{vROW}
        v_cvt_pk_bf16_f32 v{a0}, v{a0}, v{a0}
        v_and_b32 v{a0}, 0xffff0000, v{a0}
        v_rcp_f32 v{a1}, v{a0}
        v_add_u32 v{E}, {RARR}, v{E}
        ds_write_b32 v{E}, v{a1}
        """)
        g.ts(2)
    lB, lJ = g.label("LB"), g.label("LJ")
    g(f"s_cmp_ge_u32 s{sWV}, 2\ns_cbranch_scc1 {lB}")
    layernorm(0)
    lw0, lk, lv, lsp, lgo = g.label("KW"), g.label("KV"), g.label("KV"), g.label("KS"), g.label("KG")
    g(f"""
    v_mov_b32 v22, {SYNC}
    s_cmp_eq_u32 s{sWV}, 0
    s_cbranch_scc1 {lw0}
    v_mov_b32 v23, 1
    s_waitcnt vmcnt(1) lgkmcnt(0)
    ds_write_b32 v22, v23
    s_branch {lk}
    {lw0}:
    v_lshlrev_b32 v16, 2, v{vKR}
    v_add_u32 v16, {RARR}, v16
    v_lshrrev_b32 v19, 4, v{vL}
    v_lshrrev_b32 v21, 1, v19
    v_lshlrev_b32 v17, 2, v21
    v_xor_b32 v17, s{sHG}, v17
    v_and_b32 v18, 15, v{vL}
    v_lshlrev_b32 v18, 4, v18
    v_lshl_add_u32 v18, v17, 9, v18
    v_and_b32 v28, 1, v19
    v_lshl_add_u32 v18, v28, 3, v18
    v_lshlrev_b32 v17, 5, v17
    v_lshl_add_u32 v17, v28, 4, v17
    v_add_u32 v17, {RARR}, v17
    s_lshr_b32 s{sT1}, s{sHG}, 1
    v_xor_b32 v20, s{sT1}, v19
    v_and_b32 v20, 1, v20
    v_lshlrev_b32 v20, 7, v20
    v_lshl_add_u32 v20, v21, 3, v20
    v_lshrrev_b32 v21, 3, v{vKR}
    v_lshl_add_u32 v20, v21, 9, v20
    v_and_b32 v21, 7, v{vL}
    v_lshl_add_u32 v20, v21, 4, v20
    s_lshl_b32 s{sT0}, s{sTB}, 12
    s_add_u32 s{sT0}, s{sT0}, {WS_KV}
    s_mov_b32 s{sCNT}, 0
    s_waitcnt vmcnt(1)
    """)
    for s in range(8):
        for q in range(2): g(f"ds_read_b64_tr_b16 {vr(WK+4*s+2*q,2)}, v{vKA} offset:{s*1024+q*128}")
    g(f"""
    {lsp}:
    ds_read_b32 v23, v22
    s_add_u32 s{sCNT}, s{sCNT}, 1
    s_waitcnt lgkmcnt(0)
    v_readfirstlane_b32 s{sT1}, v23
    s_cmp_gt_u32 s{sCNT}, {opt.SPIN}
    s_cbranch_scc1 {lgo}
    s_cmp_eq_u32 s{sT1}, 0
    s_cbranch_scc1 {lsp}
    {lgo}:
    """)
    for s in range(7): g(f"ds_read_b128 {vr(KB+4*s,4)}, v{vKB} offset:{XN + s*64}")
    g(f"s_bitcmp0_b32 s{sHG}, 2\ns_cbranch_scc0 {lv}")
    for role in range(2):
        q = []
        for s in range(7, 16):
            if s >= 8: q.append([f"ds_read_b64_tr_b16 {vr(WK+4*s+2*u,2)}, v{vKA} offset:{s*1024+u*128}" for u in range(2)] + [f"ds_read_b128 {vr(KB+4*(s%8),4)}, v{vKB} offset:{XN + s*64}"])
            else: q.append([f"ds_read_b128 {vr(KB+4*s,4)}, v{vKB} offset:{XN + s*64}"])
        issued = [("b", s) for s in range(7)]
        for s in range(16):
            idx = max(i for i, x in enumerate(issued) if x == ("b", s))
            g(f"s_waitcnt lgkmcnt({min(15, len(issued) - 1 - idx)})")
            g(mfma16(KD, WK+4*s, KB+4*(s%8), KD if s else "0") if role == 0 else mfma16(KD, KB+4*(s%8), WK+4*s, KD if s else "0"))
            k = s + 7
            if k < 16 and (k < 8 or k - 8 <= s):
                for x in q[k-7]: g(x); issued.append(("b", k))
            if s == 9: g(f"ds_read_b32 v24, v16" if role == 0 else f"ds_read_b128 v[24:27], v17"); issued.append("r")
        g("s_waitcnt lgkmcnt(0)\ns_nop 6")
        for k in range(4): g(f"v_mul_f32 v{KD+k}, v{KD+k}, v{24 if role == 0 else 24+k}")
        g(f"v_cvt_pk_bf16_f32 v{KD}, v{KD}, v{KD+1}\nv_cvt_pk_bf16_f32 v{KD+1}, v{KD+2}, v{KD+3}")
        if role == 0: g(f"buffer_store_dwordx2 {vr(KD,2)}, v20, {srd(SWS)}, s{sT0} offen sc1\ns_branch {lk}\n{lv}:")
        else: g(f"buffer_store_dwordx2 {vr(KD,2)}, v18, {srd(SWS)}, s{sT0} offen offset:256 sc1")
    g(f"{lk}:")
    g.ts(4)
    order = sorted(set(opt.WQ_AT) | set(opt.W1_AT))
    for pos in order:
        if opt.WQA <= pos <= 8: issue_at(pos)
    sk = g.label("KF")
    g(f"s_cmp_lg_u32 s{sWV}, 0\ns_cbranch_scc1 {sk}\ns_waitcnt vmcnt({len(g.vm)}) lgkmcnt(0)\ns_add_u32 s{sT1}, s{sTAG}, 1")
    g(f"""
    s_lshl3_add_u32 s{sT0}, s{sTB}, s{sHG}
    s_lshl_b32 s{sT0}, s{sT0}, 4
    s_add_u32 s{sT0}, s{sT0}, {WS_FKV}
    v_mov_b32 v31, s{sT1}
    s_mov_b64 exec, 1
    buffer_store_dword v31, off, {srd(SWS)}, s{sT0} sc1
    s_mov_b64 exec, -1
    {sk}:
    """)
    g.ts(5)
    vmA = list(g.vm); g.vm = []
    g(f"s_branch {lJ}\n{lB}:")
    layernorm(1)
    issue_at(8)
    assert vmA == g.vm
    g(f"""
    {lJ}:
    s_lshl_b32 s{sT0}, s{sTH}, 7
    s_add_u32 s{sT0}, s{sT0}, {RARR}
    v_and_b32 v16, 31, v{vL}
    v_lshl_add_u32 v16, v16, 2, s{sT0}
    v_and_b32 v18, 15, v{vL}
    v_lshl_add_u32 v17, v18, 2, s{sT0}
    s_mov_b32 s{SOUT}, s20
    s_mov_b32 s{SOUT+1}, s21
    s_mov_b32 s{SOUT+2}, 0x200000
    """)
    issue_at(9)
    g.vmwait(("wq", 7), extra="lgkmcnt(0)")
    g(f"s_add_u32 s{sTAG}, s{sTAG}, 1\ns_barrier")
    g.ts(3)
    issue_at(10)
    g(f"ds_read_b32 v{vRT}, v16\nds_read_b32 v{vRT+1}, v16\nds_read_b32 v14, v17\nds_read_b32 v15, v17 offset:64")
    def flag_store(base):
        g(f"""
        s_lshl3_add_u32 s{sT0}, s{sTB}, s{sHG}
        s_lshl_b32 s{sT0}, s{sT0}, 4
        s_add_u32 s{sT0}, s{sT0}, {base}
        v_mov_b32 v31, s{sTAG}
        s_mov_b64 exec, 1
        buffer_store_dword v31, off, {srd(SWS)}, s{sT0} sc1
        s_mov_b64 exec, -1
        """)
    def check_or_spin(loads, regs):
        done, lab = g.label("PD"), g.label("PL")
        g(f"s_mov_b32 s{sCNT}, 0\n{lab}:")
        for r in regs: g(f"v_xor_b32 v{r}, s{sTAG}, v{r}")
        for r in regs[1:]: g(f"v_or_b32 v{regs[0]}, v{regs[0]}, v{r}")
        g(f"""
        v_cmp_ne_u32 vcc, 0, v{regs[0]}
        s_nop 4
        s_cbranch_vccz {done}
        s_add_u32 s{sCNT}, s{sCNT}, 1
        s_cmp_gt_u32 s{sCNT}, {opt.SPIN}
        s_cbranch_scc1 {done}
        s_sleep 8
        """)
        for s in loads: g(s)
        g(f"s_waitcnt vmcnt(0)\ns_branch {lab}\n{done}:")
    kvpoll = [f"buffer_load_dword v{20+k}, v{vL16}, {srd(SWS)}, s{sT1} offen offset:{k*1024} sc1" for k in range(4)]
    QA, QBf, D0 = 64, 80, 232
    def q_reads(s):
        return [f"ds_read_b64_tr_b16 {vr(QA+4*(s%4)+2*q,2)}, v{vQAa} offset:{s*1024+q*512}" for q in range(2)] + \
               [f"ds_read_b128 {vr(QBf+8*(s%4)+4*u,4)}, v{vQB} offset:{XN + u*16*XPITCH + s*16}" for u in range(2)]
    def kv_dma(c):
        g(f"s_add_u32 m0, s{sKVL}, {KVS[c%4]}\ns_add_u32 s{sT0}, s{sKVS}, {c*8192}")
        g.vmop(f"buffer_load_dwordx4 v{vL16}, {srd(SWS)}, s{sT0} offen sc1 lds", ("kv", c))
    def poll_issue():
        sk = g.label("KP")
        g(f"s_cmp_lg_u32 s{sWV}, 7\ns_cbranch_scc1 {sk}\ns_mov_b32 s{sT1}, {WS_FKV}")
        for x in kvpoll: g(x)
        g(f"{sk}:")
        poll_mark[0] = len(g.vm)
    poll_mark = [0]
    if opt.KVPOLL_Q < 0: poll_issue()
    for s in range(3):
        for x in q_reads(s): g(x)
    for s in range(16):
        if s == opt.QMID:
            sk = g.label("KC")
            g(f"s_cmp_lg_u32 s{sWV}, 7\ns_cbranch_scc1 {sk}\ns_waitcnt vmcnt(0)")
            check_or_spin(kvpoll, list(range(20, 24)))
            g(f"{sk}:\ns_barrier")
            kv_dma(0); kv_dma(1)
        g(f"s_waitcnt lgkmcnt({4*min(2, 15-s)})")
        rd = q_reads(s+3) if s + 3 < 16 else []
        for u in range(2):
            g(mfma16(D0+4*u, QA+4*(s%4), QBf+8*(s%4)+4*u, D0+4*u if s else "0"))
            for x in rd[2*u:2*u+2]: g(x)
        if s < 4:
            for r in range(4): g(f"v_mov_b32 v{vO+4*s+r}, 0")
        if s == 4: g(f"v_and_b32 v30, 27, v{vL}\nv_cmp_eq_u32 vcc, 16, v30\nv_mov_b32 v30, s{sONE2}\ns_nop 0\nv_cndmask_b32 v30, 0, v30, vcc")
        if 5 <= s < 8:
            for r in range(4): g(f"v_mov_b32 v{vV0+4*(s-5)+r}, v30")
        if s == opt.KVPOLL_Q: poll_issue()
    cb = fb(0.25 * 1.4426950408889634)
    g(f"v_mul_f32 v14, {cb:#x}, v14\nv_mul_f32 v15, {cb:#x}, v15\ns_nop 5")
    for u in range(2):
        for r in range(4): g(f"v_mul_f32 v{D0+4*u+r}, v{D0+4*u+r}, v{14+u}")
    for u in range(2):
        for r in range(2): g(f"v_cvt_pk_bf16_f32 v{vQ+2*u+r}, v{D0+4*u+2*r}, v{D0+4*u+2*r+1}")
    g("s_nop 1")
    for r in range(2): g(f"v_permlane16_swap_b32 v{vQ+r}, v{vQ+2+r}")
    g("s_nop 0")
    for r in range(2): g(f"v_permlane32_swap_b32 v{vQ+r}, v{vQ+2+r}")
    g.ts(6)
    def f1_reads(kappa, fb_, fa):
        c, ks = kappa // 2, kappa % 2
        o = S1[c % 4] - W1BASE + ks*7168
        return [[f"ds_read_b64_tr_b16 {vr(fa+2*q,2)}, v{vA1} offset:{o + q*1792}" for q in range(2)],
                [f"ds_read_b64_tr_b16 {vr(fa+4+2*q,2)}, v{vA1b} offset:{o + q*1792}" for q in range(2)] + [f"ds_read_b128 {vr(fb_,4)}, v{vB} offset:{XN + kappa*32}"]]
    PF = lambda kappa: 164 + 12*(kappa % 4)
    assert opt.QMID >= 8 and (NPRE == 0 or opt.F1_START == 0)
    if NPRE: g.vmwait(("w1", 0))
    else: g.vmwait(("kv", 1))
    g("s_barrier")
    g.ts(7)
    nkv = 0
    if opt.QMID < 16: kv_dma(2); nkv = 3
    for c in (2, 3): w1_dma(c, 0); w1_dma(c, 1)
    if NPRE:
        for kappa in range(2):
            for grp in f1_reads(kappa, PF(kappa), PF(kappa)+4):
                for x in grp: g(x)
    for j in range(NPRE):
        if j + 1 < NPRE: g.vmwait(("w1", j+1), extra="lgkmcnt(0)")
        else: g("s_waitcnt lgkmcnt(0)")
        if opt.QMID >= 16 and j == opt.KVCHECK_AT:
            sk = g.label("KC")
            g(f"s_cmp_lg_u32 s{sWV}, 7\ns_cbranch_scc1 {sk}\ns_waitcnt vmcnt({len(g.vm) - poll_mark[0]})")
            check_or_spin(kvpoll, list(range(20, 24)))
            g(f"{sk}:")
        g("s_barrier")
        if opt.QMID >= 16 and j == opt.KVPOLL_PRE: poll_issue()
        rd = []
        if j + 1 < NPRE:
            for kappa in (2*j+2, 2*j+3):
                for grp in f1_reads(kappa, PF(kappa), PF(kappa)+4): rd += grp
        jobs = []
        if opt.QMID >= 16 and j >= opt.KVCHECK_AT:
            for _ in range((3 - nkv + (NPRE - j) - 1) // (NPRE - j)): jobs.append(lambda c=nkv: kv_dma(c)); nkv += 1
        jobs += [lambda: w1_dma(j+4, 0), lambda: w1_dma(j+4, 1)]
        n = 0
        for kappa in (2*j, 2*j+1):
            for T in range(2):
                g(mfma(FACC+16*T, PF(kappa)+4+4*T, PF(kappa), FACC+16*T if kappa else "0"))
                if n < 3:
                    for x in rd[n*len(rd)//3:(n+1)*len(rd)//3]: g(x)
                for jb in jobs[n*len(jobs)//4:(n+1)*len(jobs)//4]: jb()
                n += 1
    if opt.F1_START == 0:
        g.vmwait(("w1", NPRE + 1), ("kv", 1))
        g("s_barrier")
    g.ts(8)
    if opt.HROT:
        for u in range(4):
            g(f"""
            s_add_u32 s{sT0}, s{sHG}, {u}
            s_and_b32 s{sT0}, s{sT0}, 3
            s_sub_u32 s{sT0}, s{sT0}, {u}
            s_mul_i32 s{sT1}, s{sT0}, {7*16384}
            s_add_u32 s{sROT+u}, s{sT1}, s{sW2S}
            s_mul_i32 s{sT1}, s{sT0}, {7*1024}
            s_add_u32 s{sROT+4+u}, s{sT1}, s{sHB}
            """)
    g(f"s_cmp_lt_u32 s{sKQ}, 3\ns_cselect_b64 vcc, -1, 0")
    def kread(t, dst): return f"ds_read_b128 {vr(dst,4)}, v{vKA2} offset:{KVS[(t//4)%4] + (t%4)*2048}"
    def vread(t, u, dst): return f"ds_read_b128 {vr(dst,4)}, v{vVA} offset:{KVS[(t//4)%4] + (t%4)*2048 + u*1024}"
    def v01(t):
        g(f"s_mov_b64 exec, s[{sVM}:{sVM+1}]"); g(vread(t, 0, vV0)); g(vread(t, 1, vV1[t & 1])); g("s_mov_b64 exec, -1")
    g(kread(0, vK)); g(kread(1, vK1))
    v01(0)
    g("s_waitcnt lgkmcnt(2)")
    g(mfma(vS[0], vK, vQ, "0")); g(mfma(vS[1], vK1, vQ, "0"))
    g("s_nop 7\ns_nop 2")
    vMX = 28
    def maxtree(first, n=32):
        regs = list(range(vS[0], vS[0]+n))
        if first: g(f"v_max3_f32 v{vMX}, v{regs[0]}, v{regs[1]}, v{regs[2]}\nv_max_f32 v{vMX}, v{vMX}, v{regs[3]}"); regs = regs[4:]
        for k in range(0, len(regs), 2): g(f"v_max3_f32 v{vMX}, v{vMX}, v{regs[k]}, v{regs[k+1]}")
    def finish_m(bias):
        g(f"""
        v_mov_b32 v31, v{vMX}
        s_nop 1
        v_permlane32_swap_b32 v31, v{vMX}
        s_nop 1
        v_max_f32 v{vMX}, v{vMX}, v31
        v_add_f32 v{vMX}, {fb(bias):#x}, v{vMX}
        v_xor_b32 v{vC}, 0x80000000, v{vMX}
        """)
        for r in range(1, 16): g(f"v_mov_b32 v{vC+r}, v{vC}")
    maxtree(True)
    finish_m(opt.BIAS)
    g("s_nop 1")
    g(mfma(vS[0], vK, vQ, vC))
    g(kread(1, vK))
    g("s_nop 7\ns_nop 2")
    def w2_dma(step, slot):
        g(f"s_add_u32 m0, s{sW2B}, {T2[slot]}")
        if step < 28:
            if opt.HROT: g(f"s_add_u32 s{sT0}, s{sROT + step//7}, {step*16384}")
            else: g(f"s_add_u32 s{sT0}, s{sW2S}, {step*16384}")
            S = SW2
        else:
            g(f"s_lshl_b32 s{sT0}, s{sKQ}, 17\ns_add_u32 s{sT0}, s{sT0}, {(step-28)*16384}"); S = SWO
        g.vmop(f"buffer_load_dwordx4 v{vW2}, {srd(S)}, s{sT0} offen lds", ("w2", step))
    slot_of = {}
    def lds_base(off):
        return (0, off) if off < XN_END else ((1, off - XN_END) if off < W1BASE else (2, off - W1BASE))
    def a_reads(step, fa):
        b, o = lds_base(T2[slot_of[step]])
        return [[f"ds_read_b64_tr_b16 {vr(fa+4*n+2*q,2)}, v{vG0+b} offset:{o + n*1024 + q*512}" for q in range(2)] for n in range(2)]
    HR = lambda i: HB + 4*(i % opt.NH)
    def h_load(i):
        if i == 28: g(f"s_lshl_b32 s{sHB}, s{sKQ}, 13\ns_add_u32 s{sHB}, s{sHB}, s{sOB}")
        elif opt.HROT:
            if i % 7 in (0, 4): g(f"s_add_u32 s{sHB}, s{sROT + 4 + i//7}, {i*1024}")
            g.vmop(f"buffer_load_dwordx4 {vr(HR(i),4)}, v{vL16}, {srd(SWS)}, s{sHB} offen offset:{(i%7%4)*1024} sc1", ("h", i))
            return
        elif i and i % 4 == 0: g(f"s_add_u32 s{sHB}, s{sHB}, 4096")
        g.vmop(f"buffer_load_dwordx4 {vr(HR(i),4)}, v{vL16}, {srd(SWS)}, s{sHB} offen offset:{(i%4)*1024} sc1", ("h", i))
    hpoll = [f"buffer_load_dword v29, v30, {srd(SWS)}, s{sT1} offen sc1"]
    def pair_flag_addr(base):
        g(f"""
        s_lshl2_add_u32 s{sT1}, s{sTB}, s{sKQ}
        s_lshl_b32 s{sT1}, s{sT1}, 5
        s_add_u32 s{sT1}, s{sT1}, {base}
        v_and_b32 v30, 16, v{vL16}
        """)
    def touch3():
        a, b = g.label("T3"), g.label("T3")
        g(f"""
        s_lshr_b32 s{sT0}, s{sHG}, 2
        s_lshl_b32 s{sT0}, s{sT0}, 9
        s_cmp_eq_u32 s{sWV}, 7
        s_cbranch_scc1 {a}
        s_lshl_b32 s{sT1}, s{sWV}, 5
        s_add_u32 s{sT1}, s{sT1}, s{sJ}
        s_lshl_b32 s{sT1}, s{sT1}, 13
        s_add_u32 s{sT0}, s{sT0}, s{sT1}
        s_mov_b32 exec_hi, 0
        buffer_load_dword v{vJ}, v{vT3}, {srd(SW2)}, s{sT0} offen
        s_mov_b64 exec, -1
        s_branch {b}
        {a}:
        s_lshl_b32 s{sT1}, s{sJ}, 14
        s_add_u32 s{sT0}, s{sT0}, s{sT1}
        buffer_load_dword v{vJ}, v{vT3}, {srd(SWO)}, s{sT0} offen
        {b}:
        """)
        g.vm.append("touch")
    F1 = opt.F1_START; assert F1 % 4 == 0
    R1 = F1 + 32 - 2*NPRE
    F2 = opt.F2_START; NF2 = opt.NF2
    assert F2 + NF2 <= 64
    freeslots = []; nxt_w2 = 0; nxt_h = 0
    w2_open = False
    p2, pm, p1 = opt.P
    for t in range(64):
        c = t // 4
        S = vS[t & 1]; Sn = vS[(t+1) & 1]
        ex = lambda k: f"v_exp_f32 v{S+k}, v{S+k}"
        top = (t % 4 == 0 and t > 0)
        xm = [None, None]; xr = [[], []]
        if F1 + 1 <= t <= R1:
            xm = [mfma(FACC+16*T, FA+4*T, FB, FACC+16*T if (NPRE or t > F1 + 1) else "0") for T in range(2)]
        if F1 <= t < R1: xr = f1_reads(2*NPRE + t - F1, FB, FA)
        st = t - F2
        if 0 <= st < NF2:
            xm = [mfma(FACC+16*n, FA+4*n, HR(st), FACC+16*n if st else "0") for n in range(2)]
        rd_step = st + 1 if -1 <= st < NF2 - 1 else None
        jobs = []
        if t % 4 == 0 and c + 3 < 16: jobs.append(lambda: kv_dma(c + 3))
        cf = c - F1//4
        pc = NPRE + 2*(cf + 1)
        if cf >= 1 and pc < 16 and t % 4 < 2:
            jobs += [lambda: w1_dma(pc + t % 4, 0), lambda: w1_dma(pc + t % 4, 1)]
        if opt.TOUCH3 and t == opt.T3_T: jobs.append(touch3)
        if t == opt.HPOLL_T: jobs.append(lambda: (pair_flag_addr(WS_FH), g.vmop(hpoll[0], "hpoll")))
        hjobs = []
        nh = 0
        if t > opt.HCHECK_T:
            while nxt_h < 28 and nh < (2 if nxt_h < st + opt.HLEAD else 1) and nxt_h - opt.NH < st - 1:
                hjobs.append(lambda i=nxt_h: h_load(i)); nxt_h += 1; nh += 1
        def slot(name):
            sd = sorted(opt.SLOT_D[min(i, len(opt.SLOT_D)-1)] for i in range(len(jobs)))
            for i, jb in enumerate(jobs):
                if sd[i] == name: jb()
            sh = sorted(opt.SLOT_H[min(i, len(opt.SLOT_H)-1)] for i in range(len(hjobs)))
            for i, jb in enumerate(hjobs):
                if sh[i] == name: jb()
        for k in range(0, p2): g(ex(k))
        if t > 0: g(smf(vO, vV1[(t-1) & 1], vS[(t-1) & 1] + 8, vIDX))
        if top:
            need = []
            if c + 1 < 16: need.append(("kv", c+1))
            if 0 <= cf and NPRE + 2*cf + 1 < 16: need.append(("w1", NPRE + 2*cf + 1))
            for s_ in range(4*c - F2 + 1, 4*c - F2 + 5):
                if 0 <= s_ < NF2: need.append(("w2", s_))
            if t == opt.HFLAG_T: need.append("hst")
            if c == 15: need += [("w2", s_) for s_ in range(NF2, min(28, NF2 + opt.NTAILPRE)) if ("w2", s_) in g.vm]
            if need: g.vmwait(*need, extra="lgkmcnt(0)")
            else: g("s_waitcnt lgkmcnt(0)")
            g("s_barrier")
            g.vis = g.done
            if c < 14: g.ts(c, True)
            if t == opt.HFLAG_T:
                sk = g.label("HF")
                g(f"s_cmp_lg_u32 s{sWV}, 0\ns_cbranch_scc1 {sk}")
                flag_store(WS_FH)
                g(f"{sk}:")
            if not w2_open and t >= R1:
                w2_open = True; freeslots += list(range(NRES))
            for s_ in range(4*(c-1) - F2 + 1, 4*(c-1) - F2 + 5):
                if 0 <= s_ < NF2: freeslots.append(slot_of[s_])
            g(f"s_setprio {3 - t % 4}")
        else:
            g(f"s_setprio {3 - t % 4}\ns_waitcnt lgkmcnt(0)")
        if freeslots and nxt_w2 < opt.W2_LIM and len(jobs) < 2 and t >= opt.W2_T0:
            slot_of[nxt_w2] = freeslots.pop(0)
            jobs.append(lambda s_=nxt_w2: w2_dma(s_, slot_of[s_])); nxt_w2 += 1
        if rd_step is not None: xr = a_reads(rd_step, FA)
        slot('A')
        for k in range(p2, pm): g(ex(k))
        if t + 1 < 64: g(mfma(Sn, vK, vQ, vC))
        if t + 2 < 64: g(kread(t+2, vK))
        slot('B')
        for k in range(pm, p1): g(ex(k))
        g(smf(vO, vV0, S, vIDX))
        if t + 1 < 64: v01(t+1)
        slot('C')
        if t == opt.HCHECK_T:
            g.vmwait("hpoll")
            check_or_spin(hpoll, [29])
        for k in range(p1, opt.XP[0]): g(ex(k))
        if 0 <= st < NF2: g.vmwait(("h", st))
        if xm[0]: g(xm[0])
        for x in xr[0]: g(x)
        slot('X')
        for k in range(opt.XP[0], opt.XP[1]): g(ex(k))
        if opt.SKIPDUP and F1 <= t <= R1:
            sk = g.label("SD")
            g(f"s_cbranch_vccz {sk}")
            if xm[1]: g(xm[1])
            for x in xr[1][:2]: g(x)
            g(f"{sk}:")
            for x in xr[1][2:]: g(x)
        else:
            if xm[1]: g(xm[1])
            for x in xr[1]: g(x)
        slot('Y')
        for k in range(opt.XP[1], 16): g(ex(k))
        for T in range(2):
            a = FACC + 16*T
            if t == R1 + opt.HEP[T]:
                for k in range(8): g(f"v_pk_mul_f32 {vr(a+2*k,2)}, {vr(a+2*k,2)}, {vr(vRT,2)}")
                for k in range(8): g(f"v_cvt_pk_bf16_f32 v{a+k}, v{a+2*k}, v{a+2*k+1}")
                for k in range(8): g(f"v_pk_max_i16 v{a+k}, v{a+k}, 0")
            for u in range(2):
                if t == R1 + opt.HST[2*T+u]:
                    g.vmop(f"buffer_store_dwordx4 {vr(a+4*u,4)}, v{vL16}, {srd(SWS)}, s{sHS+T} offen offset:{(2*T+u)*1024} sc1", "hst")
    XRES = 24
    g.vmop(f"buffer_load_dwordx4 {vr(XRES,4)}, v{vXO}, {srd(SX)}, s{sXO} offen", "xres")
    g("s_nop 0")
    g(smf(vO, vV1[1], vS[1] + 8, vIDX))
    g.ts(9)
    FBK, ONORM = g.label("FBK"), g.label("ON")
    while nxt_h < 28: h_load(nxt_h); nxt_h += 1
    g(f"""
    s_nop 2
    v_mov_b32 v30, {fb(2.0**115):#x}
    v_mov_b32 v31, {fb(2.0**126):#x}
    s_nop 6
    v_add_f32 v28, |v{vO}|, |v{vO+1}|
    """)
    for k in range(2, 8): g(f"v_add_f32 v28, v28, |v{vO+k}|")
    g(f"""
    v_cmp_lt_f32 vcc, v{vO+8}, v30
    v_cmp_lt_f32 s[{sT0}:{sT1}], v28, v31
    s_nop 3
    s_and_b64 vcc, vcc, s[{sT0}:{sT1}]
    s_cmp_eq_u64 vcc, {0 if opt.X_FB else -1}
    s_cbranch_scc0 {FBK}
    {ONORM}:
    v_rcp_f32 v29, v{vO+8}
    s_nop 0
    """)
    for k in range(8): g(f"v_mul_f32 v{vO+k}, v{vO+k}, v29")
    for k in range(4): g(f"v_cvt_pk_bf16_f32 v{vO+k}, v{vO+2*k}, v{vO+2*k+1}")
    g.vmop(f"buffer_store_dwordx4 {vr(vO,4)}, v{vL16}, {srd(SWS)}, s{sOS} offen sc1", "ost")
    AF = [80, 88, 96]
    def tail_reads(step): return [x for grp in a_reads(step, AF[step % 3]) for x in grp]
    visible = lambda s_: ("w2", s_) in g.vm and g.vmneed([("w2", s_)]) <= g.vis
    hs = list(range(NF2, 28))
    oregs = [36, 40, 44, 52, 56, 60, 64, 68]
    def o_loads():
        g(f"s_lshl_b32 s{sT2}, s{sKQ}, 13\ns_add_u32 s{sT2}, s{sT2}, s{sOB}\ns_add_u32 s{sT3}, s{sT2}, 4096")
        return [f"buffer_load_dwordx4 {vr(oregs[i],4)}, v{vL16}, {srd(SWS)}, s{sT2 + i//4} offen offset:{(i%4)*1024} sc1" for i in range(8)]
    seq = hs + list(range(28, 36))
    def rd(i):
        assert visible(seq[i]) or (("w2", seq[i]) in g.vm and g.vmneed([("w2", seq[i])]) <= g.vis), ("not visible", seq[i])
        for x in tail_reads(seq[i]): g(x)
    done_steps = set(range(NF2))
    bars = [b for b in opt.TAILBAR if b < len(seq)]
    pend_dma = []
    rd(0); rd(1)
    for i, s_ in enumerate(seq):
        if i in bars:
            nb = min([b for b in bars if b > i] + [len(seq)])
            need = [("w2", seq[k]) for k in range(i + 2, min(nb + 2, len(seq)))]
            need = [x for x in need if x in g.vm]
            if need: g.vmwait(*need)
            g("s_barrier")
            g.vis = g.done
            used = {slot_of[x] for x in slot_of if x not in done_steps}
            fs = [x for x in range(len(T2)) if x not in used]
            while nxt_w2 < 36 and fs:
                slot_of[nxt_w2] = fs.pop(0); pend_dma.append(nxt_w2); nxt_w2 += 1
        if i == min(opt.OLOAD_AT, len(hs)):
            g.ts(10)
            ol = o_loads()
            for k, x in enumerate(ol): g.vmop(x, ("o", k))
        if i == len(hs):
            g.ts(11)
            g.vmwait(("o", 7))
            done, lab = g.label("OD"), g.label("OL")
            g(f"s_mov_b32 s{sCNT}, 0\n{lab}:")
            allr = [r + k for r in oregs for k in range(4)]
            g(f"v_max3_u32 v28, v{allr[0]}, v{allr[1]}, v{allr[2]}\nv_max3_u32 v29, v{allr[3]}, v{allr[4]}, v{allr[5]}")
            for k in range(6, 32, 2): g(f"v_max3_u32 v{28 + (k//2) % 2}, v{28 + (k//2) % 2}, v{allr[k]}, v{allr[k+1]}")
            g(f"""
            v_max_u32 v28, v28, v29
            v_cmp_eq_u32 vcc, -1, v28
            s_nop 4
            s_cbranch_vccz {done}
            s_add_u32 s{sCNT}, s{sCNT}, 1
            s_cmp_gt_u32 s{sCNT}, {opt.SPIN}
            s_cbranch_scc1 {done}
            s_sleep 4
            """)
            for x in ol: g(x)
            g(f"s_waitcnt vmcnt(0)\ns_branch {lab}\n{done}:")
            g.ts(12)
        if i + 2 < len(seq): rd(i + 2)
        if s_ < 28: g.vmwait(("h", s_))
        g(f"s_waitcnt lgkmcnt({4*min(2, len(seq)-1-i)})")
        b = HR(s_) if s_ < 28 else oregs[s_ - 28]
        for n in range(2):
            g(mfma(FACC+16*n, AF[s_ % 3]+4*n, b, FACC+16*n if s_ else "0"))
            for _ in range(2):
                if pend_dma:
                    x = pend_dma.pop(0); w2_dma(x, slot_of[x])
        done_steps.add(s_)
    g.ts(13)
    busy = {slot_of[x] for x in seq}
    F = [T2[x] for x in range(len(T2)) if x not in busy][:6]
    if len(F) < 6:
        g('s_barrier'); F = T2[:6]
    g(f"v_add_u32 v28, {XN_END}, v{vRB}\nv_add_u32 v29, {W1BASE}, v{vRB}")
    g.vmwait("xres")
    for k in range(4): g(f"v_lshlrev_b32 v{16+2*k}, 16, v{XRES+k}\nv_and_b32 v{17+2*k}, 0xffff0000, v{XRES+k}")
    rbase = [vRB, 28, 29]
    def blk(gq, src):
        p = gq*3 + (src - gq - 1) % 4
        b, o = lds_base(F[p // 2] + (p % 2)*4096)
        return rbase[b], o
    FIN = g.label("FIN")
    RD, OW = 64, 104
    for kq in range(4):
        nxt = g.label("FK")
        if kq < 3: g(f"s_cmp_lg_u32 s{sKQ}, {kq}\ns_cbranch_scc1 {nxt}")
        else: g("s_nop 1")
        for d in range(1, 4):
            gq = (kq + d) % 4
            v, o = blk(gq, kq)
            for u in range(2): g(f"ds_write_b128 v{v}, {vr(FACC+8*gq+4*u,4)} offset:{o + u*1024}")
        for e in range(8): g(f"v_mov_b32 v{OW+e}, v{FACC+8*kq+e}")
        g("s_waitcnt lgkmcnt(0)\ns_barrier")
        for d in range(1, 4):
            v, o = blk(kq, (kq + d) % 4)
            for u in range(2): g(f"ds_read_b128 {vr(RD+8*(d-1)+4*u,4)}, v{v} offset:{o + u*1024}")
        if kq < 3: g(f"s_branch {FIN}\n{nxt}:")
    g(f"{FIN}:\ns_waitcnt lgkmcnt(4)")
    for e in range(8): g(f"v_add_f32 v{OW+e}, v{OW+e}, v{RD+e}")
    g("s_waitcnt lgkmcnt(0)")
    for e in range(8): g(f"v_add_f32 v{RD+8+e}, v{RD+8+e}, v{RD+16+e}")
    for e in range(8): g(f"v_add_f32 v{OW+e}, v{OW+e}, v{RD+8+e}")
    g("s_nop 1")
    for e in range(4): g(f"v_permlane32_swap_b32 v{OW+e}, v{OW+4+e}")
    g("s_nop 1")
    for e in range(8): g(f"v_add_f32 v{OW+e}, v{OW+e}, v{16+e}")
    for k in range(4): g(f"v_cvt_pk_bf16_f32 v{OW+k}, v{OW+2*k}, v{OW+2*k+1}")
    g(f"buffer_store_dwordx4 {vr(OW,4)}, v{vXO}, {srd(SOUT)}, s{sXO} offen {opt.OUTF}")
    sk = g.label("EP")
    g(f"""
    s_or_b32 s{sT0}, s{sTB}, s{sHG}
    s_or_b32 s{sT0}, s{sT0}, s{sWV}
    s_cmp_lg_u32 s{sT0}, 0
    s_cbranch_scc1 {sk}
    v_mov_b32 v29, s{sTAG}
    s_mov_b64 exec, 1
    buffer_store_dword v29, off, {srd(SWS)}, 0 offset:{WS_EPOCH}
    s_mov_b64 exec, -1
    {sk}:
    """)
    if opt.TS:
        g(f"""
        s_lshl_b32 s{sT0}, s2, 3
        s_add_u32 s{sT0}, s{sT0}, s{sWV}
        s_lshl_b32 s{sT0}, s{sT0}, 7
        s_add_u32 s{sT0}, s{sT0}, {WS_TSB}
        s_memtime s[{sT2}:{sT3}]
        s_waitcnt vmcnt(0)
        s_memtime s[{sT4}:{sT5}]
        s_waitcnt lgkmcnt(0)
        s_mov_b32 s{sTS+14}, s{sT2}
        s_mov_b32 s{sTS+15}, s{sT4}
        s_memrealtime s[{sT4}:{sT5}]
        s_waitcnt lgkmcnt(0)
        s_mov_b32 s{sTS+17}, s{sT4}
        """)
        for k in range(18): g(f"v_mov_b32 v{32+k}, s{sTS+k}")
        g("v_mov_b32 v28, 0\ns_mov_b64 exec, 1")
        for k in range(5): g(f"buffer_store_dwordx4 {vr(32+4*k,4)}, v28, {srd(SWS)}, s{sT0} offen offset:{16*k}")
    g("s_endpgm")
    L1, L2 = g.label("FL"), g.label("FL")
    g(f"""
    {FBK}:
    v_subrev_u32 v30, {KVR}, v{vKA2}
    v_subrev_u32 v29, {KVR}, v{vVA}
    s_mov_b32 s{sT2}, {WS_KV}
    v_mov_b32 v{vMX}, 0xff800000
    {L1}:
    buffer_load_dwordx4 {vr(vK,4)}, v30, {srd(SWS)}, s{sT2} offen sc1
    s_waitcnt vmcnt(0)
    """)
    g(mfma(vS[0], vK, vQ, "0"))
    g("s_nop 7\ns_nop 3")
    maxtree(False, 16)
    g(f"s_add_u32 s{sT2}, s{sT2}, 2048\ns_cmp_lt_u32 s{sT2}, {WS_KV + 131072}\ns_cbranch_scc1 {L1}")
    finish_m(0.0)
    for r in range(16): g(f"v_mov_b32 v{vO+r}, 0")
    g(f"""
    s_mov_b32 s{sT2}, {WS_KV}
    {L2}:
    buffer_load_dwordx4 {vr(vK,4)}, v30, {srd(SWS)}, s{sT2} offen sc1
    s_mov_b64 exec, s[{sVM}:{sVM+1}]
    buffer_load_dwordx4 {vr(vV0,4)}, v29, {srd(SWS)}, s{sT2} offen sc1
    buffer_load_dwordx4 {vr(vV1[0],4)}, v29, {srd(SWS)}, s{sT2} offen offset:1024 sc1
    s_mov_b64 exec, -1
    s_waitcnt vmcnt(0)
    """)
    g(mfma(vS[0], vK, vQ, vC))
    g("s_nop 7\ns_nop 3")
    for k in range(16): g(f"v_exp_f32 v{vS[0]+k}, v{vS[0]+k}")
    g("s_nop 1")
    g(smf(vO, vV0, vS[0], vIDX)); g(smf(vO, vV1[0], vS[0]+8, vIDX))
    g(f"s_add_u32 s{sT2}, s{sT2}, 2048\ns_cmp_lt_u32 s{sT2}, {WS_KV + 131072}\ns_cbranch_scc1 {L2}")
    g(f"s_nop 7\ns_nop 3\ns_branch {ONORM}")
    g("L_END:\ns_endpgm")
    body = g.text()
    hdr = open("parallel_sum__grouped_kv_mqa__dense_activation_relu__prompt.s.ref").read().split("; Override launch")[0]
    out = hdr + f"; @launch grid=(256,1,1) block=(512,1,1) lds={LDS_SIZE}\n"
    out += f""".amdgcn_target "amdgcn-amd-amdhsa--gfx950"
.text
.globl {NAME}
.p2align 8
.type {NAME},@function
{NAME}:
""" + body + f""".section .rodata,"a"
.p2align 6
.amdhsa_kernel {NAME}
  .amdhsa_next_free_vgpr 256
  .amdhsa_next_free_sgpr 102
  .amdhsa_accum_offset 256
  .amdhsa_group_segment_fixed_size 0
  .amdhsa_kernarg_size 88
  .amdhsa_user_sgpr_count 2
  .amdhsa_user_sgpr_kernarg_segment_ptr 1
  .amdhsa_system_sgpr_workgroup_id_x 1
.end_amdhsa_kernel
"""
    return out

if __name__ == "__main__":
    outp = sys.argv[1]
    for a in sys.argv[2:]:
        k, v = a.split("=", 1)
        assert hasattr(opt, k), k
        setattr(opt, k, eval(v))
    open(outp, "w").write(build())
```

```python
import sys, struct
NAME = "parallel_sum__grouped_kv_mqa__dense_activation_relu__prompt_kernel"
fb = lambda x: struct.unpack("<I", struct.pack("<f", x))[0]

class Opt:
    TS = False; TSA = False; TSR = False
    BIAS = 100.0
    SPIN = 200000
    NPRE = 6
    KVPOLL_Q = 99
    WQ_AT = (-1, -1, -1, -1, 7, 7, 8, 8)
    W1_AT = (10, 10); WQA = -2; BW_AT = None; WQA_EARLY = 0
    F1_START = 0; QMID = 99; KVCHECK_AT = 3; KVPOLL_PRE = 1
    HFLAG_T = 28; HPOLL_T = 31; HCHECK_T = 34; F2_START = 42; NF2 = 14
    NH = 20
    P = (4, 8, 12); XP = (14, 16)
    NTAILPRE = 17
    HEP = (1, 2); HST = (1, 2, 3, 4)
    SLOT_D = 'CBX'; SLOT_H = 'AB'
    TOUCH3 = 1; T3_T = 16; W2_T0 = 21; W2_LIM = 36
    OLOAD_AT = 11
    PROLOG_IN = 1; OSPLIT = 1; TSP = (2, 4); NWQ1 = 8; QTOUCH = 1; QTW = 7
    SKIPDUP = 1; HLEAD = 20; HROT = 0; OUTF = ""
    TAILBAR = (1, 8, 12)
    X_UNTIL = 0; X_UPOS = 8; X_FB = 0
opt = Opt()

WS_EPOCH = 0; WS_FKV = 0x1000; WS_FH = 0x2000; WS_FO = 0x3000
WS_TSB = 0xC00000; WS_KV = 0x10000; WS_O = 0x40000; WS_H = 0x300000; WS_SIZE = 0x1000000

XN = 0; XPITCH = 1040; XN_END = 64*XPITCH
WQ = XN_END; KVR = XN_END
W1BASE = 99328
S1 = [132096, 146432, 99328, 113664]
STG = 146432; RARR = 162816; SYNC = 163072
KVS = [0, 16384, 8192, 24576]
LDS_SIZE = 163840
T2 = [i*8192 for i in range(8)] + [W1BASE + i*8192 for i in range(7)] + [KVR + i*8192 for i in range(4)]
NRES = 15

sRB = 3
sW2S, sXO = 14, 15
sTB, sHG, sWV, sTAG, sTH, sKQ = 26, 27, 28, 29, 30, 31
SX, SW1, SKV, SWS, SW2, SWO, SOUT = 32, 36, 40, 44, 48, 52, 56
SXO = 44
SWQ = 8
sROT = 4
sR, sK, sM1a, sM1b, sHS, sHS2 = 60, 61, 62, 63, 64, 65
sONE2, sLO, sHI, sJ = 66, 67, 68, 69
sVM = 70
sT0, sT1, sT2, sT3, sT4, sT5 = 72, 73, 74, 75, 76, 77
sOS = 22
sHB, sOB, sCNT, sW2B, sKVS, sKVL = 78, 79, 80, 81, 82, 83
sTS = 84
def srd(b): return f"s[{b}:{b+3}]"
def vr(b, n): return f"v[{b}:{b+n-1}]" if n > 1 else f"v{b}"

class Gen:
    def __init__(self): self.l = []; self.nl = 0; self.vm = []; self.done = -1
    def __call__(self, s):
        for x in s.strip("\n").split("\n"):
            x = x.strip()
            if x: self.l.append(("" if x.endswith(":") else "    ") + x)
    def label(self, p="L"):
        self.nl += 1; return f"{p}_{self.nl}"
    def vmop(self, s, tag=None):
        self(s); self.vm.append(tag)
    def vmneed(self, tags):
        idx = -1
        for tag in tags:
            c = [i for i, t in enumerate(self.vm) if t == tag]
            assert c, tag
            idx = max(idx, c[-1])
        return idx
    def vmwait(self, *tags, extra=""):
        idx = self.vmneed(tags)
        if idx <= self.done:
            if extra: self(f"s_waitcnt {extra}")
            return
        n = len(self.vm) - 1 - idx
        assert n <= 63, n
        self.done = idx
        self(f"s_waitcnt vmcnt({n}) {extra}")
    def ts(self, i, att=False):
        if opt.X_UNTIL and i == opt.X_UPOS and not att:
            l = self.label("U")
            self(f"{l}:\ns_memrealtime s[98:99]\ns_waitcnt lgkmcnt(0)\ns_sub_u32 s98, s98, s100\ns_cmp_lt_u32 s98, {opt.X_UNTIL}\ns_cbranch_scc1 {l}")
        if opt.TS and (att == opt.TSA or i in (0, 15)):
            if opt.TSR: self(f"s_memrealtime s[{sTS+14}:{sTS+15}]\ns_waitcnt lgkmcnt(0)\ns_sub_u32 s{sTS+14}, s{sTS+14}, s{sTS+16}\ns_mul_i32 s{sTS+14}, s{sTS+14}, 10\ns_add_u32 s{sTS+i}, s{sTS+14}, s{sTS}")
            else: self(f"s_memtime s[{sTS+14}:{sTS+15}]\ns_waitcnt lgkmcnt(0)\ns_mov_b32 s{sTS+i}, s{sTS+14}")
    def text(self): return "\n".join(self.l) + "\n"

def mfma(d, a, b, c):
    cs = vr(c, 16) if isinstance(c, int) else c
    return f"v_mfma_f32_32x32x16_bf16 {vr(d,16)}, {vr(a,4)}, {vr(b,4)}, {cs}"
def mfma16(d, a, b, c):
    cs = vr(c, 4) if isinstance(c, int) else c
    return f"v_mfma_f32_16x16x32_bf16 {vr(d,4)}, {vr(a,4)}, {vr(b,4)}, {cs}"
def smf(d, a, b, idx): return f"v_smfmac_f32_32x32x32_bf16 {vr(d,16)}, {vr(a,4)}, {vr(b,8)}, v{idx}"

def build():
    g = Gen()
    NPRE = opt.NPRE
    vL, vX, vL16, vB, vA1, vA1b, vW1a, vW1b, vXW, vKB, vKA = 1, 2, 3, 4, 5, 6, 7, 8, 9, 10, 11
    vRT = 12
    vQ, vK, vK1, FB, vV0, vV1, vO, vC, vS, FA = 16, 20, 24, 32, 36, [40, 44], 48, 64, [80, 96], 112
    vKA2, vVA, vIDX, vW2, vG0, vG1, vG2, vT3, vXO, vRB, vWQ, vROW = range(120, 132)
    FACC, HB = 132, 164
    vQAa, vQB, vWQ2, vKR, vJ = 240, 241, 242, 243, 255
    XR, WK, KB, KD = 32, 164, 64, 228
    g(f"""
    s_cmp_ge_u32 s2, 256
    s_cbranch_scc1 L_END
    s_load_dwordx16 s[4:19], s[0:1], 0
    s_load_dwordx2 s[20:21], s[0:1], 64
    s_load_dwordx2 s[24:25], s[0:1], 80
    """)
    if opt.TS: g(f"s_memtime s[{sTS}:{sTS+1}]\ns_memrealtime s[{sTS+16}:{sTS+17}]")
    if opt.X_UNTIL: g("s_memrealtime s[100:101]")
    g(f"""
    v_lshrrev_b32 v16, 6, v0
    s_lshr_b32 s{sJ}, s2, 3
    s_mov_b32 s{SW1+3}, 0x20000
    v_readfirstlane_b32 s{sWV}, v16
    s_getpc_b64 s[{SW1}:{SW1+1}]
    L_PC:
    s_mov_b32 s{SW1+2}, L_END-L_PC
    v_and_b32 v17, 1, v0
    v_lshl_add_u32 v16, v16, 1, v17
    v_lshlrev_b32 v16, 7, v16
    s_lshl_b32 s{sT1}, s{sJ}, 11
    buffer_load_dword v{vJ}, v16, {srd(SW1)}, s{sT1} offen
    v_and_b32 v{vL}, 63, v0
    s_and_b32 s{sT0}, s2, 7
    s_lshr_b32 s{sTB}, s{sT0}, 1
    s_and_b32 s{sR}, s{sJ}, 7
    s_lshl3_add_u32 s{sTB}, s{sTB}, s{sR}
    s_and_b32 s{sT0}, s{sT0}, 1
    s_lshr_b32 s{sT2}, s{sJ}, 3
    s_lshl2_add_u32 s{sHG}, s{sT0}, s{sT2}
    s_and_b32 s{sTH}, s{sWV}, 1
    s_lshr_b32 s{sKQ}, s{sWV}, 1
    s_lshl2_add_u32 s{sRB}, s{sTH}, s{sKQ}
    s_add_u32 s{sRB}, s{sRB}, s{sHG}
    s_and_b32 s{sRB}, s{sRB}, 7
    s_lshl_b32 s{sT2}, s{sRB}, 3
    v_lshrrev_b32 v22, 3, v{vL}
    v_add_u32 v{vROW}, s{sT2}, v22
    v_lshlrev_b32 v16, 10, v{vROW}
    v_and_b32 v17, 7, v0
    v_lshl_add_u32 v{vX}, v17, 4, v16
    v_lshlrev_b32 v{vL16}, 4, v{vL}
    v_mul_u32_u24 v16, {XPITCH}, v{vROW}
    v_lshl_add_u32 v{vXW}, v17, 4, v16
    v_bfe_u32 v16, v{vL}, 3, 1
    v_lshlrev_b32 v16, 2, v16
    v_xor_b32 v16, s{sHG}, v16
    v_lshl_add_u32 v{vKR}, v16, 3, v17
    v_mul_u32_u24 v16, {XPITCH}, v{vKR}
    v_lshrrev_b32 v18, 4, v{vL}
    v_lshl_add_u32 v{vKB}, v18, 4, v16
    v_bfe_u32 v19, v{vL}, 2, 2
    v_lshl_add_u32 v16, v18, 3, v19
    v_lshlrev_b32 v16, 5, v16
    v_and_b32 v20, 3, v{vL}
    v_lshl_add_u32 v16, v20, 3, v16
    v_add_u32 v{vKA}, {STG}, v16
    v_bfe_u32 v16, v{vL}, 4, 1
    v_lshrrev_b32 v21, 1, v17
    v_xor_b32 v16, v16, v21
    v_lshlrev_b32 v21, 10, v22
    v_lshl_add_u32 v21, v16, 5, v21
    v_and_b32 v16, 1, v{vL}
    v_lshl_add_u32 v21, v16, 4, v21
    s_lshl_b32 s{sT1}, s{sHG}, 7
    v_add_u32 v{vWQ}, s{sT1}, v21
    s_lshl_b32 s{sT0}, s{sTB}, 16
    s_lshl_b32 s{sT2}, s{sR}, 7
    """ + "".join(f"s_add_u32 s{SXO+n}, s{sT2}, {n*128}\ns_and_b32 s{SXO+n}, s{SXO+n}, 0x380\ns_or_b32 s{SXO+n}, s{SXO+n}, s{sT0}\n" for n in range(8)) + f"""
    s_mov_b32 s{SX+2}, 0x200000
    s_mov_b32 s{SX+3}, 0x20000
    s_movk_i32 s{SKV+2}, 16384
    s_mov_b32 s{SKV+3}, 0x20000
    s_and_b32 s{sT1}, s{sWV}, 3
    s_lshl2_add_u32 s{sT1}, s{sJ}, s{sT1}
    s_lshl_b32 s{sT1}, s{sT1}, 7
    s_lshl_b32 s{sT4}, s{sTH}, 13
    s_add_u32 s{sT4}, s{sT4}, {STG}
    s_lshl2_add_u32 s{sT5}, s{sTH}, s{sR}
    v_mov_b32 v22, {SYNC}
    v_mov_b32 v23, 0
    s_lshl1_add_u32 s{sT0}, s{sTB}, s{sTH}
    s_lshl_b32 s{sOB}, s{sT0}, 15
    s_add_u32 s{sOB}, s{sOB}, {WS_O}
    s_lshl2_add_u32 s{sT2}, s{sHG}, s{sKQ}
    s_lshl_b32 s{sT2}, s{sT2}, 10
    s_add_u32 s{sOS}, s{sT2}, s{sOB}
    s_mov_b32 s{SOUT+2}, {WS_SIZE}
    s_mov_b32 s{SOUT+3}, 0x20000
    v_mov_b32 v24, -1
    v_mov_b32 v25, -1
    v_mov_b32 v26, -1
    v_mov_b32 v27, -1
    s_bitcmp0_b32 s{sHG}, 2
    s_waitcnt lgkmcnt(0)
    s_cselect_b32 s{SKV}, s8, s10
    s_cselect_b32 s{SKV+1}, s9, s11
    s_mov_b32 s{SX}, s4
    s_mov_b32 s{SX+1}, s5
    s_mov_b32 s{SOUT}, s24
    s_mov_b32 s{SOUT+1}, s25
    buffer_load_dword v{vJ}, off, {srd(SKV)}, s{sT1}
    """)
    def xloads():
        for i in range(8): g(f"buffer_load_dwordx4 {vr(XR+4*i,4)}, v{vX}, {srd(SX)}, s{SXO+i} offen")
    sentinel = f"buffer_store_dwordx4 v[24:27], v{vL16}, {srd(SOUT)}, s{sOS} offen sc1"
    lb, lj = g.label("X"), g.label("X")
    g(f"s_cmp_ge_u32 s{sWV}, 2\ns_cbranch_scc1 {lb}")
    xloads()
    for i in range(4):
        g(f"s_add_u32 m0, s{sT4}, {i*2048}\ns_add_u32 s{sT1}, s{sT5}, {i}\ns_and_b32 s{sT1}, s{sT1}, 7\ns_lshl_b32 s{sT1}, s{sT1}, 11")
        for u in range(2): g(f"buffer_load_dwordx4 v{vL16}, {srd(SKV)}, s{sT1} offen offset:{u*1024} lds")
    g(f"ds_write_b32 v22, v23\nds_write_b32 v22, v23 offset:4\ns_waitcnt lgkmcnt(0)\ns_barrier\ns_branch {lj}\n{lb}:\ns_barrier")
    xloads()
    if opt.QTOUCH:
        g(f"""
        s_mov_b32 s{SW1}, s6
        s_mov_b32 s{SW1+1}, s7
        s_cmp_eq_u32 s{sWV}, {opt.QTW}
        s_cselect_b32 s{SW1+2}, 0x80000, 0
        s_lshl_b32 s{sT0}, s{sR}, 16
        s_lshl_b32 s{sT1}, s{sHG}, 7
        s_add_u32 s{sT0}, s{sT0}, s{sT1}
        v_lshlrev_b32 v16, 10, v{vL}
        buffer_load_dword v{vJ}, v16, {srd(SW1)}, s{sT0} offen
        """)
    g(f"{lj}:\n{sentinel}\ns_load_dword s{sTAG}, s[24:25], {WS_EPOCH}")
    g(f"""
    s_mov_b32 s{SWQ}, s6
    s_mov_b32 s{SWQ+1}, s7
    s_mov_b32 s{SWQ+2}, 0x80000
    s_mov_b32 s{SWQ+3}, 0x20000
    s_mov_b32 s{SW1}, s16
    s_mov_b32 s{SW1+1}, s17
    s_mov_b32 s{SW1+2}, {512*3584}
    s_mov_b32 s{SWS}, s24
    s_mov_b32 s{SWS+1}, s25
    s_mov_b32 s{SWS+2}, {WS_SIZE}
    s_mov_b32 s{SWS+3}, 0x20000
    s_mov_b32 s{SW2}, s18
    s_mov_b32 s{SW2+1}, s19
    s_mov_b32 s{SW2+2}, {1792*1024}
    s_mov_b32 s{SW2+3}, 0x20000
    s_mov_b32 s{SWO}, s12
    s_mov_b32 s{SWO+1}, s13
    s_mov_b32 s{SWO+2}, 0x80000
    s_mov_b32 s{SWO+3}, 0x20000
    s_mov_b32 s{sONE2}, 0x3f803f80
    s_mov_b32 s{sLO}, 0x00003f80
    s_mov_b32 s{sHI}, 0x3f800000
    s_mov_b32 s{sVM}, 0x0000ffff
    s_mov_b32 s{sVM+1}, 0x0000ffff
    s_lshl_b32 s{sKVL}, s{sWV}, 10
    s_add_u32 s{sKVS}, s{sKVL}, {WS_KV}
    s_add_u32 s{sKVL}, s{sKVL}, {KVR}
    s_mul_i32 s{sK}, s{sR}, {64*3584}
    s_min_u32 s{sT3}, s{sWV}, 6
    s_lshl_b32 s{sM1a}, s{sT3}, 10
    s_add_u32 s{sT0}, s{sWV}, 8
    s_cmp_lt_u32 s{sWV}, 6
    s_cselect_b32 s{sT0}, s{sT0}, 7
    s_lshl_b32 s{sM1b}, s{sT0}, 10
    s_mul_i32 s{sT1}, s{sHG}, 448
    s_movk_i32 s{sT2}, 2341
    """)
    for dst, sm in ((vW1a, sT3), (vW1b, sT0)):
        g(f"""
        v_lshl_add_u32 v16, s{sm}, 6, v{vL}
        v_mul_lo_u32 v17, v16, s{sT2}
        v_lshrrev_b32 v17, 16, v17
        v_mul_u32_u24 v21, 28, v17
        v_sub_u32 v16, v16, v21
        v_mul_u32_u24 v17, 3584, v17
        v_lshl_add_u32 v16, v16, 4, v17
        v_add_u32 v{dst}, s{sT1}, v16
        """)
    g(f"""
    v_lshrrev_b32 v21, 5, v{vL}
    v_bfe_u32 v22, v{vL}, 4, 1
    v_lshl_add_u32 v16, v21, 3, v19
    v_mul_u32_u24 v16, 448, v16
    v_lshl_add_u32 v16, v22, 5, v16
    v_lshl_add_u32 v16, v20, 3, v16
    s_lshl_b32 s{sT0}, s{sKQ}, 7
    s_add_u32 s{sT0}, s{sT0}, {W1BASE}
    v_add_u32 v{vA1}, s{sT0}, v16
    s_cmp_lt_u32 s{sKQ}, 3
    s_cselect_b32 s{sT0}, 64, 0
    v_add_u32 v{vA1b}, s{sT0}, v{vA1}
    v_and_b32 v16, 31, v{vL}
    s_lshl_b32 s{sT0}, s{sTH}, 5
    v_add_u32 v17, s{sT0}, v16
    v_mul_u32_u24 v17, {XPITCH}, v17
    v_lshl_add_u32 v{vB}, v21, 4, v17
    v_lshlrev_b32 v16, 10, v16
    v_lshl_add_u32 v{vXO}, v21, 4, v16
    v_and_b32 v23, 15, v{vL}
    v_add_u32 v17, s{sT0}, v23
    v_mul_u32_u24 v17, {XPITCH}, v17
    v_lshl_add_u32 v{vQB}, v18, 8, v17
    v_xor_b32 v{vWQ2}, 64, v{vWQ}
    v_bfe_u32 v16, v{vL}, 3, 1
    v_lshl_or_b32 v16, v22, 1, v16
    v_xor_b32 v16, s{sKQ}, v16
    v_lshlrev_b32 v16, 5, v16
    v_lshl_add_u32 v16, v18, 14, v16
    v_lshl_add_u32 v16, v19, 7, v16
    v_lshl_add_u32 v16, v20, 3, v16
    v_add_u32 v{vQAa}, {WQ}, v16
    v_bfe_u32 v16, v{vL}, 3, 2
    v_lshlrev_b32 v17, 9, v16
    v_lshrrev_b32 v16, 1, v16
    v_xor_b32 v16, v16, v21
    v_lshl_add_u32 v17, v16, 7, v17
    v_and_b32 v16, 7, v{vL}
    v_lshl_add_u32 v17, v16, 4, v17
    v_add_u32 v{vKA2}, {KVR}, v17
    v_lshlrev_b32 v17, 9, v21
    v_lshl_add_u32 v17, v23, 4, v17
    v_add_u32 v{vVA}, {KVR + 256}, v17
    v_mov_b32 v{vIDX}, 0xdddddddd
    v_lshrrev_b32 v16, 2, v{vL}
    v_lshlrev_b32 v16, 10, v16
    v_lshl_add_u32 v{vT3}, v20, 7, v16
    v_lshl_add_u32 v16, v20, 4, v16
    s_lshl_b32 s{sT0}, s{sHG}, 7
    s_lshl_b32 s{sT1}, s{sTH}, 6
    s_add_u32 s{sT0}, s{sT0}, s{sT1}
    v_add_u32 v{vW2}, s{sT0}, v16
    v_lshlrev_b32 v16, 6, v19
    v_lshl_add_u32 v16, v22, 5, v16
    v_lshl_add_u32 v16, v20, 3, v16
    v_lshl_add_u32 v16, v21, 8, v16
    s_lshl_b32 s{sT0}, s{sKQ}, 11
    v_add_u32 v{vG0}, s{sT0}, v16
    v_add_u32 v{vG1}, {XN_END}, v{vG0}
    v_add_u32 v{vG2}, {W1BASE}, v{vG0}
    s_lshl_b32 s{sW2B}, s{sTH}, 10
    s_add_u32 s{sW2B}, s{sW2B}, s{sT0}
    s_lshl1_add_u32 s{sT0}, s{sTB}, s{sTH}
    s_mul_i32 s{sT2}, s{sT0}, 112
    s_mul_i32 s{sT1}, s{sKQ}, 28
    s_add_u32 s{sHB}, s{sT2}, s{sT1}
    s_lshl_b32 s{sHB}, s{sHB}, 10
    s_add_u32 s{sHB}, s{sHB}, {WS_H}
    s_mul_i32 s{sT1}, s{sHG}, 14
    s_add_u32 s{sT2}, s{sT2}, s{sT1}
    s_lshl2_add_u32 s{sT2}, s{sKQ}, s{sT2}
    s_lshl_b32 s{sHS}, s{sT2}, 10
    s_add_u32 s{sHS}, s{sHS}, {WS_H}
    s_cmp_lt_u32 s{sKQ}, 3
    s_cselect_b32 s{sHS2}, s{sHS}, 0x7f000000
    s_lshl_b32 s{sXO}, s{sT0}, 15
    s_lshl_b32 s{sT1}, s{sHG}, 7
    s_add_u32 s{sXO}, s{sXO}, s{sT1}
    s_lshl_b32 s{sT1}, s{sKQ}, 5
    s_add_u32 s{sXO}, s{sXO}, s{sT1}
    s_mul_i32 s{sW2S}, s{sKQ}, {28*16384}
    s_lshl_b32 s{sT0}, s{sTH}, 11
    v_add_u32 v{vRB}, s{sT0}, v{vL16}
    """)
    def wq_dma(i):
        g(f"s_add_u32 m0, s{sKVL}, {i*8192}\ns_add_u32 s{sT0}, s{sR}, {i}\ns_and_b32 s{sT0}, s{sT0}, 7\ns_lshl_b32 s{sT0}, s{sT0}, 16")
        g.vmop(f"buffer_load_dwordx4 v{vWQ2 if (i >> 1) & 1 else vWQ}, {srd(SWQ)}, s{sT0} offen lds", ("wq", i))
    def w1_dma(c, half):
        if half == 0:
            g(f"s_add_u32 m0, s{sM1a}, {S1[c % 4]}\ns_nop 0")
            g.vmop(f"buffer_load_dwordx4 v{vW1a}, {srd(SW1)}, s{sK} offen lds", ("w1", c))
        else:
            g(f"s_add_u32 m0, s{sM1b}, {S1[c % 4]}\ns_add_u32 s{sT0}, s{sK}, {32*3584}")
            g.vmop(f"buffer_load_dwordx4 v{vW1b}, {srd(SW1)}, s{sK} offen lds", ("w1", c))
            g(f"s_sub_u32 s{sK}, s{sT0}, s{SW1+2}\ns_cselect_b32 s{sK}, s{sT0}, s{sK}")
    a0, a1, vM, vD, E, Q2 = 12, 13, 14, 15, 16, 24
    def dpp_reduce(v):
        for m in ("quad_perm:[1,0,3,2]", "quad_perm:[2,3,0,1]", "row_half_mirror"):
            g(f"s_nop 1\nv_add_f32_dpp v{v}, v{v}, v{v} {m} row_mask:0xf bank_mask:0xf")
    def issue_at(pos):
        for i in range(8):
            if opt.WQ_AT[i] == pos: wq_dma(i)
        for c in range(2):
            if opt.W1_AT[c] == pos:
                l7, lj_ = g.label("W7"), g.label("W7")
                g(f"s_cmp_eq_u32 s{sWV}, 7\ns_cbranch_scc1 {l7}")
                w1_dma(c, 0); w1_dma(c, 1)
                g(f"s_branch {lj_}\n{l7}:\ns_add_u32 s{sT0}, s{sK}, {32*3584}")
                for _ in range(2): g(f"buffer_load_dword v{vJ}, off, {srd(SW1)}, s{sHS2}")
                g(f"s_sub_u32 s{sK}, s{sT0}, s{SW1+2}\ns_cselect_b32 s{sK}, s{sT0}, s{sK}\n{lj_}:")
    def layernorm(cls):
        ny = 9 if cls == 0 else 1 + opt.QTOUCH
        g(f"v_mov_b32 v{a0}, 0\nv_mov_b32 v{a1}, 0\ns_waitcnt vmcnt({ny+4})")
        g.ts(1)
        for j in range(16): g(f"v_dot2_f32_bf16 v{a0+(j&1)}, v{XR+j}, s{sONE2}, v{a0+(j&1)}")
        g(f"s_waitcnt vmcnt({ny})")
        for j in range(16, 32): g(f"v_dot2_f32_bf16 v{a0+(j&1)}, v{XR+j}, s{sONE2}, v{a0+(j&1)}")
        for r in range(4): g(f"v_mov_b32 v{Q2+r}, 0")
        g(f"v_add_f32 v{a0}, v{a0}, v{a1}")
        dpp_reduce(a0)
        g(f"""
        v_mul_f32 v{a0}, 0x3b000000, v{a0}
        v_cvt_pk_bf16_f32 v{vM}, v{a0}, v{a0}
        v_and_b32 v{vM}, 0xffff0000, v{vM}
        v_sub_f32 v{vD}, v{a0}, v{vM}
        v_xor_b32 v{vM}, 0x80000000, v{vM}
        """)
        pend = []
        for i in range(8):
            for jj in range(4):
                j = XR + 4*i + jj
                g(f"v_dot2_f32_bf16 v{E+2*jj}, v{j}, s{sLO}, v{vM}\nv_dot2_f32_bf16 v{E+2*jj+1}, v{j}, s{sHI}, v{vM}")
            for jj in range(4):
                j = XR + 4*i + jj
                acc = Q2 + 2*(jj & 1)
                g(f"v_pk_fma_f32 {vr(acc,2)}, {vr(E+2*jj,2)}, {vr(E+2*jj,2)}, {vr(acc,2)}\nv_cvt_pk_bf16_f32 v{j}, v{E+2*jj}, v{E+2*jj+1}")
            g(f"ds_write_b128 v{vXW}, {vr(XR+4*i,4)} offset:{XN + i*128}")
        g(f"v_pk_add_f32 {vr(Q2,2)}, {vr(Q2,2)}, {vr(Q2+2,2)}\nv_add_f32 v{a0}, v{Q2}, v{Q2+1}")
        dpp_reduce(a0)
        g(f"""
        v_mul_f32 v{a0}, 0x3b000000, v{a0}
        v_fma_f32 v{a0}, -v{vD}, v{vD}, v{a0}
        v_max_f32 v{a0}, 0, v{a0}
        v_cvt_pk_bf16_f32 v{a0}, v{a0}, v{a0}
        v_and_b32 v{a0}, 0xffff0000, v{a0}
        v_add_f32 v{a0}, 0x3727c5ac, v{a0}
        v_cvt_pk_bf16_f32 v{a0}, v{a0}, v{a0}
        v_and_b32 v{a0}, 0xffff0000, v{a0}
        v_sqrt_f32 v{a0}, v{a0}
        v_lshlrev_b32 v{E}, 2, v{vROW}
        v_cvt_pk_bf16_f32 v{a0}, v{a0}, v{a0}
        v_and_b32 v{a0}, 0xffff0000, v{a0}
        v_rcp_f32 v{a1}, v{a0}
        v_add_u32 v{E}, {RARR}, v{E}
        ds_write_b32 v{E}, v{a1}
        """)
        g.ts(2)
    lB, lJ = g.label("LB"), g.label("LJ")
    g(f"s_cmp_ge_u32 s{sWV}, 2\ns_cbranch_scc1 {lB}")
    layernorm(0)
    NE = 0
    lw0, lk, lv, lsp, lgo = g.label("KW"), g.label("KV"), g.label("KV"), g.label("KS"), g.label("KG")
    g(f"""
    v_mov_b32 v22, {SYNC}
    s_cmp_eq_u32 s{sWV}, 0
    s_cbranch_scc1 {lw0}
    v_mov_b32 v23, 1
    s_waitcnt vmcnt({1 + NE}) lgkmcnt(0)
    ds_write_b32 v22, v23
    """)
    AW = 64
    g(f"s_mul_i32 s{sT1}, s{sHG}, 448\ns_movk_i32 s{sT2}, 2341")
    def wq_group(i):
        g(f"s_add_u32 s{sT0}, s{sR}, {i}\ns_and_b32 s{sT0}, s{sT0}, 7\ns_lshl_b32 s{sT0}, s{sT0}, 16")
        for w in range(8):
            g(f"s_mov_b32 m0, {WQ + (w + 8*i)*1024}\ns_add_u32 s{sT3}, s{sT0}, {w*8192}")
            g(f"buffer_load_dwordx4 v{vWQ2 if (i >> 1) & 1 else vWQ}, {srd(SWQ)}, s{sT3} offen lds")
    for i in range(8):
        if i < opt.NWQ1: wq_group(i)
        if i < 7:
            g(f"""
            v_add_u32 v16, {64*i}, v{vL}
            v_mul_lo_u32 v17, v16, s{sT2}
            v_lshrrev_b32 v17, 16, v17
            v_mul_u32_u24 v21, 28, v17
            v_sub_u32 v16, v16, v21
            v_mul_u32_u24 v17, 3584, v17
            v_lshl_add_u32 v16, v16, 4, v17
            v_add_u32 v{AW+i}, s{sT1}, v16
            """)
    if opt.NWQ1 < 8:
        a_, b_ = g.label("KS"), g.label("KG")
        g(f"""
        s_mov_b32 s{sCNT}, 0
        {a_}:
        ds_read_b32 v23, v22 offset:4
        s_add_u32 s{sCNT}, s{sCNT}, 1
        s_waitcnt lgkmcnt(0)
        v_readfirstlane_b32 s{sT1}, v23
        s_cmp_gt_u32 s{sCNT}, {opt.SPIN}
        s_cbranch_scc1 {b_}
        s_cmp_lt_u32 s{sT1}, 128
        s_cbranch_scc1 {a_}
        {b_}:
        """)
    LSP2, LGO2 = g.label("KS"), g.label("KG")
    for c in range(2):
        if c == 1:
            g(f"""
            s_mov_b32 s{sCNT}, 0
            {LSP2}:
            ds_read_b32 v23, v22
            s_add_u32 s{sCNT}, s{sCNT}, 1
            s_waitcnt lgkmcnt(0)
            v_readfirstlane_b32 s{sT1}, v23
            s_cmp_gt_u32 s{sCNT}, {opt.SPIN}
            s_cbranch_scc1 {LGO2}
            s_cmp_eq_u32 s{sT1}, 1
            s_cbranch_scc1 {LSP2}
            {LGO2}:
            """)
        for hf in range(2):
            g(f"s_add_u32 s{sT3}, s{sK}, {(32*c + 16*hf)*3584}")
            for m in range(7):
                g(f"s_mov_b32 m0, {S1[c] + (7*hf + m)*1024}\ns_nop 0\nbuffer_load_dwordx4 v{AW+m}, {srd(SW1)}, s{sT3} offen lds")
    g(f"""
    s_waitcnt vmcnt(28)
    s_branch {lk}
    {lw0}:
    v_lshlrev_b32 v16, 2, v{vKR}
    v_add_u32 v16, {RARR}, v16
    v_lshrrev_b32 v19, 4, v{vL}
    v_lshrrev_b32 v21, 1, v19
    v_lshlrev_b32 v17, 2, v21
    v_xor_b32 v17, s{sHG}, v17
    v_and_b32 v18, 15, v{vL}
    v_lshlrev_b32 v18, 4, v18
    v_lshl_add_u32 v18, v17, 9, v18
    v_and_b32 v28, 1, v19
    v_lshl_add_u32 v18, v28, 3, v18
    v_lshlrev_b32 v17, 5, v17
    v_lshl_add_u32 v17, v28, 4, v17
    v_add_u32 v17, {RARR}, v17
    s_lshr_b32 s{sT1}, s{sHG}, 1
    v_xor_b32 v20, s{sT1}, v19
    v_and_b32 v20, 1, v20
    v_lshlrev_b32 v20, 7, v20
    v_lshl_add_u32 v20, v21, 3, v20
    v_lshrrev_b32 v21, 3, v{vKR}
    v_lshl_add_u32 v20, v21, 9, v20
    v_and_b32 v21, 7, v{vL}
    v_lshl_add_u32 v20, v21, 4, v20
    s_lshl_b32 s{sT0}, s{sTB}, 12
    s_add_u32 s{sT0}, s{sT0}, {WS_KV}
    s_mov_b32 s{sCNT}, 0
    s_waitcnt vmcnt({1 + NE})
    """)
    for s in range(8):
        for q in range(2): g(f"ds_read_b64_tr_b16 {vr(WK+4*s+2*q,2)}, v{vKA} offset:{s*1024+q*128}")
    g(f"""
    {lsp}:
    ds_read_b32 v23, v22
    s_add_u32 s{sCNT}, s{sCNT}, 1
    s_waitcnt lgkmcnt(0)
    v_readfirstlane_b32 s{sT1}, v23
    s_cmp_gt_u32 s{sCNT}, {opt.SPIN}
    s_cbranch_scc1 {lgo}
    s_cmp_eq_u32 s{sT1}, 0
    s_cbranch_scc1 {lsp}
    {lgo}:
    """)
    for s in range(7): g(f"ds_read_b128 {vr(KB+4*s,4)}, v{vKB} offset:{XN + s*64}")
    g(f"s_bitcmp0_b32 s{sHG}, 2\ns_cbranch_scc0 {lv}")
    for role in range(2):
        q = []
        for s in range(7, 16):
            if s >= 8: q.append([f"ds_read_b64_tr_b16 {vr(WK+4*s+2*u,2)}, v{vKA} offset:{s*1024+u*128}" for u in range(2)] + [f"ds_read_b128 {vr(KB+4*(s%8),4)}, v{vKB} offset:{XN + s*64}"])
            else: q.append([f"ds_read_b128 {vr(KB+4*s,4)}, v{vKB} offset:{XN + s*64}"])
        issued = [("b", s) for s in range(7)]
        for s in range(16):
            idx = max(i for i, x in enumerate(issued) if x == ("b", s))
            g(f"s_waitcnt lgkmcnt({min(15, len(issued) - 1 - idx)})")
            g(mfma16(KD, WK+4*s, KB+4*(s%8), KD if s else "0") if role == 0 else mfma16(KD, KB+4*(s%8), WK+4*s, KD if s else "0"))
            k = s + 7
            if k < 16 and (k < 8 or k - 8 <= s):
                for x in q[k-7]: g(x); issued.append(("b", k))
            if s == 9: g(f"ds_read_b32 v24, v16" if role == 0 else f"ds_read_b128 v[24:27], v17"); issued.append("r")
        g("v_mov_b32 v23, 2\ns_waitcnt lgkmcnt(0)\nds_write_b32 v22, v23\ns_nop 4")
        for k in range(4): g(f"v_mul_f32 v{KD+k}, v{KD+k}, v{24 if role == 0 else 24+k}")
        g(f"v_cvt_pk_bf16_f32 v{KD}, v{KD}, v{KD+1}\nv_cvt_pk_bf16_f32 v{KD+1}, v{KD+2}, v{KD+3}")
        if role == 0: g(f"buffer_store_dwordx2 {vr(KD,2)}, v20, {srd(SWS)}, s{sT0} offen sc1\ns_branch {lk}\n{lv}:")
        else: g(f"buffer_store_dwordx2 {vr(KD,2)}, v18, {srd(SWS)}, s{sT0} offen offset:256 sc1")
    g(f"{lk}:")
    g.ts(4)
    kmark = len(g.vm)
    sk = g.label("KF")
    g(f"s_cmp_lg_u32 s{sWV}, 0\ns_cbranch_scc1 {sk}\ns_waitcnt vmcnt({len(g.vm) - kmark}) lgkmcnt(0)\ns_add_u32 s{sT1}, s{sTAG}, 1")
    g(f"""
    s_lshl3_add_u32 s{sT0}, s{sTB}, s{sHG}
    s_lshl_b32 s{sT0}, s{sT0}, 4
    s_add_u32 s{sT0}, s{sT0}, {WS_FKV}
    v_mov_b32 v31, s{sT1}
    s_mov_b64 exec, 1
    buffer_store_dword v31, off, {srd(SWS)}, s{sT0} sc1
    s_mov_b64 exec, -1
    {sk}:
    """)
    g.ts(5)
    vmA = list(g.vm); g.vm = []
    g(f"s_branch {lJ}\n{lB}:")
    layernorm(1)
    if opt.NWQ1 < 8:
        rest = list(range(opt.NWQ1, 8)); h = len(rest)//2
        l3, ld, le = g.label("Q3"), g.label("QD"), g.label("QE")
        g(f"s_cmp_ge_u32 s{sWV}, 4\ns_cbranch_scc1 {le}\ns_cmp_eq_u32 s{sWV}, 3\ns_cbranch_scc1 {l3}")
        for i in rest[:h]: wq_group(i)
        g(f"s_branch {ld}\n{l3}:")
        for i in rest[h:]: wq_group(i)
        g(f"{ld}:\nv_mov_b32 v22, {SYNC}\nv_mov_b32 v23, 1\nds_add_u32 v22, v23 offset:4\ns_waitcnt vmcnt(0)\n{le}:")
    assert vmA == g.vm
    g(f"""
    {lJ}:
    s_lshl_b32 s{sT0}, s{sTH}, 7
    s_add_u32 s{sT0}, s{sT0}, {RARR}
    v_and_b32 v16, 31, v{vL}
    v_lshl_add_u32 v16, v16, 2, s{sT0}
    v_and_b32 v18, 15, v{vL}
    v_lshl_add_u32 v17, v18, 2, s{sT0}
    s_mov_b32 s{SOUT}, s20
    s_mov_b32 s{SOUT+1}, s21
    s_mov_b32 s{SOUT+2}, 0x200000
    """)
    g(f"s_add_u32 s{sT0}, s{sK}, {64*3584}\ns_sub_u32 s{sK}, s{sT0}, s{SW1+2}\ns_cselect_b32 s{sK}, s{sT0}, s{sK}\ns_waitcnt lgkmcnt(0)")
    g.vm += [("w1", 0), ("w1", 0), ("w1", 1), ("w1", 1)]
    g(f"s_add_u32 s{sTAG}, s{sTAG}, 1\ns_barrier")
    g.ts(3)
    g(f"ds_read_b32 v{vRT}, v16\nds_read_b32 v{vRT+1}, v16\nds_read_b32 v14, v17\nds_read_b32 v15, v17 offset:64")
    def flag_store(base):
        g(f"""
        s_lshl3_add_u32 s{sT0}, s{sTB}, s{sHG}
        s_lshl_b32 s{sT0}, s{sT0}, 4
        s_add_u32 s{sT0}, s{sT0}, {base}
        v_mov_b32 v31, s{sTAG}
        s_mov_b64 exec, 1
        buffer_store_dword v31, off, {srd(SWS)}, s{sT0} sc1
        s_mov_b64 exec, -1
        """)
    def check_or_spin(loads, regs):
        done, lab = g.label("PD"), g.label("PL")
        g(f"s_mov_b32 s{sCNT}, 0\n{lab}:")
        for r in regs: g(f"v_xor_b32 v{r}, s{sTAG}, v{r}")
        for r in regs[1:]: g(f"v_or_b32 v{regs[0]}, v{regs[0]}, v{r}")
        g(f"""
        v_cmp_ne_u32 vcc, 0, v{regs[0]}
        s_nop 4
        s_cbranch_vccz {done}
        s_add_u32 s{sCNT}, s{sCNT}, 1
        s_cmp_gt_u32 s{sCNT}, {opt.SPIN}
        s_cbranch_scc1 {done}
        s_sleep 8
        """)
        for s in loads: g(s)
        g(f"s_waitcnt vmcnt(0)\ns_branch {lab}\n{done}:")
    kvpoll = [f"buffer_load_dword v{20+k}, v{vL16}, {srd(SWS)}, s{sT1} offen offset:{k*1024} sc1" for k in range(4)]
    QA, QBf, D0 = 64, 80, 232
    def q_reads(s):
        return [f"ds_read_b64_tr_b16 {vr(QA+4*(s%4)+2*q,2)}, v{vQAa} offset:{s*1024+q*512}" for q in range(2)] + \
               [f"ds_read_b128 {vr(QBf+8*(s%4)+4*u,4)}, v{vQB} offset:{XN + u*16*XPITCH + s*16}" for u in range(2)]
    def kv_dma(c):
        g(f"s_add_u32 m0, s{sKVL}, {KVS[c%4]}\ns_add_u32 s{sT0}, s{sKVS}, {c*8192}")
        g.vmop(f"buffer_load_dwordx4 v{vL16}, {srd(SWS)}, s{sT0} offen sc1 lds", ("kv", c))
    def poll_issue():
        sk = g.label("KP")
        g(f"s_cmp_lg_u32 s{sWV}, 7\ns_cbranch_scc1 {sk}\ns_mov_b32 s{sT1}, {WS_FKV}")
        for x in kvpoll: g(x)
        g(f"{sk}:")
        poll_mark[0] = len(g.vm)
    poll_mark = [0]
    if opt.KVPOLL_Q < 0: poll_issue()
    for s in range(3):
        for x in q_reads(s): g(x)
    for s in range(16):
        if s == opt.QMID:
            sk = g.label("KC")
            g(f"s_cmp_lg_u32 s{sWV}, 7\ns_cbranch_scc1 {sk}\ns_waitcnt vmcnt(0)")
            check_or_spin(kvpoll, list(range(20, 24)))
            g(f"{sk}:\ns_barrier")
            kv_dma(0); kv_dma(1)
        g(f"s_waitcnt lgkmcnt({4*min(2, 15-s)})")
        rd = q_reads(s+3) if s + 3 < 16 else []
        for u in range(2):
            g(mfma16(D0+4*u, QA+4*(s%4), QBf+8*(s%4)+4*u, D0+4*u if s else "0"))
            for x in rd[2*u:2*u+2]: g(x)
        if s < 4:
            for r in range(4): g(f"v_mov_b32 v{vO+4*s+r}, 0")
        if s == 4: g(f"v_and_b32 v30, 27, v{vL}\nv_cmp_eq_u32 vcc, 16, v30\nv_mov_b32 v30, s{sONE2}\ns_nop 0\nv_cndmask_b32 v30, 0, v30, vcc")
        if 5 <= s < 8:
            for r in range(4): g(f"v_mov_b32 v{vV0+4*(s-5)+r}, v30")
        if s == opt.KVPOLL_Q: poll_issue()
    cb = fb(0.25 * 1.4426950408889634)
    g(f"v_mul_f32 v14, {cb:#x}, v14\nv_mul_f32 v15, {cb:#x}, v15\ns_nop 5")
    for u in range(2):
        for r in range(4): g(f"v_mul_f32 v{D0+4*u+r}, v{D0+4*u+r}, v{14+u}")
    for u in range(2):
        for r in range(2): g(f"v_cvt_pk_bf16_f32 v{vQ+2*u+r}, v{D0+4*u+2*r}, v{D0+4*u+2*r+1}")
    g("s_nop 1")
    for r in range(2): g(f"v_permlane16_swap_b32 v{vQ+r}, v{vQ+2+r}")
    g("s_nop 0")
    for r in range(2): g(f"v_permlane32_swap_b32 v{vQ+r}, v{vQ+2+r}")
    g.ts(6)
    def f1_reads(kappa, fb_, fa):
        c, ks = kappa // 2, kappa % 2
        o = S1[c % 4] - W1BASE + ks*7168
        return [[f"ds_read_b64_tr_b16 {vr(fa+2*q,2)}, v{vA1} offset:{o + q*1792}" for q in range(2)],
                [f"ds_read_b64_tr_b16 {vr(fa+4+2*q,2)}, v{vA1b} offset:{o + q*1792}" for q in range(2)] + [f"ds_read_b128 {vr(fb_,4)}, v{vB} offset:{XN + kappa*32}"]]
    PF = lambda kappa: 164 + 12*(kappa % 4)
    assert opt.QMID >= 8 and (NPRE == 0 or opt.F1_START == 0)
    if NPRE:
        sk = g.label("W0")
        g(f"s_cmp_lg_u32 s{sWV}, 1\ns_cbranch_scc1 {sk}\ns_waitcnt vmcnt(14)\n{sk}:")
    else: g.vmwait(("kv", 1))
    g("s_barrier")
    g.ts(7)
    nkv = 0
    if opt.QMID < 16: kv_dma(2); nkv = 3
    for c in (2, 3): w1_dma(c, 0); w1_dma(c, 1)
    if NPRE:
        for kappa in range(2):
            for grp in f1_reads(kappa, PF(kappa), PF(kappa)+4):
                for x in grp: g(x)
    def kread(t, dst): return f"ds_read_b128 {vr(dst,4)}, v{vKA2} offset:{KVS[(t//4)%4] + (t%4)*2048}"
    def vread(t, u, dst): return f"ds_read_b128 {vr(dst,4)}, v{vVA} offset:{KVS[(t//4)%4] + (t%4)*2048 + u*1024}"
    def v01(t):
        g(f"s_mov_b64 exec, s[{sVM}:{sVM+1}]"); g(vread(t, 0, vV0)); g(vread(t, 1, vV1[t & 1])); g("s_mov_b64 exec, -1")
    vMX = 28
    def maxtree(first, n=32):
        regs = list(range(vS[0], vS[0]+n))
        if first: g(f"v_max3_f32 v{vMX}, v{regs[0]}, v{regs[1]}, v{regs[2]}\nv_max_f32 v{vMX}, v{vMX}, v{regs[3]}"); regs = regs[4:]
        for k in range(0, len(regs), 2): g(f"v_max3_f32 v{vMX}, v{vMX}, v{regs[k]}, v{regs[k+1]}")
    def finish_m(bias):
        g(f"""
        v_mov_b32 v31, v{vMX}
        s_nop 1
        v_permlane32_swap_b32 v31, v{vMX}
        s_nop 1
        v_max_f32 v{vMX}, v{vMX}, v31
        v_add_f32 v{vMX}, {fb(bias):#x}, v{vMX}
        v_xor_b32 v{vC}, 0x80000000, v{vMX}
        """)
        for r in range(1, 16): g(f"v_mov_b32 v{vC+r}, v{vC}")
    PIN = opt.PROLOG_IN and NPRE >= 2
    for j in range(NPRE):
        if j + 1 < NPRE: g.vmwait(("w1", j+1), extra="lgkmcnt(0)")
        elif PIN: g.vmwait(("kv", 1), ("w1", NPRE + 1), extra="lgkmcnt(0)")
        else: g("s_waitcnt lgkmcnt(0)")
        if opt.QMID >= 16 and j == opt.KVCHECK_AT:
            sk = g.label("KC")
            g(f"s_cmp_lg_u32 s{sWV}, 7\ns_cbranch_scc1 {sk}\ns_waitcnt vmcnt({len(g.vm) - poll_mark[0]})")
            check_or_spin(kvpoll, list(range(20, 24)))
            g(f"{sk}:")
        g("s_barrier")
        if j in opt.TSP: g.ts(4 + opt.TSP.index(j))
        if opt.QMID >= 16 and j == opt.KVPOLL_PRE: poll_issue()
        rd = []
        if j + 1 < NPRE:
            for kappa in (2*j+2, 2*j+3):
                for grp in f1_reads(kappa, PF(kappa), PF(kappa)+4): rd += grp
        jobs = []
        if opt.QMID >= 16 and j >= opt.KVCHECK_AT:
            for _ in range(2 if (PIN and nkv == 0) else (3 - nkv + (NPRE - j) - 1) // (NPRE - j)):
                if nkv < 3: jobs.append(lambda c=nkv: kv_dma(c)); nkv += 1
        jobs += [lambda: w1_dma(j+4, 0), lambda: w1_dma(j+4, 1)]
        n = 0
        last = PIN and j == NPRE - 1
        if last:
            g(kread(0, vK)); g(kread(1, vK1)); v01(0)
        for kappa in (2*j, 2*j+1):
            for T in range(2):
                g(mfma(FACC+16*T, PF(kappa)+4+4*T, PF(kappa), FACC+16*T if kappa else "0"))
                if last and n == 0:
                    g("s_waitcnt lgkmcnt(2)"); g(mfma(vS[0], vK, vQ, "0")); g(mfma(vS[1], vK1, vQ, "0"))
                if last and n == 2:
                    g("s_nop 7"); maxtree(True)
                if last and n == 3:
                    finish_m(opt.BIAS)
                if n < 3:
                    for x in rd[n*len(rd)//3:(n+1)*len(rd)//3]: g(x)
                for jb in jobs[n*len(jobs)//4:(n+1)*len(jobs)//4]: jb()
                n += 1
    if opt.F1_START == 0 and not PIN:
        g.vmwait(("w1", NPRE + 1), ("kv", 1))
        g("s_barrier")
    g.ts(8)
    if opt.HROT:
        for u in range(4):
            g(f"""
            s_add_u32 s{sT0}, s{sHG}, {u}
            s_and_b32 s{sT0}, s{sT0}, 3
            s_sub_u32 s{sT0}, s{sT0}, {u}
            s_mul_i32 s{sT1}, s{sT0}, {7*16384}
            s_add_u32 s{sROT+u}, s{sT1}, s{sW2S}
            s_mul_i32 s{sT1}, s{sT0}, {7*1024}
            s_add_u32 s{sROT+4+u}, s{sT1}, s{sHB}
            """)
    g(f"s_cmp_lt_u32 s{sKQ}, 3\ns_cselect_b64 vcc, -1, 0")
    if not PIN:
        g(kread(0, vK)); g(kread(1, vK1))
        v01(0)
        g("s_waitcnt lgkmcnt(2)")
        g(mfma(vS[0], vK, vQ, "0")); g(mfma(vS[1], vK1, vQ, "0"))
        g("s_nop 7\ns_nop 2")
        maxtree(True)
        finish_m(opt.BIAS)
    g("s_nop 1")
    g(mfma(vS[0], vK, vQ, vC))
    g(kread(1, vK))
    g("s_nop 7\ns_nop 2")
    def w2_dma(step, slot):
        g(f"s_add_u32 m0, s{sW2B}, {T2[slot]}")
        if step < 28:
            if opt.HROT: g(f"s_add_u32 s{sT0}, s{sROT + step//7}, {step*16384}")
            else: g(f"s_add_u32 s{sT0}, s{sW2S}, {step*16384}")
            S = SW2
        else:
            g(f"s_lshl_b32 s{sT0}, s{sKQ}, 17\ns_add_u32 s{sT0}, s{sT0}, {(step-28)*16384}"); S = SWO
        g.vmop(f"buffer_load_dwordx4 v{vW2}, {srd(S)}, s{sT0} offen lds", ("w2", step))
    slot_of = {}
    def lds_base(off):
        return (0, off) if off < XN_END else ((1, off - XN_END) if off < W1BASE else (2, off - W1BASE))
    def a_reads(step, fa):
        b, o = lds_base(T2[slot_of[step]])
        return [[f"ds_read_b64_tr_b16 {vr(fa+4*n+2*q,2)}, v{vG0+b} offset:{o + n*1024 + q*512}" for q in range(2)] for n in range(2)]
    HR = lambda i: HB + 4*(i % opt.NH)
    def h_load(i):
        if i == 28: g(f"s_lshl_b32 s{sHB}, s{sKQ}, 13\ns_add_u32 s{sHB}, s{sHB}, s{sOB}")
        elif opt.HROT:
            if i % 7 in (0, 4): g(f"s_add_u32 s{sHB}, s{sROT + 4 + i//7}, {i*1024}")
            g.vmop(f"buffer_load_dwordx4 {vr(HR(i),4)}, v{vL16}, {srd(SWS)}, s{sHB} offen offset:{(i%7%4)*1024} sc1", ("h", i))
            return
        elif i and i % 4 == 0: g(f"s_add_u32 s{sHB}, s{sHB}, 4096")
        g.vmop(f"buffer_load_dwordx4 {vr(HR(i),4)}, v{vL16}, {srd(SWS)}, s{sHB} offen offset:{(i%4)*1024} sc1", ("h", i))
    hpoll = [f"buffer_load_dword v29, v30, {srd(SWS)}, s{sT1} offen sc1"]
    def pair_flag_addr(base):
        g(f"""
        s_lshl2_add_u32 s{sT1}, s{sTB}, s{sKQ}
        s_lshl_b32 s{sT1}, s{sT1}, 5
        s_add_u32 s{sT1}, s{sT1}, {base}
        v_and_b32 v30, 16, v{vL16}
        """)
    def touch3():
        a, b = g.label("T3"), g.label("T3")
        g(f"""
        s_lshr_b32 s{sT0}, s{sHG}, 2
        s_lshl_b32 s{sT0}, s{sT0}, 9
        s_cmp_eq_u32 s{sWV}, 7
        s_cbranch_scc1 {a}
        s_lshl_b32 s{sT1}, s{sWV}, 5
        s_add_u32 s{sT1}, s{sT1}, s{sJ}
        s_lshl_b32 s{sT1}, s{sT1}, 13
        s_add_u32 s{sT0}, s{sT0}, s{sT1}
        s_mov_b32 exec_hi, 0
        buffer_load_dword v{vJ}, v{vT3}, {srd(SW2)}, s{sT0} offen
        s_mov_b64 exec, -1
        s_branch {b}
        {a}:
        s_lshl_b32 s{sT1}, s{sJ}, 14
        s_add_u32 s{sT0}, s{sT0}, s{sT1}
        buffer_load_dword v{vJ}, v{vT3}, {srd(SWO)}, s{sT0} offen
        {b}:
        """)
        g.vm.append("touch")
    F1 = opt.F1_START; assert F1 % 4 == 0
    R1 = F1 + 32 - 2*NPRE
    F2 = opt.F2_START; NF2 = opt.NF2
    assert F2 + NF2 <= 64
    freeslots = []; nxt_w2 = 0; nxt_h = 0
    w2_open = False
    p2, pm, p1 = opt.P
    for t in range(64):
        c = t // 4
        S = vS[t & 1]; Sn = vS[(t+1) & 1]
        ex = lambda k: f"v_exp_f32 v{S+k}, v{S+k}"
        top = (t % 4 == 0 and t > 0)
        xm = [None, None]; xr = [[], []]
        if F1 + 1 <= t <= R1:
            xm = [mfma(FACC+16*T, FA+4*T, FB, FACC+16*T if (NPRE or t > F1 + 1) else "0") for T in range(2)]
        if F1 <= t < R1: xr = f1_reads(2*NPRE + t - F1, FB, FA)
        st = t - F2
        if 0 <= st < NF2:
            xm = [mfma(FACC+16*n, FA+4*n, HR(st), FACC+16*n if st else "0") for n in range(2)]
        rd_step = st + 1 if -1 <= st < NF2 - 1 else None
        jobs = []
        if t % 4 == 0 and c + 3 < 16: jobs.append(lambda: kv_dma(c + 3))
        cf = c - F1//4
        pc = NPRE + 2*(cf + 1)
        if cf >= 1 and pc < 16 and t % 4 < 2:
            jobs += [lambda: w1_dma(pc + t % 4, 0), lambda: w1_dma(pc + t % 4, 1)]
        if opt.TOUCH3 and t == opt.T3_T: jobs.append(touch3)
        if t == opt.HPOLL_T: jobs.append(lambda: (pair_flag_addr(WS_FH), g.vmop(hpoll[0], "hpoll")))
        hjobs = []
        nh = 0
        if t > opt.HCHECK_T:
            while nxt_h < 28 and nh < (2 if nxt_h < st + opt.HLEAD else 1) and nxt_h - opt.NH < st - 1:
                hjobs.append(lambda i=nxt_h: h_load(i)); nxt_h += 1; nh += 1
        def slot(name):
            sd = sorted(opt.SLOT_D[min(i, len(opt.SLOT_D)-1)] for i in range(len(jobs)))
            for i, jb in enumerate(jobs):
                if sd[i] == name: jb()
            sh = sorted(opt.SLOT_H[min(i, len(opt.SLOT_H)-1)] for i in range(len(hjobs)))
            for i, jb in enumerate(hjobs):
                if sh[i] == name: jb()
        for k in range(0, p2): g(ex(k))
        if t > 0: g(smf(vO, vV1[(t-1) & 1], vS[(t-1) & 1] + 8, vIDX))
        if top:
            need = []
            if c + 1 < 16: need.append(("kv", c+1))
            if 0 <= cf and NPRE + 2*cf + 1 < 16: need.append(("w1", NPRE + 2*cf + 1))
            for s_ in range(4*c - F2 + 1, 4*c - F2 + 5):
                if 0 <= s_ < NF2: need.append(("w2", s_))
            if t == opt.HFLAG_T: need.append("hst")
            if c == 15: need += [("w2", s_) for s_ in range(NF2, min(28, NF2 + opt.NTAILPRE)) if ("w2", s_) in g.vm]
            if need: g.vmwait(*need, extra="lgkmcnt(0)")
            else: g("s_waitcnt lgkmcnt(0)")
            g("s_barrier")
            g.vis = g.done
            if c < 14: g.ts(c, True)
            if t == opt.HFLAG_T:
                sk = g.label("HF")
                g(f"s_cmp_lg_u32 s{sWV}, 0\ns_cbranch_scc1 {sk}")
                flag_store(WS_FH)
                g(f"{sk}:")
            if not w2_open and t >= R1:
                w2_open = True; freeslots += list(range(NRES))
            for s_ in range(4*(c-1) - F2 + 1, 4*(c-1) - F2 + 5):
                if 0 <= s_ < NF2: freeslots.append(slot_of[s_])
            g(f"s_setprio {3 - t % 4}")
        else:
            g(f"s_setprio {3 - t % 4}\ns_waitcnt lgkmcnt(0)")
        if freeslots and nxt_w2 < opt.W2_LIM and len(jobs) < 2 and t >= opt.W2_T0:
            slot_of[nxt_w2] = freeslots.pop(0)
            jobs.append(lambda s_=nxt_w2: w2_dma(s_, slot_of[s_])); nxt_w2 += 1
        if rd_step is not None: xr = a_reads(rd_step, FA)
        slot('A')
        for k in range(p2, pm): g(ex(k))
        if t + 1 < 64: g(mfma(Sn, vK, vQ, vC))
        if t + 2 < 64: g(kread(t+2, vK))
        slot('B')
        for k in range(pm, p1): g(ex(k))
        g(smf(vO, vV0, S, vIDX))
        if t + 1 < 64: v01(t+1)
        slot('C')
        if t == opt.HCHECK_T:
            g.vmwait("hpoll")
            check_or_spin(hpoll, [29])
        for k in range(p1, opt.XP[0]): g(ex(k))
        if 0 <= st < NF2: g.vmwait(("h", st))
        if xm[0]: g(xm[0])
        for x in xr[0]: g(x)
        slot('X')
        for k in range(opt.XP[0], opt.XP[1]): g(ex(k))
        if opt.SKIPDUP and F1 <= t <= R1:
            sk = g.label("SD")
            g(f"s_cbranch_vccz {sk}")
            if xm[1]: g(xm[1])
            for x in xr[1][:2]: g(x)
            g(f"{sk}:")
            for x in xr[1][2:]: g(x)
        else:
            if xm[1]: g(xm[1])
            for x in xr[1]: g(x)
        slot('Y')
        for k in range(opt.XP[1], 16): g(ex(k))
        for T in range(2):
            a = FACC + 16*T
            if t == R1 + opt.HEP[T]:
                for k in range(8): g(f"v_pk_mul_f32 {vr(a+2*k,2)}, {vr(a+2*k,2)}, {vr(vRT,2)}")
                for k in range(8): g(f"v_cvt_pk_bf16_f32 v{a+k}, v{a+2*k}, v{a+2*k+1}")
                for k in range(8): g(f"v_pk_max_i16 v{a+k}, v{a+k}, 0")
            for u in range(2):
                if t == R1 + opt.HST[2*T+u]:
                    g.vmop(f"buffer_store_dwordx4 {vr(a+4*u,4)}, v{vL16}, {srd(SWS)}, s{sHS+T} offen offset:{(2*T+u)*1024} sc1", "hst")
    XRES = 24
    g.vmop(f"buffer_load_dwordx4 {vr(XRES,4)}, v{vXO}, {srd(SX)}, s{sXO} offen", "xres")
    g("s_nop 0")
    g(smf(vO, vV1[1], vS[1] + 8, vIDX))
    g.ts(9)
    FBK, ONORM = g.label("FBK"), g.label("ON")
    while nxt_h < 28: h_load(nxt_h); nxt_h += 1
    g(f"""
    s_nop 2
    v_mov_b32 v30, {fb(2.0**115):#x}
    v_mov_b32 v31, {fb(2.0**126):#x}
    s_nop 6
    v_add_f32 v28, |v{vO}|, |v{vO+1}|
    """)
    for k in range(2, 8): g(f"v_add_f32 v28, v28, |v{vO+k}|")
    g(f"""
    v_cmp_lt_f32 vcc, v{vO+8}, v30
    v_cmp_lt_f32 s[{sT0}:{sT1}], v28, v31
    v_mov_b32 v30, {fb(2.0**-106):#x}
    v_cmp_gt_f32 s[{sT2}:{sT3}], v28, v30
    s_nop 3
    s_and_b64 vcc, vcc, s[{sT0}:{sT1}]
    s_and_b64 vcc, vcc, s[{sT2}:{sT3}]
    s_cmp_eq_u64 vcc, {0 if opt.X_FB else -1}
    s_cbranch_scc0 {FBK}
    {ONORM}:
    v_rcp_f32 v29, v{vO+8}
    s_nop 0
    """)
    for k in range(8): g(f"v_mul_f32 v{vO+k}, v{vO+k}, v29")
    for k in range(4): g(f"v_cvt_pk_bf16_f32 v{vO+k}, v{vO+2*k}, v{vO+2*k+1}")
    g.vmop(f"buffer_store_dwordx4 {vr(vO,4)}, v{vL16}, {srd(SWS)}, s{sOS} offen sc1", "ost")
    AF = [80, 88, 96]
    def tail_reads(step): return [x for grp in a_reads(step, AF[step % 3]) for x in grp]
    visible = lambda s_: ("w2", s_) in g.vm and g.vmneed([("w2", s_)]) <= g.vis
    hs = list(range(NF2, 28))
    oregs = [36, 40, 44, 52, 56, 60, 64, 68]
    def o_loads():
        g(f"s_lshl_b32 s{sT2}, s{sKQ}, 13\ns_add_u32 s{sT2}, s{sT2}, s{sOB}\ns_add_u32 s{sT3}, s{sT2}, 4096")
        return [f"buffer_load_dwordx4 {vr(oregs[i],4)}, v{vL16}, {srd(SWS)}, s{sT2 + i//4} offen offset:{(i%4)*1024} sc1" for i in range(8)]
    seq = hs + list(range(28, 36))
    def rd(i):
        assert visible(seq[i]) or (("w2", seq[i]) in g.vm and g.vmneed([("w2", seq[i])]) <= g.vis), ("not visible", seq[i])
        for x in tail_reads(seq[i]): g(x)
    done_steps = set(range(NF2))
    bars = [b for b in opt.TAILBAR if b < len(seq)]
    pend_dma = []
    rd(0); rd(1)
    for i, s_ in enumerate(seq):
        if i in bars:
            nb = min([b for b in bars if b > i] + [len(seq)])
            need = [("w2", seq[k]) for k in range(i + 2, min(nb + 2, len(seq)))]
            need = [x for x in need if x in g.vm]
            if need: g.vmwait(*need)
            g("s_barrier")
            g.vis = g.done
            used = {slot_of[x] for x in slot_of if x not in done_steps}
            fs = [x for x in range(len(T2)) if x not in used]
            while nxt_w2 < 36 and fs:
                slot_of[nxt_w2] = fs.pop(0); pend_dma.append(nxt_w2); nxt_w2 += 1
        if i == min(opt.OLOAD_AT, len(hs)):
            g.ts(10)
            ol = o_loads()
            for k, x in enumerate(ol): g.vmop(x, ("o", k))
        if i == len(hs):
            g.ts(11)
            if opt.OSPLIT:
                for u in range(5):
                    for x in a_reads(28 + u, 72 + 4*u)[0]: g(x)
            g.vmwait(("o", 7))
            done, lab = g.label("OD"), g.label("OL")
            g(f"s_mov_b32 s{sCNT}, 0\n{lab}:")
            allr = [r + k for r in oregs for k in range(4)]
            g(f"v_max3_u32 v28, v{allr[0]}, v{allr[1]}, v{allr[2]}\nv_max3_u32 v29, v{allr[3]}, v{allr[4]}, v{allr[5]}")
            for k in range(6, 32, 2): g(f"v_max3_u32 v{28 + (k//2) % 2}, v{28 + (k//2) % 2}, v{allr[k]}, v{allr[k+1]}")
            g(f"""
            v_max_u32 v28, v28, v29
            v_cmp_eq_u32 vcc, -1, v28
            s_nop 4
            s_cbranch_vccz {done}
            s_add_u32 s{sCNT}, s{sCNT}, 1
            s_cmp_gt_u32 s{sCNT}, {opt.SPIN}
            s_cbranch_scc1 {done}
            s_sleep 4
            """)
            for x in ol: g(x)
            g(f"s_waitcnt vmcnt(0)\ns_branch {lab}\n{done}:")
            g.ts(12)
        if opt.OSPLIT and s_ == 28: break
        if i + 2 < len(seq) and not (opt.OSPLIT and seq[i+2] >= 28): rd(i + 2)
        if s_ < 28: g.vmwait(("h", s_))
        g(f"s_waitcnt lgkmcnt({4*min(2, (len(hs) if opt.OSPLIT else len(seq))-1-i)})")
        b = HR(s_) if s_ < 28 else oregs[s_ - 28]
        for n in range(2):
            g(mfma(FACC+16*n, AF[s_ % 3]+4*n, b, FACC+16*n if s_ else "0"))
            for _ in range(2):
                if pend_dma:
                    x = pend_dma.pop(0); w2_dma(x, slot_of[x])
        done_steps.add(s_)
    if not opt.OSPLIT:
        g.ts(13)
        busy = {slot_of[x] for x in seq}
        F = [T2[x] for x in range(len(T2)) if x not in busy][:6]
        if len(F) < 6:
            g('s_barrier'); F = T2[:6]
        g(f"v_add_u32 v28, {XN_END}, v{vRB}\nv_add_u32 v29, {W1BASE}, v{vRB}")
        g.vmwait("xres")
        for k in range(4): g(f"v_lshlrev_b32 v{16+2*k}, 16, v{XRES+k}\nv_and_b32 v{17+2*k}, 0xffff0000, v{XRES+k}")
        rbase = [vRB, 28, 29]
        def blk(gq, src):
            p = gq*3 + (src - gq - 1) % 4
            b, o = lds_base(F[p // 2] + (p % 2)*4096)
            return rbase[b], o
        FIN = g.label("FIN")
        RD, OW = 64, 104
        for kq in range(4):
            nxt = g.label("FK")
            if kq < 3: g(f"s_cmp_lg_u32 s{sKQ}, {kq}\ns_cbranch_scc1 {nxt}")
            else: g("s_nop 1")
            for d in range(1, 4):
                gq = (kq + d) % 4
                v, o = blk(gq, kq)
                for u in range(2): g(f"ds_write_b128 v{v}, {vr(FACC+8*gq+4*u,4)} offset:{o + u*1024}")
            for e in range(8): g(f"v_mov_b32 v{OW+e}, v{FACC+8*kq+e}")
            g("s_waitcnt lgkmcnt(0)\ns_barrier")
            for d in range(1, 4):
                v, o = blk(kq, (kq + d) % 4)
                for u in range(2): g(f"ds_read_b128 {vr(RD+8*(d-1)+4*u,4)}, v{v} offset:{o + u*1024}")
            if kq < 3: g(f"s_branch {FIN}\n{nxt}:")
    else:
        busy = {slot_of[x] for x in range(28, 36)}
        lastbar = max(b for b in bars if b <= len(hs))
        busy |= {slot_of[x] for x in seq[lastbar:]}
        F = [T2[x] for x in range(len(T2)) if x not in busy][:6]
        assert len(F) == 6 and all(visible(x) for x in range(28, 36))
        rbase = [vRB, 28, 29]
        def blk(gq, src):
            p = gq*3 + (src - gq - 1) % 4
            b, o = lds_base(F[p // 2] + (p % 2)*4096)
            return rbase[b], o
        FIN = g.label("FIN")
        RD, OW = 64, 104
        OA = [72, 76, 80, 84, 88, 92]
        useq = [(n, k) for n in range(2) for k in range(8)]
        def ord_(u):
            n, k = useq[u]
            return a_reads(28 + k, OA[u % 6] - 4*n)[n]
        LA = 5
        g(f"v_add_u32 v28, {XN_END}, v{vRB}\nv_add_u32 v29, {W1BASE}, v{vRB}")
        g.vmwait("xres")
        for k in range(4): g(f"v_lshlrev_b32 v{16+2*k}, 16, v{XRES+k}\nv_and_b32 v{17+2*k}, 0xffff0000, v{XRES+k}")
        def o_mfma(u, extra=0):
            n, k = useq[u]
            g(f"s_waitcnt lgkmcnt({2*min(LA-1, 15-u) + extra})")
            g(mfma(FACC+16*n, OA[u % 6], oregs[k], FACC+16*n))
            if u + LA < 16:
                for x in ord_(u + LA): g(x)
        for u in range(11): o_mfma(u)
        for kq in range(4):
            nxt = g.label("FK")
            if kq < 3: g(f"s_cmp_lg_u32 s{sKQ}, {kq}\ns_cbranch_scc1 {nxt}")
            wr = []
            for gq in (0, 1):
                if gq != kq:
                    v, o = blk(gq, kq)
                    wr += [f"ds_write_b128 v{v}, {vr(FACC+8*gq+4*u,4)} offset:{o + u*1024}" for u in range(2)]
            nw = 0
            for u in range(11, 16):
                o_mfma(u, nw)
                if wr: g(wr.pop(0)); nw += 1
            if kq == 0: g.ts(13)
            g("s_nop 7\ns_nop 3")
            for gq in (2, 3):
                if gq != kq:
                    v, o = blk(gq, kq)
                    for u in range(2): g(f"ds_write_b128 v{v}, {vr(FACC+8*gq+4*u,4)} offset:{o + u*1024}")
            for e in range(8): g(f"v_mov_b32 v{OW+e}, v{FACC+8*kq+e}")
            g("s_waitcnt lgkmcnt(0)\ns_barrier")
            for d in range(1, 4):
                v, o = blk(kq, (kq + d) % 4)
                for u in range(2): g(f"ds_read_b128 {vr(RD+8*(d-1)+4*u,4)}, v{v} offset:{o + u*1024}")
            if kq < 3: g(f"s_branch {FIN}\n{nxt}:")
    g(f"{FIN}:\ns_waitcnt lgkmcnt(4)")
    for e in range(8): g(f"v_add_f32 v{OW+e}, v{OW+e}, v{RD+e}")
    g("s_waitcnt lgkmcnt(0)")
    for e in range(8): g(f"v_add_f32 v{RD+8+e}, v{RD+8+e}, v{RD+16+e}")
    for e in range(8): g(f"v_add_f32 v{OW+e}, v{OW+e}, v{RD+8+e}")
    g("s_nop 1")
    for e in range(4): g(f"v_permlane32_swap_b32 v{OW+e}, v{OW+4+e}")
    g("s_nop 1")
    for e in range(8): g(f"v_add_f32 v{OW+e}, v{OW+e}, v{16+e}")
    for k in range(4): g(f"v_cvt_pk_bf16_f32 v{OW+k}, v{OW+2*k}, v{OW+2*k+1}")
    g(f"buffer_store_dwordx4 {vr(OW,4)}, v{vXO}, {srd(SOUT)}, s{sXO} offen {opt.OUTF}")
    sk = g.label("EP")
    g(f"""
    s_or_b32 s{sT0}, s{sTB}, s{sHG}
    s_or_b32 s{sT0}, s{sT0}, s{sWV}
    s_cmp_lg_u32 s{sT0}, 0
    s_cbranch_scc1 {sk}
    v_mov_b32 v29, s{sTAG}
    s_mov_b64 exec, 1
    buffer_store_dword v29, off, {srd(SWS)}, 0 offset:{WS_EPOCH}
    s_mov_b64 exec, -1
    {sk}:
    """)
    if opt.TS:
        g(f"""
        s_lshl_b32 s{sT0}, s2, 3
        s_add_u32 s{sT0}, s{sT0}, s{sWV}
        s_lshl_b32 s{sT0}, s{sT0}, 7
        s_add_u32 s{sT0}, s{sT0}, {WS_TSB}
        s_memtime s[{sT2}:{sT3}]
        s_waitcnt vmcnt(0)
        s_memtime s[{sT4}:{sT5}]
        s_waitcnt lgkmcnt(0)
        s_mov_b32 s{sTS+14}, s{sT2}
        s_mov_b32 s{sTS+15}, s{sT4}
        s_memrealtime s[{sT4}:{sT5}]
        s_waitcnt lgkmcnt(0)
        s_mov_b32 s{sTS+17}, s{sT4}
        """)
        for k in range(18): g(f"v_mov_b32 v{32+k}, s{sTS+k}")
        g("v_mov_b32 v28, 0\ns_mov_b64 exec, 1")
        for k in range(5): g(f"buffer_store_dwordx4 {vr(32+4*k,4)}, v28, {srd(SWS)}, s{sT0} offen offset:{16*k}")
    g("s_endpgm")
    L1, L2 = g.label("FL"), g.label("FL")
    g(f"""
    {FBK}:
    v_subrev_u32 v30, {KVR}, v{vKA2}
    v_subrev_u32 v29, {KVR}, v{vVA}
    s_mov_b32 s{sT2}, {WS_KV}
    v_mov_b32 v{vMX}, 0xff800000
    {L1}:
    buffer_load_dwordx4 {vr(vK,4)}, v30, {srd(SWS)}, s{sT2} offen sc1
    s_waitcnt vmcnt(0)
    """)
    g(mfma(vS[0], vK, vQ, "0"))
    g("s_nop 7\ns_nop 3")
    maxtree(False, 16)
    g(f"s_add_u32 s{sT2}, s{sT2}, 2048\ns_cmp_lt_u32 s{sT2}, {WS_KV + 131072}\ns_cbranch_scc1 {L1}")
    finish_m(0.0)
    for r in range(16): g(f"v_mov_b32 v{vO+r}, 0")
    g(f"""
    s_mov_b32 s{sT2}, {WS_KV}
    {L2}:
    buffer_load_dwordx4 {vr(vK,4)}, v30, {srd(SWS)}, s{sT2} offen sc1
    s_mov_b64 exec, s[{sVM}:{sVM+1}]
    buffer_load_dwordx4 {vr(vV0,4)}, v29, {srd(SWS)}, s{sT2} offen sc1
    buffer_load_dwordx4 {vr(vV1[0],4)}, v29, {srd(SWS)}, s{sT2} offen offset:1024 sc1
    s_mov_b64 exec, -1
    s_waitcnt vmcnt(0)
    """)
    g(mfma(vS[0], vK, vQ, vC))
    g("s_nop 7\ns_nop 3")
    for k in range(16): g(f"v_exp_f32 v{vS[0]+k}, v{vS[0]+k}")
    g("s_nop 1")
    g(smf(vO, vV0, vS[0], vIDX)); g(smf(vO, vV1[0], vS[0]+8, vIDX))
    g(f"s_add_u32 s{sT2}, s{sT2}, 2048\ns_cmp_lt_u32 s{sT2}, {WS_KV + 131072}\ns_cbranch_scc1 {L2}")
    g(f"s_nop 7\ns_nop 3\ns_branch {ONORM}")
    g("L_END:\ns_endpgm")
    body = g.text()
    hdr = open("parallel_sum__grouped_kv_mqa__dense_activation_relu__prompt.s.ref").read().split("; Override launch")[0]
    out = hdr + f"; @launch grid=(256,1,1) block=(512,1,1) lds={LDS_SIZE}\n"
    out += f""".amdgcn_target "amdgcn-amd-amdhsa--gfx950"
.text
.globl {NAME}
.p2align 8
.type {NAME},@function
{NAME}:
""" + body + f""".section .rodata,"a"
.p2align 6
.amdhsa_kernel {NAME}
  .amdhsa_next_free_vgpr 256
  .amdhsa_next_free_sgpr 102
  .amdhsa_accum_offset 256
  .amdhsa_group_segment_fixed_size 0
  .amdhsa_kernarg_size 88
  .amdhsa_user_sgpr_count 2
  .amdhsa_user_sgpr_kernarg_segment_ptr 1
  .amdhsa_system_sgpr_workgroup_id_x 1
.end_amdhsa_kernel
"""
    return out

if __name__ == "__main__":
    outp = sys.argv[1]
    for a in sys.argv[2:]:
        k, v = a.split("=", 1)
        assert hasattr(opt, k), k
        setattr(opt, k, eval(v))
    open(outp, "w").write(build())
```

```python
import sys, struct
NAME = "parallel_sum__grouped_kv_mqa__dense_activation_relu__prompt_kernel"
fb = lambda x: struct.unpack("<I", struct.pack("<f", x))[0]

class Opt:
    TS = False; TSA = False; TSR = False
    BIAS = 100.0
    SPIN = 200000
    NPRE = 6
    KVPOLL_Q = 99
    WQ_AT = (-1, -1, -1, -1, 7, 7, 8, 8)
    W1_AT = (10, 10); WQA = -2; BW_AT = None; WQA_EARLY = 0
    F1_START = 0; QMID = 99; KVCHECK_AT = 3; KVPOLL_PRE = 1
    HFLAG_T = 28; HPOLL_T = 31; HCHECK_T = 34; F2_START = 42; NF2 = 14
    NH = 20
    P = (4, 8, 12); XP = (14, 16)
    NTAILPRE = 17
    HEP = (1, 2); HST = (1, 2, 3, 4)
    SLOT_D = 'CBX'; SLOT_H = 'AB'
    TOUCH3 = 1; T3_T = 16; W2_T0 = 21; W2_LIM = 36
    OLOAD_AT = 11
    SENT_LATE = 1; RLATE = 0; X_EPS = 0.0; KVW_LATE = 0; PROLOG_IN = 1; OSPLIT = 1; TSP = (2, 4); NWQ1 = 8; QTOUCH = 1; QTW = 7
    SKIPDUP = 1; HLEAD = 20; HROT = 0; OUTF = ""
    TAILBAR = (1, 8, 12)
    X_UNTIL = 0; X_UPOS = 8; X_FB = 0
opt = Opt()

WS_EPOCH = 0; WS_FKV = 0x1000; WS_FH = 0x2000; WS_FO = 0x3000
WS_TSB = 0xC00000; WS_KV = 0x10000; WS_O = 0x40000; WS_H = 0x300000; WS_SIZE = 0x1000000

XN = 0; XPITCH = 1040; XN_END = 64*XPITCH
WQ = XN_END; KVR = XN_END
W1BASE = 99328
S1 = [132096, 146432, 99328, 113664]
STG = 146432; RARR = 162816; SYNC = 163072
KVS = [0, 16384, 8192, 24576]
LDS_SIZE = 163840
T2 = [i*8192 for i in range(8)] + [W1BASE + i*8192 for i in range(7)] + [KVR + i*8192 for i in range(4)]
NRES = 15

sRB = 3
sW2S, sXO = 14, 15
sTB, sHG, sWV, sTAG, sTH, sKQ = 26, 27, 28, 29, 30, 31
SX, SW1, SKV, SWS, SW2, SWO, SOUT = 32, 36, 40, 44, 48, 52, 56
SXO = 44
SWQ = 8
sROT = 4
sR, sK, sM1a, sM1b, sHS, sHS2 = 60, 61, 62, 63, 64, 65
sONE2, sLO, sHI, sJ = 66, 67, 68, 69
sVM = 70
sT0, sT1, sT2, sT3, sT4, sT5 = 72, 73, 74, 75, 76, 77
sOS = 22
sHB, sOB, sCNT, sW2B, sKVS, sKVL = 78, 79, 80, 81, 82, 83
sTS = 84
def srd(b): return f"s[{b}:{b+3}]"
def vr(b, n): return f"v[{b}:{b+n-1}]" if n > 1 else f"v{b}"

class Gen:
    def __init__(self): self.l = []; self.nl = 0; self.vm = []; self.done = -1
    def __call__(self, s):
        for x in s.strip("\n").split("\n"):
            x = x.strip()
            if x: self.l.append(("" if x.endswith(":") else "    ") + x)
    def label(self, p="L"):
        self.nl += 1; return f"{p}_{self.nl}"
    def vmop(self, s, tag=None):
        self(s); self.vm.append(tag)
    def vmneed(self, tags):
        idx = -1
        for tag in tags:
            c = [i for i, t in enumerate(self.vm) if t == tag]
            assert c, tag
            idx = max(idx, c[-1])
        return idx
    def vmwait(self, *tags, extra=""):
        idx = self.vmneed(tags)
        if idx <= self.done:
            if extra: self(f"s_waitcnt {extra}")
            return
        n = len(self.vm) - 1 - idx
        assert n <= 63, n
        self.done = idx
        self(f"s_waitcnt vmcnt({n}) {extra}")
    def ts(self, i, att=False):
        if opt.X_UNTIL and i == opt.X_UPOS and not att:
            l = self.label("U")
            self(f"{l}:\ns_memrealtime s[98:99]\ns_waitcnt lgkmcnt(0)\ns_sub_u32 s98, s98, s100\ns_cmp_lt_u32 s98, {opt.X_UNTIL}\ns_cbranch_scc1 {l}")
        if opt.TS and (att == opt.TSA or i in (0, 15)):
            if opt.TSR: self(f"s_memrealtime s[{sTS+14}:{sTS+15}]\ns_waitcnt lgkmcnt(0)\ns_sub_u32 s{sTS+14}, s{sTS+14}, s{sTS+16}\ns_mul_i32 s{sTS+14}, s{sTS+14}, 10\ns_add_u32 s{sTS+i}, s{sTS+14}, s{sTS}")
            else: self(f"s_memtime s[{sTS+14}:{sTS+15}]\ns_waitcnt lgkmcnt(0)\ns_mov_b32 s{sTS+i}, s{sTS+14}")
    def text(self): return "\n".join(self.l) + "\n"

def mfma(d, a, b, c):
    cs = vr(c, 16) if isinstance(c, int) else c
    return f"v_mfma_f32_32x32x16_bf16 {vr(d,16)}, {vr(a,4)}, {vr(b,4)}, {cs}"
def mfma16(d, a, b, c):
    cs = vr(c, 4) if isinstance(c, int) else c
    return f"v_mfma_f32_16x16x32_bf16 {vr(d,4)}, {vr(a,4)}, {vr(b,4)}, {cs}"
def smf(d, a, b, idx): return f"v_smfmac_f32_32x32x32_bf16 {vr(d,16)}, {vr(a,4)}, {vr(b,8)}, v{idx}"

def build():
    g = Gen()
    NPRE = opt.NPRE
    vL, vX, vL16, vB, vA1, vA1b, vW1a, vW1b, vXW, vKB, vKA = 1, 2, 3, 4, 5, 6, 7, 8, 9, 10, 11
    vRT = 12
    vQ, vK, vK1, FB, vV0, vV1, vO, vC, vS, FA = 16, 20, 24, 32, 36, [40, 44], 48, 64, [80, 96], 112
    vKA2, vVA, vIDX, vW2, vG0, vG1, vG2, vT3, vXO, vRB, vWQ, vROW = range(120, 132)
    FACC, HB = 132, 164
    vQAa, vQB, vWQ2, vKR, vJ = 240, 241, 242, 243, 255
    XR, WK, KB, KD = 32, 164, 64, 228
    g(f"""
    s_cmp_ge_u32 s2, 256
    s_cbranch_scc1 L_END
    s_load_dwordx16 s[4:19], s[0:1], 0
    s_load_dwordx2 s[20:21], s[0:1], 64
    s_load_dwordx2 s[24:25], s[0:1], 80
    """)
    if opt.TS: g(f"s_memtime s[{sTS}:{sTS+1}]\ns_memrealtime s[{sTS+16}:{sTS+17}]")
    if opt.X_UNTIL: g("s_memrealtime s[100:101]")
    g(f"""
    v_lshrrev_b32 v16, 6, v0
    s_lshr_b32 s{sJ}, s2, 3
    s_mov_b32 s{SW1+3}, 0x20000
    v_readfirstlane_b32 s{sWV}, v16
    s_getpc_b64 s[{SW1}:{SW1+1}]
    L_PC:
    s_mov_b32 s{SW1+2}, L_END-L_PC
    v_and_b32 v17, 1, v0
    v_lshl_add_u32 v16, v16, 1, v17
    v_lshlrev_b32 v16, 7, v16
    s_lshl_b32 s{sT1}, s{sJ}, 11
    buffer_load_dword v{vJ}, v16, {srd(SW1)}, s{sT1} offen
    v_and_b32 v{vL}, 63, v0
    s_and_b32 s{sT0}, s2, 7
    s_lshr_b32 s{sTB}, s{sT0}, 1
    s_and_b32 s{sR}, s{sJ}, 7
    s_lshl3_add_u32 s{sTB}, s{sTB}, s{sR}
    s_and_b32 s{sT0}, s{sT0}, 1
    s_lshr_b32 s{sT2}, s{sJ}, 3
    s_lshl2_add_u32 s{sHG}, s{sT0}, s{sT2}
    s_and_b32 s{sTH}, s{sWV}, 1
    s_lshr_b32 s{sKQ}, s{sWV}, 1
    s_lshl2_add_u32 s{sRB}, s{sTH}, s{sKQ}
    s_add_u32 s{sRB}, s{sRB}, s{sHG}
    s_and_b32 s{sRB}, s{sRB}, 7
    s_lshl_b32 s{sT2}, s{sRB}, 3
    v_lshrrev_b32 v22, 3, v{vL}
    v_add_u32 v{vROW}, s{sT2}, v22
    v_lshlrev_b32 v16, 10, v{vROW}
    v_and_b32 v17, 7, v0
    v_lshl_add_u32 v{vX}, v17, 4, v16
    v_lshlrev_b32 v{vL16}, 4, v{vL}
    v_mul_u32_u24 v16, {XPITCH}, v{vROW}
    v_lshl_add_u32 v{vXW}, v17, 4, v16
    v_bfe_u32 v16, v{vL}, 3, 1
    v_lshlrev_b32 v16, 2, v16
    v_xor_b32 v16, s{sHG}, v16
    v_lshl_add_u32 v{vKR}, v16, 3, v17
    v_mul_u32_u24 v16, {XPITCH}, v{vKR}
    v_lshrrev_b32 v18, 4, v{vL}
    v_lshl_add_u32 v{vKB}, v18, 4, v16
    v_bfe_u32 v19, v{vL}, 2, 2
    v_lshl_add_u32 v16, v18, 3, v19
    v_lshlrev_b32 v16, 5, v16
    v_and_b32 v20, 3, v{vL}
    v_lshl_add_u32 v16, v20, 3, v16
    v_add_u32 v{vKA}, {STG}, v16
    v_bfe_u32 v16, v{vL}, 4, 1
    v_lshrrev_b32 v21, 1, v17
    v_xor_b32 v16, v16, v21
    v_lshlrev_b32 v21, 10, v22
    v_lshl_add_u32 v21, v16, 5, v21
    v_and_b32 v16, 1, v{vL}
    v_lshl_add_u32 v21, v16, 4, v21
    s_lshl_b32 s{sT1}, s{sHG}, 7
    v_add_u32 v{vWQ}, s{sT1}, v21
    s_lshl_b32 s{sT0}, s{sTB}, 16
    s_lshl_b32 s{sT2}, s{sR}, 7
    """ + "".join(f"s_add_u32 s{SXO+n}, s{sT2}, {n*128}\ns_and_b32 s{SXO+n}, s{SXO+n}, 0x380\ns_or_b32 s{SXO+n}, s{SXO+n}, s{sT0}\n" for n in range(8)) + f"""
    s_mov_b32 s{SX+2}, 0x200000
    s_mov_b32 s{SX+3}, 0x20000
    s_movk_i32 s{SKV+2}, 16384
    s_mov_b32 s{SKV+3}, 0x20000
    s_and_b32 s{sT1}, s{sWV}, 3
    s_lshl2_add_u32 s{sT1}, s{sJ}, s{sT1}
    s_lshl_b32 s{sT1}, s{sT1}, 7
    s_lshl_b32 s{sT4}, s{sTH}, 13
    s_add_u32 s{sT4}, s{sT4}, {STG}
    s_lshl2_add_u32 s{sT5}, s{sTH}, s{sR}
    v_mov_b32 v22, {SYNC}
    v_mov_b32 v23, 0
    s_lshl1_add_u32 s{sT0}, s{sTB}, s{sTH}
    s_lshl_b32 s{sOB}, s{sT0}, 15
    s_add_u32 s{sOB}, s{sOB}, {WS_O}
    s_lshl2_add_u32 s{sT2}, s{sHG}, s{sKQ}
    s_lshl_b32 s{sT2}, s{sT2}, 10
    s_add_u32 s{sOS}, s{sT2}, s{sOB}
    s_mov_b32 s{SOUT+2}, {WS_SIZE}
    s_mov_b32 s{SOUT+3}, 0x20000
    v_mov_b32 v24, -1
    v_mov_b32 v25, -1
    v_mov_b32 v26, -1
    v_mov_b32 v27, -1
    s_bitcmp0_b32 s{sHG}, 2
    s_waitcnt lgkmcnt(0)
    s_cselect_b32 s{SKV}, s8, s10
    s_cselect_b32 s{SKV+1}, s9, s11
    s_mov_b32 s{SX}, s4
    s_mov_b32 s{SX+1}, s5
    s_mov_b32 s{SOUT}, s24
    s_mov_b32 s{SOUT+1}, s25
    buffer_load_dword v{vJ}, off, {srd(SKV)}, s{sT1}
    """)
    def xloads():
        for i in range(8): g(f"buffer_load_dwordx4 {vr(XR+4*i,4)}, v{vX}, {srd(SX)}, s{SXO+i} offen")
    sentinel = f"buffer_store_dwordx4 v[24:27], v{vL16}, {srd(SOUT)}, s{sOS} offen sc1"
    lb, lj = g.label("X"), g.label("X")
    g(f"s_cmp_ge_u32 s{sWV}, 2\ns_cbranch_scc1 {lb}")
    xloads()
    for i in range(4):
        g(f"s_add_u32 m0, s{sT4}, {i*2048}\ns_add_u32 s{sT1}, s{sT5}, {i}\ns_and_b32 s{sT1}, s{sT1}, 7\ns_lshl_b32 s{sT1}, s{sT1}, 11")
        for u in range(2): g(f"buffer_load_dwordx4 v{vL16}, {srd(SKV)}, s{sT1} offen offset:{u*1024} lds")
    g(f"ds_write_b32 v22, v23\nds_write_b32 v22, v23 offset:4\ns_waitcnt lgkmcnt(0)\ns_barrier\ns_branch {lj}\n{lb}:\ns_barrier")
    xloads()
    if opt.QTOUCH:
        g(f"""
        s_mov_b32 s{SW1}, s6
        s_mov_b32 s{SW1+1}, s7
        s_cmp_eq_u32 s{sWV}, {opt.QTW}
        s_cselect_b32 s{SW1+2}, 0x80000, 0
        s_lshl_b32 s{sT0}, s{sR}, 16
        s_lshl_b32 s{sT1}, s{sHG}, 7
        s_add_u32 s{sT0}, s{sT0}, s{sT1}
        v_lshlrev_b32 v16, 10, v{vL}
        buffer_load_dword v{vJ}, v16, {srd(SW1)}, s{sT0} offen
        """)
        if opt.QTOUCH > 1:
            g(f"""
            s_mov_b32 s{SW1}, s16
            s_mov_b32 s{SW1+1}, s17
            s_cmp_eq_u32 s{sWV}, {opt.QTW}
            s_cselect_b32 s{SW1+2}, {512*3584}, 0
            s_mul_i32 s{sT0}, s{sR}, {64*3584}
            s_mul_i32 s{sT1}, s{sHG}, 448
            s_and_b32 s{sT1}, s{sT1}, 0xffffff80
            s_add_u32 s{sT0}, s{sT0}, s{sT1}
            v_lshrrev_b32 v16, 2, v{vL}
            v_mul_u32_u24 v16, 3584, v16
            v_lshl_add_u32 v16, v20, 7, v16
            """)
            for k in range(opt.QTOUCH - 1):
                g(f"buffer_load_dword v{vJ}, v16, {srd(SW1)}, s{sT0} offen\ns_add_u32 s{sT0}, s{sT0}, {16*3584}")
    if opt.SENT_LATE: sentinel = ""
    g(f"{lj}:\n{sentinel}\ns_load_dword s{sTAG}, s[24:25], {WS_EPOCH}")
    g(f"""
    s_mov_b32 s{SWQ}, s6
    s_mov_b32 s{SWQ+1}, s7
    s_mov_b32 s{SWQ+2}, 0x80000
    s_mov_b32 s{SWQ+3}, 0x20000
    s_mov_b32 s{SW1}, s16
    s_mov_b32 s{SW1+1}, s17
    s_mov_b32 s{SW1+2}, {512*3584}
    s_mov_b32 s{SWS}, s24
    s_mov_b32 s{SWS+1}, s25
    s_mov_b32 s{SWS+2}, {WS_SIZE}
    s_mov_b32 s{SWS+3}, 0x20000
    s_mov_b32 s{SW2}, s18
    s_mov_b32 s{SW2+1}, s19
    s_mov_b32 s{SW2+2}, {1792*1024}
    s_mov_b32 s{SW2+3}, 0x20000
    s_mov_b32 s{SWO}, s12
    s_mov_b32 s{SWO+1}, s13
    s_mov_b32 s{SWO+2}, 0x80000
    s_mov_b32 s{SWO+3}, 0x20000
    s_mov_b32 s{sONE2}, 0x3f803f80
    s_mov_b32 s{sLO}, 0x00003f80
    s_mov_b32 s{sHI}, 0x3f800000
    s_mov_b32 s{sVM}, 0x0000ffff
    s_mov_b32 s{sVM+1}, 0x0000ffff
    s_lshl_b32 s{sKVL}, s{sWV}, 10
    s_add_u32 s{sKVS}, s{sKVL}, {WS_KV}
    s_add_u32 s{sKVL}, s{sKVL}, {KVR}
    s_mul_i32 s{sK}, s{sR}, {64*3584}
    s_min_u32 s{sT3}, s{sWV}, 6
    s_lshl_b32 s{sM1a}, s{sT3}, 10
    s_add_u32 s{sT0}, s{sWV}, 8
    s_cmp_lt_u32 s{sWV}, 6
    s_cselect_b32 s{sT0}, s{sT0}, 7
    s_lshl_b32 s{sM1b}, s{sT0}, 10
    s_mul_i32 s{sT1}, s{sHG}, 448
    s_movk_i32 s{sT2}, 2341
    """)
    for dst, sm in ((vW1a, sT3), (vW1b, sT0)):
        g(f"""
        v_lshl_add_u32 v16, s{sm}, 6, v{vL}
        v_mul_lo_u32 v17, v16, s{sT2}
        v_lshrrev_b32 v17, 16, v17
        v_mul_u32_u24 v21, 28, v17
        v_sub_u32 v16, v16, v21
        v_mul_u32_u24 v17, 3584, v17
        v_lshl_add_u32 v16, v16, 4, v17
        v_add_u32 v{dst}, s{sT1}, v16
        """)
    g(f"""
    v_lshrrev_b32 v21, 5, v{vL}
    v_bfe_u32 v22, v{vL}, 4, 1
    v_lshl_add_u32 v16, v21, 3, v19
    v_mul_u32_u24 v16, 448, v16
    v_lshl_add_u32 v16, v22, 5, v16
    v_lshl_add_u32 v16, v20, 3, v16
    s_lshl_b32 s{sT0}, s{sKQ}, 7
    s_add_u32 s{sT0}, s{sT0}, {W1BASE}
    v_add_u32 v{vA1}, s{sT0}, v16
    s_cmp_lt_u32 s{sKQ}, 3
    s_cselect_b32 s{sT0}, 64, 0
    v_add_u32 v{vA1b}, s{sT0}, v{vA1}
    v_and_b32 v16, 31, v{vL}
    s_lshl_b32 s{sT0}, s{sTH}, 5
    v_add_u32 v17, s{sT0}, v16
    v_mul_u32_u24 v17, {XPITCH}, v17
    v_lshl_add_u32 v{vB}, v21, 4, v17
    v_lshlrev_b32 v16, 10, v16
    v_lshl_add_u32 v{vXO}, v21, 4, v16
    v_and_b32 v23, 15, v{vL}
    v_add_u32 v17, s{sT0}, v23
    v_mul_u32_u24 v17, {XPITCH}, v17
    v_lshl_add_u32 v{vQB}, v18, 8, v17
    v_xor_b32 v{vWQ2}, 64, v{vWQ}
    v_bfe_u32 v16, v{vL}, 3, 1
    v_lshl_or_b32 v16, v22, 1, v16
    v_xor_b32 v16, s{sKQ}, v16
    v_lshlrev_b32 v16, 5, v16
    v_lshl_add_u32 v16, v18, 14, v16
    v_lshl_add_u32 v16, v19, 7, v16
    v_lshl_add_u32 v16, v20, 3, v16
    v_add_u32 v{vQAa}, {WQ}, v16
    v_bfe_u32 v16, v{vL}, 3, 2
    v_lshlrev_b32 v17, 9, v16
    v_lshrrev_b32 v16, 1, v16
    v_xor_b32 v16, v16, v21
    v_lshl_add_u32 v17, v16, 7, v17
    v_and_b32 v16, 7, v{vL}
    v_lshl_add_u32 v17, v16, 4, v17
    v_add_u32 v{vKA2}, {KVR}, v17
    v_lshlrev_b32 v17, 9, v21
    v_lshl_add_u32 v17, v23, 4, v17
    v_add_u32 v{vVA}, {KVR + 256}, v17
    v_mov_b32 v{vIDX}, 0xdddddddd
    v_lshrrev_b32 v16, 2, v{vL}
    v_lshlrev_b32 v16, 10, v16
    v_lshl_add_u32 v{vT3}, v20, 7, v16
    v_lshl_add_u32 v16, v20, 4, v16
    s_lshl_b32 s{sT0}, s{sHG}, 7
    s_lshl_b32 s{sT1}, s{sTH}, 6
    s_add_u32 s{sT0}, s{sT0}, s{sT1}
    v_add_u32 v{vW2}, s{sT0}, v16
    v_lshlrev_b32 v16, 6, v19
    v_lshl_add_u32 v16, v22, 5, v16
    v_lshl_add_u32 v16, v20, 3, v16
    v_lshl_add_u32 v16, v21, 8, v16
    s_lshl_b32 s{sT0}, s{sKQ}, 11
    v_add_u32 v{vG0}, s{sT0}, v16
    v_add_u32 v{vG1}, {XN_END}, v{vG0}
    v_add_u32 v{vG2}, {W1BASE}, v{vG0}
    s_lshl_b32 s{sW2B}, s{sTH}, 10
    s_add_u32 s{sW2B}, s{sW2B}, s{sT0}
    s_lshl1_add_u32 s{sT0}, s{sTB}, s{sTH}
    s_mul_i32 s{sT2}, s{sT0}, 112
    s_mul_i32 s{sT1}, s{sKQ}, 28
    s_add_u32 s{sHB}, s{sT2}, s{sT1}
    s_lshl_b32 s{sHB}, s{sHB}, 10
    s_add_u32 s{sHB}, s{sHB}, {WS_H}
    s_mul_i32 s{sT1}, s{sHG}, 14
    s_add_u32 s{sT2}, s{sT2}, s{sT1}
    s_lshl2_add_u32 s{sT2}, s{sKQ}, s{sT2}
    s_lshl_b32 s{sHS}, s{sT2}, 10
    s_add_u32 s{sHS}, s{sHS}, {WS_H}
    s_cmp_lt_u32 s{sKQ}, 3
    s_cselect_b32 s{sHS2}, s{sHS}, 0x7f000000
    s_lshl_b32 s{sXO}, s{sT0}, 15
    s_lshl_b32 s{sT1}, s{sHG}, 7
    s_add_u32 s{sXO}, s{sXO}, s{sT1}
    s_lshl_b32 s{sT1}, s{sKQ}, 5
    s_add_u32 s{sXO}, s{sXO}, s{sT1}
    s_mul_i32 s{sW2S}, s{sKQ}, {28*16384}
    s_lshl_b32 s{sT0}, s{sTH}, 11
    v_add_u32 v{vRB}, s{sT0}, v{vL16}
    """)
    def wq_dma(i):
        g(f"s_add_u32 m0, s{sKVL}, {i*8192}\ns_add_u32 s{sT0}, s{sR}, {i}\ns_and_b32 s{sT0}, s{sT0}, 7\ns_lshl_b32 s{sT0}, s{sT0}, 16")
        g.vmop(f"buffer_load_dwordx4 v{vWQ2 if (i >> 1) & 1 else vWQ}, {srd(SWQ)}, s{sT0} offen lds", ("wq", i))
    def w1_dma(c, half):
        if half == 0:
            g(f"s_add_u32 m0, s{sM1a}, {S1[c % 4]}\ns_nop 0")
            g.vmop(f"buffer_load_dwordx4 v{vW1a}, {srd(SW1)}, s{sK} offen lds", ("w1", c))
        else:
            g(f"s_add_u32 m0, s{sM1b}, {S1[c % 4]}\ns_add_u32 s{sT0}, s{sK}, {32*3584}")
            g.vmop(f"buffer_load_dwordx4 v{vW1b}, {srd(SW1)}, s{sK} offen lds", ("w1", c))
            g(f"s_sub_u32 s{sK}, s{sT0}, s{SW1+2}\ns_cselect_b32 s{sK}, s{sT0}, s{sK}")
    a0, a1, vM, vD, E, Q2 = 12, 13, 14, 15, 16, 24
    def dpp_reduce(v):
        for m in ("quad_perm:[1,0,3,2]", "quad_perm:[2,3,0,1]", "row_half_mirror"):
            g(f"s_nop 1\nv_add_f32_dpp v{v}, v{v}, v{v} {m} row_mask:0xf bank_mask:0xf")
    def issue_at(pos):
        for i in range(8):
            if opt.WQ_AT[i] == pos: wq_dma(i)
        for c in range(2):
            if opt.W1_AT[c] == pos:
                l7, lj_ = g.label("W7"), g.label("W7")
                g(f"s_cmp_eq_u32 s{sWV}, 7\ns_cbranch_scc1 {l7}")
                w1_dma(c, 0); w1_dma(c, 1)
                g(f"s_branch {lj_}\n{l7}:\ns_add_u32 s{sT0}, s{sK}, {32*3584}")
                for _ in range(2): g(f"buffer_load_dword v{vJ}, off, {srd(SW1)}, s{sHS2}")
                g(f"s_sub_u32 s{sK}, s{sT0}, s{SW1+2}\ns_cselect_b32 s{sK}, s{sT0}, s{sK}\n{lj_}:")
    def layernorm(cls):
        ny = (9 if cls == 0 else 1 + opt.QTOUCH) - opt.SENT_LATE
        g(f"v_mov_b32 v{a0}, 0\nv_mov_b32 v{a1}, 0\ns_waitcnt vmcnt({ny+4})")
        g.ts(1)
        for j in range(16): g(f"v_dot2_f32_bf16 v{a0+(j&1)}, v{XR+j}, s{sONE2}, v{a0+(j&1)}")
        g(f"s_waitcnt vmcnt({ny})")
        for j in range(16, 32): g(f"v_dot2_f32_bf16 v{a0+(j&1)}, v{XR+j}, s{sONE2}, v{a0+(j&1)}")
        for r in range(4): g(f"v_mov_b32 v{Q2+r}, 0")
        g(f"v_add_f32 v{a0}, v{a0}, v{a1}")
        dpp_reduce(a0)
        g(f"""
        v_mul_f32 v{a0}, 0x3b000000, v{a0}
        v_cvt_pk_bf16_f32 v{vM}, v{a0}, v{a0}
        v_and_b32 v{vM}, 0xffff0000, v{vM}
        v_sub_f32 v{vD}, v{a0}, v{vM}
        v_xor_b32 v{vM}, 0x80000000, v{vM}
        """)
        pend = []
        for i in range(8):
            for jj in range(4):
                j = XR + 4*i + jj
                g(f"v_dot2_f32_bf16 v{E+2*jj}, v{j}, s{sLO}, v{vM}\nv_dot2_f32_bf16 v{E+2*jj+1}, v{j}, s{sHI}, v{vM}")
            for jj in range(4):
                j = XR + 4*i + jj
                acc = Q2 + 2*(jj & 1)
                g(f"v_pk_fma_f32 {vr(acc,2)}, {vr(E+2*jj,2)}, {vr(E+2*jj,2)}, {vr(acc,2)}\nv_cvt_pk_bf16_f32 v{j}, v{E+2*jj}, v{E+2*jj+1}")
            g(f"ds_write_b128 v{vXW}, {vr(XR+4*i,4)} offset:{XN + i*128}")
        g(f"v_pk_add_f32 {vr(Q2,2)}, {vr(Q2,2)}, {vr(Q2+2,2)}\nv_add_f32 v{a0}, v{Q2}, v{Q2+1}")
        dpp_reduce(a0)
        g(f"""
        v_mul_f32 v{a0}, 0x3b000000, v{a0}
        v_fma_f32 v{a0}, -v{vD}, v{vD}, v{a0}
        v_max_f32 v{a0}, 0, v{a0}
        v_cvt_pk_bf16_f32 v{a0}, v{a0}, v{a0}
        v_and_b32 v{a0}, 0xffff0000, v{a0}
        v_add_f32 v{a0}, 0x3727c5ac, v{a0}
        v_cvt_pk_bf16_f32 v{a0}, v{a0}, v{a0}
        v_and_b32 v{a0}, 0xffff0000, v{a0}
        v_sqrt_f32 v{a0}, v{a0}
        v_lshlrev_b32 v{E}, 2, v{vROW}
        v_cvt_pk_bf16_f32 v{a0}, v{a0}, v{a0}
        v_and_b32 v{a0}, 0xffff0000, v{a0}
        v_rcp_f32 v{a1}, v{a0}
        v_add_u32 v{E}, {RARR}, v{E}
        ds_write_b32 v{E}, v{a1}
        """)
        g.ts(2)
    lB, lJ = g.label("LB"), g.label("LJ")
    g(f"s_cmp_ge_u32 s{sWV}, 2\ns_cbranch_scc1 {lB}")
    layernorm(0)
    NE = -opt.SENT_LATE
    lw0, lk, lv, lsp, lgo = g.label("KW"), g.label("KV"), g.label("KV"), g.label("KS"), g.label("KG")
    g(f"""
    v_mov_b32 v22, {SYNC}
    s_cmp_eq_u32 s{sWV}, 0
    s_cbranch_scc1 {lw0}
    v_mov_b32 v23, 1
    s_waitcnt vmcnt({1 + NE}) lgkmcnt(0)
    ds_write_b32 v22, v23
    """)
    AW = 64
    g(f"s_mul_i32 s{sT1}, s{sHG}, 448\ns_movk_i32 s{sT2}, 2341")
    def wq_group(i):
        g(f"s_add_u32 s{sT0}, s{sR}, {i}\ns_and_b32 s{sT0}, s{sT0}, 7\ns_lshl_b32 s{sT0}, s{sT0}, 16")
        for w in range(8):
            g(f"s_mov_b32 m0, {WQ + (w + 8*i)*1024}\ns_add_u32 s{sT3}, s{sT0}, {w*8192}")
            g(f"buffer_load_dwordx4 v{vWQ2 if (i >> 1) & 1 else vWQ}, {srd(SWQ)}, s{sT3} offen lds")
    for i in range(8):
        if i < opt.NWQ1: wq_group(i)
        if i < 7:
            g(f"""
            v_add_u32 v16, {64*i}, v{vL}
            v_mul_lo_u32 v17, v16, s{sT2}
            v_lshrrev_b32 v17, 16, v17
            v_mul_u32_u24 v21, 28, v17
            v_sub_u32 v16, v16, v21
            v_mul_u32_u24 v17, 3584, v17
            v_lshl_add_u32 v16, v16, 4, v17
            v_add_u32 v{AW+i}, s{sT1}, v16
            """)
    if opt.NWQ1 < 8:
        a_, b_ = g.label("KS"), g.label("KG")
        g(f"""
        s_mov_b32 s{sCNT}, 0
        {a_}:
        ds_read_b32 v23, v22 offset:4
        s_add_u32 s{sCNT}, s{sCNT}, 1
        s_waitcnt lgkmcnt(0)
        v_readfirstlane_b32 s{sT1}, v23
        s_cmp_gt_u32 s{sCNT}, {opt.SPIN}
        s_cbranch_scc1 {b_}
        s_cmp_lt_u32 s{sT1}, 128
        s_cbranch_scc1 {a_}
        {b_}:
        """)
    LSP2, LGO2 = g.label("KS"), g.label("KG")
    for c in range(2):
        if c == 1:
            g(f"""
            s_mov_b32 s{sCNT}, 0
            {LSP2}:
            ds_read_b32 v23, v22
            s_add_u32 s{sCNT}, s{sCNT}, 1
            s_waitcnt lgkmcnt(0)
            v_readfirstlane_b32 s{sT1}, v23
            s_cmp_gt_u32 s{sCNT}, {opt.SPIN}
            s_cbranch_scc1 {LGO2}
            s_cmp_eq_u32 s{sT1}, 1
            s_cbranch_scc1 {LSP2}
            {LGO2}:
            """)
        for hf in range(2):
            g(f"s_add_u32 s{sT3}, s{sK}, {(32*c + 16*hf)*3584}")
            for m in range(7):
                g(f"s_mov_b32 m0, {S1[c] + (7*hf + m)*1024}\ns_nop 0\nbuffer_load_dwordx4 v{AW+m}, {srd(SW1)}, s{sT3} offen lds")
    g(f"""
    s_waitcnt vmcnt(28)
    s_branch {lk}
    {lw0}:
    v_lshlrev_b32 v16, 2, v{vKR}
    v_add_u32 v16, {RARR}, v16
    v_lshrrev_b32 v19, 4, v{vL}
    v_lshrrev_b32 v21, 1, v19
    v_lshlrev_b32 v17, 2, v21
    v_xor_b32 v17, s{sHG}, v17
    v_and_b32 v18, 15, v{vL}
    v_lshlrev_b32 v18, 4, v18
    v_lshl_add_u32 v18, v17, 9, v18
    v_and_b32 v28, 1, v19
    v_lshl_add_u32 v18, v28, 3, v18
    v_lshlrev_b32 v17, 5, v17
    v_lshl_add_u32 v17, v28, 4, v17
    v_add_u32 v17, {RARR}, v17
    s_lshr_b32 s{sT1}, s{sHG}, 1
    v_xor_b32 v20, s{sT1}, v19
    v_and_b32 v20, 1, v20
    v_lshlrev_b32 v20, 7, v20
    v_lshl_add_u32 v20, v21, 3, v20
    v_lshrrev_b32 v21, 3, v{vKR}
    v_lshl_add_u32 v20, v21, 9, v20
    v_and_b32 v21, 7, v{vL}
    v_lshl_add_u32 v20, v21, 4, v20
    s_lshl_b32 s{sT0}, s{sTB}, 12
    s_add_u32 s{sT0}, s{sT0}, {WS_KV}
    s_mov_b32 s{sCNT}, 0
    s_waitcnt vmcnt({1 + NE})
    """)
    for s in range(8):
        for q in range(2): g(f"ds_read_b64_tr_b16 {vr(WK+4*s+2*q,2)}, v{vKA} offset:{s*1024+q*128}")
    g(f"""
    {lsp}:
    ds_read_b32 v23, v22
    s_add_u32 s{sCNT}, s{sCNT}, 1
    s_waitcnt lgkmcnt(0)
    v_readfirstlane_b32 s{sT1}, v23
    s_cmp_gt_u32 s{sCNT}, {opt.SPIN}
    s_cbranch_scc1 {lgo}
    s_cmp_eq_u32 s{sT1}, 0
    s_cbranch_scc1 {lsp}
    {lgo}:
    """)
    for s in range(7): g(f"ds_read_b128 {vr(KB+4*s,4)}, v{vKB} offset:{XN + s*64}")
    g(f"s_bitcmp0_b32 s{sHG}, 2\ns_cbranch_scc0 {lv}")
    for role in range(2):
        q = []
        for s in range(7, 16):
            if s >= 8: q.append([f"ds_read_b64_tr_b16 {vr(WK+4*s+2*u,2)}, v{vKA} offset:{s*1024+u*128}" for u in range(2)] + [f"ds_read_b128 {vr(KB+4*(s%8),4)}, v{vKB} offset:{XN + s*64}"])
            else: q.append([f"ds_read_b128 {vr(KB+4*s,4)}, v{vKB} offset:{XN + s*64}"])
        issued = [("b", s) for s in range(7)]
        for s in range(16):
            idx = max(i for i, x in enumerate(issued) if x == ("b", s))
            g(f"s_waitcnt lgkmcnt({min(15, len(issued) - 1 - idx)})")
            g(mfma16(KD, WK+4*s, KB+4*(s%8), KD if s else "0") if role == 0 else mfma16(KD, KB+4*(s%8), WK+4*s, KD if s else "0"))
            k = s + 7
            if k < 16 and (k < 8 or k - 8 <= s):
                for x in q[k-7]: g(x); issued.append(("b", k))
            if s == 9: g(f"ds_read_b32 v24, v16" if role == 0 else f"ds_read_b128 v[24:27], v17"); issued.append("r")
        g("v_mov_b32 v23, 2\ns_waitcnt lgkmcnt(0)\nds_write_b32 v22, v23\ns_nop 4")
        for k in range(4): g(f"v_mul_f32 v{KD+k}, v{KD+k}, v{24 if role == 0 else 24+k}")
        g(f"v_cvt_pk_bf16_f32 v{KD}, v{KD}, v{KD+1}\nv_cvt_pk_bf16_f32 v{KD+1}, v{KD+2}, v{KD+3}")
        if role == 0: g(f"buffer_store_dwordx2 {vr(KD,2)}, v20, {srd(SWS)}, s{sT0} offen sc1\ns_branch {lk}\n{lv}:")
        else: g(f"buffer_store_dwordx2 {vr(KD,2)}, v18, {srd(SWS)}, s{sT0} offen offset:256 sc1")
    g(f"{lk}:")
    g.ts(4)
    kmark = len(g.vm)
    sk = g.label("KF")
    g(f"s_cmp_lg_u32 s{sWV}, 0\ns_cbranch_scc1 {sk}\ns_waitcnt vmcnt({len(g.vm) - kmark}) lgkmcnt(0)\ns_add_u32 s{sT1}, s{sTAG}, 1")
    g(f"""
    s_lshl3_add_u32 s{sT0}, s{sTB}, s{sHG}
    s_lshl_b32 s{sT0}, s{sT0}, 4
    s_add_u32 s{sT0}, s{sT0}, {WS_FKV}
    v_mov_b32 v31, s{sT1}
    s_mov_b64 exec, 1
    buffer_store_dword v31, off, {srd(SWS)}, s{sT0} sc1
    s_mov_b64 exec, -1
    {sk}:
    """)
    g.ts(5)
    vmA = list(g.vm); g.vm = []
    g(f"s_branch {lJ}\n{lB}:")
    layernorm(1)
    if opt.NWQ1 < 8:
        rest = list(range(opt.NWQ1, 8)); h = len(rest)//2
        l3, ld, le = g.label("Q3"), g.label("QD"), g.label("QE")
        g(f"s_cmp_ge_u32 s{sWV}, 4\ns_cbranch_scc1 {le}\ns_cmp_eq_u32 s{sWV}, 3\ns_cbranch_scc1 {l3}")
        for i in rest[:h]: wq_group(i)
        g(f"s_branch {ld}\n{l3}:")
        for i in rest[h:]: wq_group(i)
        g(f"{ld}:\nv_mov_b32 v22, {SYNC}\nv_mov_b32 v23, 1\nds_add_u32 v22, v23 offset:4\ns_waitcnt vmcnt(0)\n{le}:")
    assert vmA == g.vm
    g(f"""
    {lJ}:
    s_lshl_b32 s{sT0}, s{sTH}, 7
    s_add_u32 s{sT0}, s{sT0}, {RARR}
    v_and_b32 v16, 31, v{vL}
    v_lshl_add_u32 v16, v16, 2, s{sT0}
    v_and_b32 v18, 15, v{vL}
    v_lshl_add_u32 v17, v18, 2, s{sT0}
    s_mov_b32 s{SOUT}, s20
    s_mov_b32 s{SOUT+1}, s21
    s_mov_b32 s{SOUT+2}, 0x200000
    """)
    g(f"s_add_u32 s{sT0}, s{sK}, {64*3584}\ns_sub_u32 s{sK}, s{sT0}, s{SW1+2}\ns_cselect_b32 s{sK}, s{sT0}, s{sK}\ns_waitcnt lgkmcnt(0)")
    g.vm += [("w1", 0), ("w1", 0), ("w1", 1), ("w1", 1)]
    g(f"s_add_u32 s{sTAG}, s{sTAG}, 1\ns_barrier")
    g.ts(3)
    g(f"ds_read_b32 v{vRT}, v16\nds_read_b32 v{vRT+1}, v16\nds_read_b32 v14, v17\nds_read_b32 v15, v17 offset:64")
    def flag_store(base):
        g(f"""
        s_lshl3_add_u32 s{sT0}, s{sTB}, s{sHG}
        s_lshl_b32 s{sT0}, s{sT0}, 4
        s_add_u32 s{sT0}, s{sT0}, {base}
        v_mov_b32 v31, s{sTAG}
        s_mov_b64 exec, 1
        buffer_store_dword v31, off, {srd(SWS)}, s{sT0} sc1
        s_mov_b64 exec, -1
        """)
    def check_or_spin(loads, regs):
        done, lab = g.label("PD"), g.label("PL")
        g(f"s_mov_b32 s{sCNT}, 0\n{lab}:")
        for r in regs: g(f"v_xor_b32 v{r}, s{sTAG}, v{r}")
        for r in regs[1:]: g(f"v_or_b32 v{regs[0]}, v{regs[0]}, v{r}")
        g(f"""
        v_cmp_ne_u32 vcc, 0, v{regs[0]}
        s_nop 4
        s_cbranch_vccz {done}
        s_add_u32 s{sCNT}, s{sCNT}, 1
        s_cmp_gt_u32 s{sCNT}, {opt.SPIN}
        s_cbranch_scc1 {done}
        s_sleep 8
        """)
        for s in loads: g(s)
        g(f"s_waitcnt vmcnt(0)\ns_branch {lab}\n{done}:")
    kvpoll = [f"buffer_load_dword v{20+k}, v{vL16}, {srd(SWS)}, s{sT1} offen offset:{k*1024} sc1" for k in range(4)]
    QA, QBf, D0 = 64, 80, 232
    def q_reads(s):
        return [f"ds_read_b64_tr_b16 {vr(QA+4*(s%4)+2*q,2)}, v{vQAa} offset:{s*1024+q*512}" for q in range(2)] + \
               [f"ds_read_b128 {vr(QBf+8*(s%4)+4*u,4)}, v{vQB} offset:{XN + u*16*XPITCH + s*16}" for u in range(2)]
    def kv_dma(c):
        g(f"s_add_u32 m0, s{sKVL}, {KVS[c%4]}\ns_add_u32 s{sT0}, s{sKVS}, {c*8192}")
        g.vmop(f"buffer_load_dwordx4 v{vL16}, {srd(SWS)}, s{sT0} offen sc1 lds", ("kv", c))
    def poll_issue():
        sk = g.label("KP")
        g(f"s_cmp_lg_u32 s{sWV}, 7\ns_cbranch_scc1 {sk}\ns_mov_b32 s{sT1}, {WS_FKV}")
        for x in kvpoll: g(x)
        g(f"{sk}:")
        poll_mark[0] = len(g.vm)
    poll_mark = [0]
    if opt.KVPOLL_Q < 0: poll_issue()
    for s in range(3):
        for x in q_reads(s): g(x)
    for s in range(16):
        if s == opt.QMID:
            sk = g.label("KC")
            g(f"s_cmp_lg_u32 s{sWV}, 7\ns_cbranch_scc1 {sk}\ns_waitcnt vmcnt(0)")
            check_or_spin(kvpoll, list(range(20, 24)))
            g(f"{sk}:\ns_barrier")
            kv_dma(0); kv_dma(1)
        g(f"s_waitcnt lgkmcnt({4*min(2, 15-s)})")
        rd = q_reads(s+3) if s + 3 < 16 else []
        for u in range(2):
            g(mfma16(D0+4*u, QA+4*(s%4), QBf+8*(s%4)+4*u, D0+4*u if s else "0"))
            for x in rd[2*u:2*u+2]: g(x)
        if s < 4:
            for r in range(4): g(f"v_mov_b32 v{vO+4*s+r}, 0")
        if s == 4: g(f"v_and_b32 v30, 27, v{vL}\nv_cmp_eq_u32 vcc, 16, v30\nv_mov_b32 v30, s{sONE2}\ns_nop 0\nv_cndmask_b32 v30, 0, v30, vcc")
        if 5 <= s < 8:
            for r in range(4): g(f"v_mov_b32 v{vV0+4*(s-5)+r}, v30")
        if s == opt.KVPOLL_Q: poll_issue()
        if opt.SENT_LATE and s == 9:
            for r in range(4): g(f"v_mov_b32 v{24+r}, -1")
            g.vmop(f"buffer_store_dwordx4 v[24:27], v{vL16}, {srd(SWS)}, s{sOS} offen sc1", "sent")
    cb = fb(0.25 * 1.4426950408889634)
    g(f"v_mul_f32 v14, {cb:#x}, v14\nv_mul_f32 v15, {cb:#x}, v15\ns_nop 5")
    for u in range(2):
        for r in range(4): g(f"v_mul_f32 v{D0+4*u+r}, v{D0+4*u+r}, v{14+u}")
    for u in range(2):
        for r in range(2): g(f"v_cvt_pk_bf16_f32 v{vQ+2*u+r}, v{D0+4*u+2*r}, v{D0+4*u+2*r+1}")
    g("s_nop 1")
    for r in range(2): g(f"v_permlane16_swap_b32 v{vQ+r}, v{vQ+2+r}")
    g("s_nop 0")
    for r in range(2): g(f"v_permlane32_swap_b32 v{vQ+r}, v{vQ+2+r}")
    g.ts(6)
    def f1_reads(kappa, fb_, fa):
        c, ks = kappa // 2, kappa % 2
        o = S1[c % 4] - W1BASE + ks*7168
        return [[f"ds_read_b64_tr_b16 {vr(fa+2*q,2)}, v{vA1} offset:{o + q*1792}" for q in range(2)],
                [f"ds_read_b64_tr_b16 {vr(fa+4+2*q,2)}, v{vA1b} offset:{o + q*1792}" for q in range(2)] + [f"ds_read_b128 {vr(fb_,4)}, v{vB} offset:{XN + kappa*32}"]]
    PF = lambda kappa: 164 + 12*(kappa % 4)
    assert opt.QMID >= 8 and (NPRE == 0 or opt.F1_START == 0)
    if NPRE:
        sk = g.label("W0")
        g(f"s_cmp_lg_u32 s{sWV}, 1\ns_cbranch_scc1 {sk}\ns_waitcnt vmcnt({14 + opt.SENT_LATE})\n{sk}:")
    else: g.vmwait(("kv", 1))
    g("s_barrier")
    g.ts(7)
    nkv = 0
    if opt.QMID < 16: kv_dma(2); nkv = 3
    for c in (2, 3): w1_dma(c, 0); w1_dma(c, 1)
    if NPRE:
        for kappa in range(2):
            for grp in f1_reads(kappa, PF(kappa), PF(kappa)+4):
                for x in grp: g(x)
    def kread(t, dst): return f"ds_read_b128 {vr(dst,4)}, v{vKA2} offset:{KVS[(t//4)%4] + (t%4)*2048}"
    def vread(t, u, dst): return f"ds_read_b128 {vr(dst,4)}, v{vVA} offset:{KVS[(t//4)%4] + (t%4)*2048 + u*1024}"
    def v01(t):
        g(f"s_mov_b64 exec, s[{sVM}:{sVM+1}]"); g(vread(t, 0, vV0)); g(vread(t, 1, vV1[t & 1])); g("s_mov_b64 exec, -1")
    vMX = 28
    def maxtree(first, n=32):
        regs = list(range(vS[0], vS[0]+n))
        if first: g(f"v_max3_f32 v{vMX}, v{regs[0]}, v{regs[1]}, v{regs[2]}\nv_max_f32 v{vMX}, v{vMX}, v{regs[3]}"); regs = regs[4:]
        for k in range(0, len(regs), 2): g(f"v_max3_f32 v{vMX}, v{vMX}, v{regs[k]}, v{regs[k+1]}")
    def finish_m(bias):
        g(f"""
        v_mov_b32 v31, v{vMX}
        s_nop 1
        v_permlane32_swap_b32 v31, v{vMX}
        s_nop 1
        v_max_f32 v{vMX}, v{vMX}, v31
        v_add_f32 v{vMX}, {fb(bias):#x}, v{vMX}
        v_xor_b32 v{vC}, 0x80000000, v{vMX}
        """)
        for r in range(1, 16): g(f"v_mov_b32 v{vC+r}, v{vC}")
    PIN = opt.PROLOG_IN and NPRE >= 2
    for j in range(NPRE):
        if j + 1 < NPRE: g.vmwait(("w1", j+1), extra="lgkmcnt(0)")
        elif PIN: g.vmwait(("kv", 1), ("w1", NPRE + 1), extra="lgkmcnt(0)")
        else: g("s_waitcnt lgkmcnt(0)")
        if opt.QMID >= 16 and j == opt.KVCHECK_AT:
            sk = g.label("KC")
            g(f"s_cmp_lg_u32 s{sWV}, 7\ns_cbranch_scc1 {sk}\ns_waitcnt vmcnt({len(g.vm) - poll_mark[0]})")
            check_or_spin(kvpoll, list(range(20, 24)))
            g(f"{sk}:")
        g("s_barrier")
        if j in opt.TSP: g.ts(4 + opt.TSP.index(j))
        if opt.QMID >= 16 and j == opt.KVPOLL_PRE: poll_issue()
        rd = []
        if j + 1 < NPRE:
            for kappa in (2*j+2, 2*j+3):
                for grp in f1_reads(kappa, PF(kappa), PF(kappa)+4): rd += grp
        jobs = []
        if opt.QMID >= 16 and j >= opt.KVCHECK_AT:
            for _ in range(2 if (PIN and nkv == 0) else (3 - nkv + (NPRE - j) - 1) // (NPRE - j)):
                if nkv < 3: jobs.append(lambda c=nkv: kv_dma(c)); nkv += 1
        jobs += [lambda: w1_dma(j+4, 0), lambda: w1_dma(j+4, 1)]
        n = 0
        last = PIN and j == NPRE - 1
        if last:
            g(kread(0, vK)); g(kread(1, vK1)); v01(0)
        for kappa in (2*j, 2*j+1):
            for T in range(2):
                g(mfma(FACC+16*T, PF(kappa)+4+4*T, PF(kappa), FACC+16*T if kappa else "0"))
                if last and n == 0:
                    g("s_waitcnt lgkmcnt(2)"); g(mfma(vS[0], vK, vQ, "0")); g(mfma(vS[1], vK1, vQ, "0"))
                if last and n == 2:
                    g("s_nop 7\ns_nop 1"); maxtree(True)
                if last and n == 3:
                    finish_m(opt.BIAS)
                if n < 3:
                    for x in rd[n*len(rd)//3:(n+1)*len(rd)//3]: g(x)
                for jb in jobs[n*len(jobs)//4:(n+1)*len(jobs)//4]: jb()
                n += 1
    if opt.F1_START == 0 and not PIN:
        g.vmwait(("w1", NPRE + 1), ("kv", 1))
        g("s_barrier")
    g.ts(8)
    if opt.HROT:
        for u in range(4):
            g(f"""
            s_add_u32 s{sT0}, s{sHG}, {u}
            s_and_b32 s{sT0}, s{sT0}, 3
            s_sub_u32 s{sT0}, s{sT0}, {u}
            s_mul_i32 s{sT1}, s{sT0}, {7*16384}
            s_add_u32 s{sROT+u}, s{sT1}, s{sW2S}
            s_mul_i32 s{sT1}, s{sT0}, {7*1024}
            s_add_u32 s{sROT+4+u}, s{sT1}, s{sHB}
            """)
    g(f"s_cmp_lt_u32 s{sKQ}, 3\ns_cselect_b64 vcc, -1, 0")
    if not PIN:
        g(kread(0, vK)); g(kread(1, vK1))
        v01(0)
        g("s_waitcnt lgkmcnt(2)")
        g(mfma(vS[0], vK, vQ, "0")); g(mfma(vS[1], vK1, vQ, "0"))
        g("s_nop 7\ns_nop 2")
        maxtree(True)
        finish_m(opt.BIAS)
    g("s_nop 1")
    g(mfma(vS[0], vK, vQ, vC))
    g(kread(1, vK))
    g("s_nop 7\ns_nop 2")
    def w2_dma(step, slot):
        g(f"s_add_u32 m0, s{sW2B}, {T2[slot]}")
        if step < 28:
            if opt.HROT: g(f"s_add_u32 s{sT0}, s{sROT + step//7}, {step*16384}")
            else: g(f"s_add_u32 s{sT0}, s{sW2S}, {step*16384}")
            S = SW2
        else:
            g(f"s_lshl_b32 s{sT0}, s{sKQ}, 17\ns_add_u32 s{sT0}, s{sT0}, {(step-28)*16384}"); S = SWO
        g.vmop(f"buffer_load_dwordx4 v{vW2}, {srd(S)}, s{sT0} offen lds", ("w2", step))
    slot_of = {}
    def lds_base(off):
        return (0, off) if off < XN_END else ((1, off - XN_END) if off < W1BASE else (2, off - W1BASE))
    def a_reads(step, fa):
        b, o = lds_base(T2[slot_of[step]])
        return [[f"ds_read_b64_tr_b16 {vr(fa+4*n+2*q,2)}, v{vG0+b} offset:{o + n*1024 + q*512}" for q in range(2)] for n in range(2)]
    HR = lambda i: HB + 4*(i % opt.NH)
    def h_load(i):
        if i == 28: g(f"s_lshl_b32 s{sHB}, s{sKQ}, 13\ns_add_u32 s{sHB}, s{sHB}, s{sOB}")
        elif opt.HROT:
            if i % 7 in (0, 4): g(f"s_add_u32 s{sHB}, s{sROT + 4 + i//7}, {i*1024}")
            g.vmop(f"buffer_load_dwordx4 {vr(HR(i),4)}, v{vL16}, {srd(SWS)}, s{sHB} offen offset:{(i%7%4)*1024} sc1", ("h", i))
            return
        elif i and i % 4 == 0: g(f"s_add_u32 s{sHB}, s{sHB}, 4096")
        g.vmop(f"buffer_load_dwordx4 {vr(HR(i),4)}, v{vL16}, {srd(SWS)}, s{sHB} offen offset:{(i%4)*1024} sc1", ("h", i))
    hpoll = [f"buffer_load_dword v29, v30, {srd(SWS)}, s{sT1} offen sc1"]
    def pair_flag_addr(base):
        g(f"""
        s_lshl2_add_u32 s{sT1}, s{sTB}, s{sKQ}
        s_lshl_b32 s{sT1}, s{sT1}, 5
        s_add_u32 s{sT1}, s{sT1}, {base}
        v_and_b32 v30, 16, v{vL16}
        """)
    def touch3():
        a, b = g.label("T3"), g.label("T3")
        g(f"""
        s_lshr_b32 s{sT0}, s{sHG}, 2
        s_lshl_b32 s{sT0}, s{sT0}, 9
        s_cmp_eq_u32 s{sWV}, 7
        s_cbranch_scc1 {a}
        s_lshl_b32 s{sT1}, s{sWV}, 5
        s_add_u32 s{sT1}, s{sT1}, s{sJ}
        s_lshl_b32 s{sT1}, s{sT1}, 13
        s_add_u32 s{sT0}, s{sT0}, s{sT1}
        s_mov_b32 exec_hi, 0
        buffer_load_dword v{vJ}, v{vT3}, {srd(SW2)}, s{sT0} offen
        s_mov_b64 exec, -1
        s_branch {b}
        {a}:
        s_lshl_b32 s{sT1}, s{sJ}, 14
        s_add_u32 s{sT0}, s{sT0}, s{sT1}
        buffer_load_dword v{vJ}, v{vT3}, {srd(SWO)}, s{sT0} offen
        {b}:
        """)
        g.vm.append("touch")
    F1 = opt.F1_START; assert F1 % 4 == 0
    R1 = F1 + 32 - 2*NPRE
    F2 = opt.F2_START; NF2 = opt.NF2
    assert F2 + NF2 <= 64
    freeslots = []; nxt_w2 = 0; nxt_h = 0
    w2_open = False
    p2, pm, p1 = opt.P
    for t in range(64):
        c = t // 4
        S = vS[t & 1]; Sn = vS[(t+1) & 1]
        ex = lambda k: f"v_exp_f32 v{S+k}, v{S+k}"
        top = (t % 4 == 0 and t > 0)
        xm = [None, None]; xr = [[], []]
        if F1 + 1 <= t <= R1:
            xm = [mfma(FACC+16*T, FA+4*T, FB, FACC+16*T if (NPRE or t > F1 + 1) else "0") for T in range(2)]
        if F1 <= t < R1: xr = f1_reads(2*NPRE + t - F1, FB, FA)
        st = t - F2
        if 0 <= st < NF2:
            xm = [mfma(FACC+16*n, FA+4*n, HR(st), FACC+16*n if st else "0") for n in range(2)]
        rd_step = st + 1 if -1 <= st < NF2 - 1 else None
        jobs = []
        if t % 4 == 0 and c + 3 < 16: jobs.append(lambda: kv_dma(c + 3))
        cf = c - F1//4
        pc = NPRE + 2*(cf + 1)
        if cf >= 1 and pc < 16 and t % 4 < 2:
            jobs += [lambda: w1_dma(pc + t % 4, 0), lambda: w1_dma(pc + t % 4, 1)]
        if opt.TOUCH3 and t == opt.T3_T: jobs.append(touch3)
        if t == opt.HPOLL_T: jobs.append(lambda: (pair_flag_addr(WS_FH), g.vmop(hpoll[0], "hpoll")))
        hjobs = []
        nh = 0
        if t > opt.HCHECK_T:
            while nxt_h < 28 and nh < (2 if nxt_h < st + opt.HLEAD else 1) and nxt_h - opt.NH < st - 1:
                hjobs.append(lambda i=nxt_h: h_load(i)); nxt_h += 1; nh += 1
        def slot(name):
            sd = sorted(opt.SLOT_D[min(i, len(opt.SLOT_D)-1)] for i in range(len(jobs)))
            for i, jb in enumerate(jobs):
                if sd[i] == name: jb()
            sh = sorted(opt.SLOT_H[min(i, len(opt.SLOT_H)-1)] for i in range(len(hjobs)))
            for i, jb in enumerate(hjobs):
                if sh[i] == name: jb()
        for k in range(0, p2): g(ex(k))
        if t > 0: g(smf(vO, vV1[(t-1) & 1], vS[(t-1) & 1] + 8, vIDX))
        if top:
            need = []
            if c + 1 < 16: need.append(("kv", c+1))
            if 0 <= cf and NPRE + 2*cf + 1 < 16: need.append(("w1", NPRE + 2*cf + 1))
            for s_ in range(4*c - F2 + 1, 4*c - F2 + 5):
                if 0 <= s_ < NF2: need.append(("w2", s_))
            if t == opt.HFLAG_T: need.append("hst")
            if c == 15: need += [("w2", s_) for s_ in range(NF2, min(28, NF2 + opt.NTAILPRE)) if ("w2", s_) in g.vm]
            if need: g.vmwait(*need, extra="lgkmcnt(0)")
            else: g("s_waitcnt lgkmcnt(0)")
            g("s_barrier")
            g.vis = g.done
            if c < 14: g.ts(c, True)
            if t == opt.HFLAG_T:
                sk = g.label("HF")
                g(f"s_cmp_lg_u32 s{sWV}, 0\ns_cbranch_scc1 {sk}")
                flag_store(WS_FH)
                g(f"{sk}:")
            if not w2_open and t >= R1:
                w2_open = True; freeslots += list(range(NRES))
            for s_ in range(4*(c-1) - F2 + 1, 4*(c-1) - F2 + 5):
                if 0 <= s_ < NF2: freeslots.append(slot_of[s_])
            g(f"s_setprio {3 - t % 4}")
        else:
            g(f"s_setprio {3 - t % 4}\ns_waitcnt lgkmcnt(0)")
        if freeslots and nxt_w2 < opt.W2_LIM and len(jobs) < 2 and t >= opt.W2_T0:
            slot_of[nxt_w2] = freeslots.pop(0)
            jobs.append(lambda s_=nxt_w2: w2_dma(s_, slot_of[s_])); nxt_w2 += 1
        if rd_step is not None: xr = a_reads(rd_step, FA)
        slot('A')
        for k in range(p2, pm): g(ex(k))
        if t + 1 < 64: g(mfma(Sn, vK, vQ, vC))
        if t + 2 < 64: g(kread(t+2, vK))
        slot('B')
        for k in range(pm, p1): g(ex(k))
        g(smf(vO, vV0, S, vIDX))
        if t + 1 < 64: v01(t+1)
        slot('C')
        if t == opt.HCHECK_T:
            g.vmwait("hpoll")
            check_or_spin(hpoll, [29])
        for k in range(p1, opt.XP[0]): g(ex(k))
        if 0 <= st < NF2: g.vmwait(("h", st))
        if xm[0]: g(xm[0])
        for x in xr[0]: g(x)
        slot('X')
        for k in range(opt.XP[0], opt.XP[1]): g(ex(k))
        if opt.SKIPDUP and F1 <= t <= R1:
            sk = g.label("SD")
            g(f"s_cbranch_vccz {sk}")
            if xm[1]: g(xm[1])
            for x in xr[1][:2]: g(x)
            g(f"{sk}:")
            for x in xr[1][2:]: g(x)
        else:
            if xm[1]: g(xm[1])
            for x in xr[1]: g(x)
        slot('Y')
        for k in range(opt.XP[1], 16): g(ex(k))
        for T in range(2):
            a = FACC + 16*T
            if t == R1 + opt.HEP[T]:
                if not opt.RLATE:
                    for k in range(8): g(f"v_pk_mul_f32 {vr(a+2*k,2)}, {vr(a+2*k,2)}, {vr(vRT,2)}")
                for k in range(8): g(f"v_cvt_pk_bf16_f32 v{a+k}, v{a+2*k}, v{a+2*k+1}")
                for k in range(8): g(f"v_pk_max_i16 v{a+k}, v{a+k}, 0")
            for u in range(2):
                if t == R1 + opt.HST[2*T+u]:
                    g.vmop(f"buffer_store_dwordx4 {vr(a+4*u,4)}, v{vL16}, {srd(SWS)}, s{sHS+T} offen offset:{(2*T+u)*1024} sc1", "hst")
    XRES = 24
    g.vmop(f"buffer_load_dwordx4 {vr(XRES,4)}, v{vXO}, {srd(SX)}, s{sXO} offen", "xres")
    g("s_nop 0")
    g(smf(vO, vV1[1], vS[1] + 8, vIDX))
    g.ts(9)
    FBK, ONORM = g.label("FBK"), g.label("ON")
    while nxt_h < 28: h_load(nxt_h); nxt_h += 1
    g(f"""
    s_nop 2
    v_mov_b32 v30, {fb(2.0**115):#x}
    v_mov_b32 v31, {fb(2.0**126):#x}
    s_nop 6
    v_add_f32 v28, |v{vO}|, |v{vO+1}|
    """)
    for k in range(2, 8): g(f"v_add_f32 v28, v28, |v{vO+k}|")
    g(f"""
    v_cmp_lt_f32 vcc, v{vO+8}, v30
    v_cmp_lt_f32 s[{sT0}:{sT1}], v28, v31
    v_mov_b32 v30, {fb(2.0**-106):#x}
    v_cmp_gt_f32 s[{sT2}:{sT3}], v28, v30
    s_nop 3
    s_and_b64 vcc, vcc, s[{sT0}:{sT1}]
    s_and_b64 vcc, vcc, s[{sT2}:{sT3}]
    s_cmp_eq_u64 vcc, {0 if opt.X_FB else -1}
    s_cbranch_scc0 {FBK}
    {ONORM}:
    v_rcp_f32 v29, v{vO+8}
    s_nop 0
    """)
    for k in range(8): g(f"v_mul_f32 v{vO+k}, v{vO+k}, v29")
    for k in range(4): g(f"v_cvt_pk_bf16_f32 v{vO+k}, v{vO+2*k}, v{vO+2*k+1}")
    g.vmop(f"buffer_store_dwordx4 {vr(vO,4)}, v{vL16}, {srd(SWS)}, s{sOS} offen sc1", "ost")
    AF = [80, 88, 96]
    def tail_reads(step): return [x for grp in a_reads(step, AF[step % 3]) for x in grp]
    visible = lambda s_: ("w2", s_) in g.vm and g.vmneed([("w2", s_)]) <= g.vis
    hs = list(range(NF2, 28))
    oregs = [36, 40, 44, 52, 56, 60, 64, 68]
    def o_loads():
        g(f"s_lshl_b32 s{sT2}, s{sKQ}, 13\ns_add_u32 s{sT2}, s{sT2}, s{sOB}\ns_add_u32 s{sT3}, s{sT2}, 4096")
        return [f"buffer_load_dwordx4 {vr(oregs[i],4)}, v{vL16}, {srd(SWS)}, s{sT2 + i//4} offen offset:{(i%4)*1024} sc1" for i in range(8)]
    seq = hs + list(range(28, 36))
    def rd(i):
        assert visible(seq[i]) or (("w2", seq[i]) in g.vm and g.vmneed([("w2", seq[i])]) <= g.vis), ("not visible", seq[i])
        for x in tail_reads(seq[i]): g(x)
    done_steps = set(range(NF2))
    bars = [b for b in opt.TAILBAR if b < len(seq)]
    pend_dma = []
    rd(0); rd(1)
    for i, s_ in enumerate(seq):
        if i in bars:
            nb = min([b for b in bars if b > i] + [len(seq)])
            need = [("w2", seq[k]) for k in range(i + 2, min(nb + 2, len(seq)))]
            need = [x for x in need if x in g.vm]
            if need: g.vmwait(*need)
            g("s_barrier")
            g.vis = g.done
            used = {slot_of[x] for x in slot_of if x not in done_steps}
            fs = [x for x in range(len(T2)) if x not in used]
            while nxt_w2 < 36 and fs:
                slot_of[nxt_w2] = fs.pop(0); pend_dma.append(nxt_w2); nxt_w2 += 1
        if i == min(opt.OLOAD_AT, len(hs)):
            g.ts(10)
            ol = o_loads()
            for k, x in enumerate(ol): g.vmop(x, ("o", k))
        if i == len(hs):
            g.ts(11)
            if opt.OSPLIT:
                for u in range(5):
                    for x in a_reads(28 + u, 72 + 4*u)[0]: g(x)
            if opt.RLATE:
                g("s_nop 1")
                for k in range(16): g(f"v_pk_mul_f32 {vr(FACC+2*k,2)}, {vr(FACC+2*k,2)}, {vr(vRT,2)}")
            g.vmwait(("o", 7))
            done, lab = g.label("OD"), g.label("OL")
            g(f"s_mov_b32 s{sCNT}, 0\n{lab}:")
            allr = [r + k for r in oregs for k in range(4)]
            g(f"v_max3_u32 v28, v{allr[0]}, v{allr[1]}, v{allr[2]}\nv_max3_u32 v29, v{allr[3]}, v{allr[4]}, v{allr[5]}")
            for k in range(6, 32, 2): g(f"v_max3_u32 v{28 + (k//2) % 2}, v{28 + (k//2) % 2}, v{allr[k]}, v{allr[k+1]}")
            g(f"""
            v_max_u32 v28, v28, v29
            v_cmp_eq_u32 vcc, -1, v28
            s_nop 4
            s_cbranch_vccz {done}
            s_add_u32 s{sCNT}, s{sCNT}, 1
            s_cmp_gt_u32 s{sCNT}, {opt.SPIN}
            s_cbranch_scc1 {done}
            s_sleep 4
            """)
            for x in ol: g(x)
            g(f"s_waitcnt vmcnt(0)\ns_branch {lab}\n{done}:")
            g.ts(12)
        if opt.OSPLIT and s_ == 28: break
        if i + 2 < len(seq) and not (opt.OSPLIT and seq[i+2] >= 28): rd(i + 2)
        if s_ < 28: g.vmwait(("h", s_))
        g(f"s_waitcnt lgkmcnt({4*min(2, (len(hs) if opt.OSPLIT else len(seq))-1-i)})")
        b = HR(s_) if s_ < 28 else oregs[s_ - 28]
        for n in range(2):
            g(mfma(FACC+16*n, AF[s_ % 3]+4*n, b, FACC+16*n if s_ else "0"))
            for _ in range(2):
                if pend_dma:
                    x = pend_dma.pop(0); w2_dma(x, slot_of[x])
        done_steps.add(s_)
    if not opt.OSPLIT:
        g.ts(13)
        busy = {slot_of[x] for x in seq}
        F = [T2[x] for x in range(len(T2)) if x not in busy][:6]
        if len(F) < 6:
            g('s_barrier'); F = T2[:6]
        g(f"v_add_u32 v28, {XN_END}, v{vRB}\nv_add_u32 v29, {W1BASE}, v{vRB}")
        g.vmwait("xres")
        for k in range(4): g(f"v_lshlrev_b32 v{16+2*k}, 16, v{XRES+k}\nv_and_b32 v{17+2*k}, 0xffff0000, v{XRES+k}")
        rbase = [vRB, 28, 29]
        def blk(gq, src):
            p = gq*3 + (src - gq - 1) % 4
            b, o = lds_base(F[p // 2] + (p % 2)*4096)
            return rbase[b], o
        FIN = g.label("FIN")
        RD, OW = 64, 104
        for kq in range(4):
            nxt = g.label("FK")
            if kq < 3: g(f"s_cmp_lg_u32 s{sKQ}, {kq}\ns_cbranch_scc1 {nxt}")
            else: g("s_nop 1")
            for d in range(1, 4):
                gq = (kq + d) % 4
                v, o = blk(gq, kq)
                for u in range(2): g(f"ds_write_b128 v{v}, {vr(FACC+8*gq+4*u,4)} offset:{o + u*1024}")
            for e in range(8): g(f"v_mov_b32 v{OW+e}, v{FACC+8*kq+e}")
            g("s_waitcnt lgkmcnt(0)\ns_barrier")
            for d in range(1, 4):
                v, o = blk(kq, (kq + d) % 4)
                for u in range(2): g(f"ds_read_b128 {vr(RD+8*(d-1)+4*u,4)}, v{v} offset:{o + u*1024}")
            if kq < 3: g(f"s_branch {FIN}\n{nxt}:")
    else:
        busy = {slot_of[x] for x in range(28, 36)}
        lastbar = max(b for b in bars if b <= len(hs))
        busy |= {slot_of[x] for x in seq[lastbar:]}
        F = [T2[x] for x in range(len(T2)) if x not in busy][:6]
        assert len(F) == 6 and all(visible(x) for x in range(28, 36))
        rbase = [vRB, 28, 29]
        def blk(gq, src):
            p = gq*3 + (src - gq - 1) % 4
            b, o = lds_base(F[p // 2] + (p % 2)*4096)
            return rbase[b], o
        FIN = g.label("FIN")
        RD, OW = 64, 104
        OA = [72, 76, 80, 84, 88, 92]
        useq = [(n, k) for n in range(2) for k in range(8)]
        def ord_(u):
            n, k = useq[u]
            return a_reads(28 + k, OA[u % 6] - 4*n)[n]
        LA = 5
        g(f"v_add_u32 v28, {XN_END}, v{vRB}\nv_add_u32 v29, {W1BASE}, v{vRB}")
        g.vmwait("xres")
        for k in range(4): g(f"v_lshlrev_b32 v{16+2*k}, 16, v{XRES+k}\nv_and_b32 v{17+2*k}, 0xffff0000, v{XRES+k}")
        def o_mfma(u, extra=0):
            n, k = useq[u]
            g(f"s_waitcnt lgkmcnt({2*min(LA-1, 15-u) + extra})")
            g(mfma(FACC+16*n, OA[u % 6], oregs[k], FACC+16*n))
            if u + LA < 16:
                for x in ord_(u + LA): g(x)
        for u in range(11): o_mfma(u)
        for kq in range(4):
            nxt = g.label("FK")
            if kq < 3: g(f"s_cmp_lg_u32 s{sKQ}, {kq}\ns_cbranch_scc1 {nxt}")
            wr = []
            for gq in (0, 1):
                if gq != kq:
                    v, o = blk(gq, kq)
                    wr += [f"ds_write_b128 v{v}, {vr(FACC+8*gq+4*u,4)} offset:{o + u*1024}" for u in range(2)]
            nw = 0
            for u in range(11, 16):
                o_mfma(u, nw)
                if wr: g(wr.pop(0)); nw += 1
            if kq == 0: g.ts(13)
            g("s_nop 7\ns_nop 3")
            for gq in (2, 3):
                if gq != kq:
                    v, o = blk(gq, kq)
                    for u in range(2): g(f"ds_write_b128 v{v}, {vr(FACC+8*gq+4*u,4)} offset:{o + u*1024}")
            for e in range(8): g(f"v_mov_b32 v{OW+e}, v{FACC+8*kq+e}")
            g("s_waitcnt lgkmcnt(0)\ns_barrier")
            for d in range(1, 4):
                v, o = blk(kq, (kq + d) % 4)
                for u in range(2): g(f"ds_read_b128 {vr(RD+8*(d-1)+4*u,4)}, v{v} offset:{o + u*1024}")
            if kq < 3: g(f"s_branch {FIN}\n{nxt}:")
    g(f"{FIN}:\ns_waitcnt lgkmcnt(4)")
    for e in range(0, 8, 2): g(f"v_pk_add_f32 {vr(OW+e,2)}, {vr(OW+e,2)}, {vr(RD+e,2)}")
    g("s_waitcnt lgkmcnt(2)")
    for e in range(0, 8, 2): g(f"v_pk_add_f32 {vr(OW+e,2)}, {vr(OW+e,2)}, {vr(RD+8+e,2)}")
    g("s_waitcnt lgkmcnt(0)")
    for e in range(0, 8, 2): g(f"v_pk_add_f32 {vr(OW+e,2)}, {vr(OW+e,2)}, {vr(RD+16+e,2)}")
    g("s_nop 1")
    for e in range(4): g(f"v_permlane32_swap_b32 v{OW+e}, v{OW+4+e}")
    g("s_nop 1")
    for e in range(0, 8, 2): g(f"v_pk_add_f32 {vr(OW+e,2)}, {vr(OW+e,2)}, {vr(16+e,2)}")
    if opt.X_EPS:
        for e in range(8): g(f"v_mul_f32 v{OW+e}, {fb(1.0 + opt.X_EPS):#x}, v{OW+e}")
    for k in range(4): g(f"v_cvt_pk_bf16_f32 v{OW+k}, v{OW+2*k}, v{OW+2*k+1}")
    g(f"buffer_store_dwordx4 {vr(OW,4)}, v{vXO}, {srd(SOUT)}, s{sXO} offen {opt.OUTF}")
    sk = g.label("EP")
    g(f"""
    s_or_b32 s{sT0}, s{sTB}, s{sHG}
    s_or_b32 s{sT0}, s{sT0}, s{sWV}
    s_cmp_lg_u32 s{sT0}, 0
    s_cbranch_scc1 {sk}
    v_mov_b32 v29, s{sTAG}
    s_mov_b64 exec, 1
    buffer_store_dword v29, off, {srd(SWS)}, 0 offset:{WS_EPOCH}
    s_mov_b64 exec, -1
    {sk}:
    """)
    if opt.TS:
        g(f"""
        s_lshl_b32 s{sT0}, s2, 3
        s_add_u32 s{sT0}, s{sT0}, s{sWV}
        s_lshl_b32 s{sT0}, s{sT0}, 7
        s_add_u32 s{sT0}, s{sT0}, {WS_TSB}
        s_memtime s[{sT2}:{sT3}]
        s_waitcnt vmcnt(0)
        s_memtime s[{sT4}:{sT5}]
        s_waitcnt lgkmcnt(0)
        s_mov_b32 s{sTS+14}, s{sT2}
        s_mov_b32 s{sTS+15}, s{sT4}
        s_memrealtime s[{sT4}:{sT5}]
        s_waitcnt lgkmcnt(0)
        s_mov_b32 s{sTS+17}, s{sT4}
        """)
        for k in range(18): g(f"v_mov_b32 v{32+k}, s{sTS+k}")
        g("v_mov_b32 v28, 0\ns_mov_b64 exec, 1")
        for k in range(5): g(f"buffer_store_dwordx4 {vr(32+4*k,4)}, v28, {srd(SWS)}, s{sT0} offen offset:{16*k}")
    g("s_endpgm")
    L1, L2 = g.label("FL"), g.label("FL")
    g(f"""
    {FBK}:
    v_subrev_u32 v30, {KVR}, v{vKA2}
    v_subrev_u32 v29, {KVR}, v{vVA}
    s_mov_b32 s{sT2}, {WS_KV}
    v_mov_b32 v{vMX}, 0xff800000
    {L1}:
    buffer_load_dwordx4 {vr(vK,4)}, v30, {srd(SWS)}, s{sT2} offen sc1
    s_waitcnt vmcnt(0)
    """)
    g(mfma(vS[0], vK, vQ, "0"))
    g("s_nop 7\ns_nop 3")
    maxtree(False, 16)
    g(f"s_add_u32 s{sT2}, s{sT2}, 2048\ns_cmp_lt_u32 s{sT2}, {WS_KV + 131072}\ns_cbranch_scc1 {L1}")
    finish_m(0.0)
    for r in range(16): g(f"v_mov_b32 v{vO+r}, 0")
    g(f"""
    s_mov_b32 s{sT2}, {WS_KV}
    {L2}:
    buffer_load_dwordx4 {vr(vK,4)}, v30, {srd(SWS)}, s{sT2} offen sc1
    s_mov_b64 exec, s[{sVM}:{sVM+1}]
    buffer_load_dwordx4 {vr(vV0,4)}, v29, {srd(SWS)}, s{sT2} offen sc1
    buffer_load_dwordx4 {vr(vV1[0],4)}, v29, {srd(SWS)}, s{sT2} offen offset:1024 sc1
    s_mov_b64 exec, -1
    s_waitcnt vmcnt(0)
    """)
    g(mfma(vS[0], vK, vQ, vC))
    g("s_nop 7\ns_nop 3")
    for k in range(16): g(f"v_exp_f32 v{vS[0]+k}, v{vS[0]+k}")
    g("s_nop 1")
    g(smf(vO, vV0, vS[0], vIDX)); g(smf(vO, vV1[0], vS[0]+8, vIDX))
    g(f"s_add_u32 s{sT2}, s{sT2}, 2048\ns_cmp_lt_u32 s{sT2}, {WS_KV + 131072}\ns_cbranch_scc1 {L2}")
    g(f"s_nop 7\ns_nop 3\ns_branch {ONORM}")
    g("L_END:\ns_endpgm")
    body = g.text()
    hdr = open("parallel_sum__grouped_kv_mqa__dense_activation_relu__prompt.s.ref").read().split("; Override launch")[0]
    out = hdr + f"; @launch grid=(256,1,1) block=(512,1,1) lds={LDS_SIZE}\n"
    out += f""".amdgcn_target "amdgcn-amd-amdhsa--gfx950"
.text
.globl {NAME}
.p2align 8
.type {NAME},@function
{NAME}:
""" + body + f""".section .rodata,"a"
.p2align 6
.amdhsa_kernel {NAME}
  .amdhsa_next_free_vgpr 256
  .amdhsa_next_free_sgpr 102
  .amdhsa_accum_offset 256
  .amdhsa_group_segment_fixed_size 0
  .amdhsa_kernarg_size 88
  .amdhsa_user_sgpr_count 2
  .amdhsa_user_sgpr_kernarg_segment_ptr 1
  .amdhsa_system_sgpr_workgroup_id_x 1
.end_amdhsa_kernel
"""
    return out

if __name__ == "__main__":
    outp = sys.argv[1]
    for a in sys.argv[2:]:
        k, v = a.split("=", 1)
        assert hasattr(opt, k), k
        setattr(opt, k, eval(v))
    open(outp, "w").write(build())
```

```python
import sys, struct
NAME = "parallel_sum__grouped_kv_mqa__dense_activation_relu__prompt_kernel"
fb = lambda x: struct.unpack("<I", struct.pack("<f", x))[0]

class Opt:
    TS = False; TSA = False; TSR = False
    BIAS = 100.0
    SPIN = 200000
    NPRE = 6
    KVPOLL_Q = 99
    WQ_AT = (-1, -1, -1, -1, 7, 7, 8, 8)
    W1_AT = (10, 10); WQA = -2; BW_AT = None; WQA_EARLY = 0
    F1_START = 0; QMID = 99; KVCHECK_AT = 3; KVPOLL_PRE = 1
    HFLAG_T = 28; HPOLL_T = 31; HCHECK_T = 34; F2_START = 42; NF2 = 14
    NH = 20
    P = (4, 8, 12); XP = (14, 16)
    NTAILPRE = 17
    HEP = (1, 2); HST = (1, 2, 3, 4)
    SLOT_D = 'CBX'; SLOT_H = 'AB'
    TOUCH3 = 1; T3_T = 16; W2_T0 = 21; W2_LIM = 36
    OLOAD_AT = 11
    KVFREE = 0; KVFLAG_Q = 5; KVPRIO = 0; TSCNT = 0; TSW1 = 0; KA2 = 1; TSSKIP = (); STOUCH = 0; SENT_LATE = 1; RLATE = 0; X_EPS = 0.0; KVW_LATE = 0; PROLOG_IN = 1; OSPLIT = 1; TSP = (2, 4); NWQ1 = 8; QTOUCH = 1; QTW = 7
    SKIPDUP = 1; HLEAD = 20; HROT = 0; OUTF = ""
    TAILBAR = (1, 8, 12)
    X_UNTIL = 0; X_UPOS = 8; X_FB = 0
opt = Opt()

WS_EPOCH = 0; WS_FKV = 0x1000; WS_FH = 0x2000; WS_FO = 0x3000
WS_TSB = 0xC00000; WS_KV = 0x10000; WS_O = 0x40000; WS_H = 0x300000; WS_SIZE = 0x1000000

XN = 0; XPITCH = 1040; XN_END = 64*XPITCH
WQ = XN_END; KVR = XN_END
W1BASE = 99328
S1 = [132096, 146432, 99328, 113664]
STG = 146432; RARR = 162816; SYNC = 163072
KVS = [0, 16384, 8192, 24576]
LDS_SIZE = 163840
T2 = [i*8192 for i in range(8)] + [W1BASE + i*8192 for i in range(7)] + [KVR + i*8192 for i in range(4)]
NRES = 15

sRB = 3
sW2S, sXO = 14, 15
sTB, sHG, sWV, sTAG, sTH, sKQ = 26, 27, 28, 29, 30, 31
SX, SW1, SKV, SWS, SW2, SWO, SOUT = 32, 36, 40, 44, 48, 52, 56
SXO = 44
SWQ = 8
sROT = 4
sR, sK, sM1a, sM1b, sHS, sHS2 = 60, 61, 62, 63, 64, 65
sONE2, sLO, sHI, sJ = 66, 67, 68, 69
sVM = 70
sT0, sT1, sT2, sT3, sT4, sT5 = 72, 73, 74, 75, 76, 77
sOS = 22
sHB, sOB, sCNT, sW2B, sKVS, sKVL = 78, 79, 80, 81, 82, 83
sTS = 84
def srd(b): return f"s[{b}:{b+3}]"
def vr(b, n): return f"v[{b}:{b+n-1}]" if n > 1 else f"v{b}"

class Gen:
    def __init__(self): self.l = []; self.nl = 0; self.vm = []; self.done = -1
    def __call__(self, s):
        for x in s.strip("\n").split("\n"):
            x = x.strip()
            if x: self.l.append(("" if x.endswith(":") else "    ") + x)
    def label(self, p="L"):
        self.nl += 1; return f"{p}_{self.nl}"
    def vmop(self, s, tag=None):
        self(s); self.vm.append(tag)
    def vmneed(self, tags):
        idx = -1
        for tag in tags:
            c = [i for i, t in enumerate(self.vm) if t == tag]
            assert c, tag
            idx = max(idx, c[-1])
        return idx
    def vmwait(self, *tags, extra=""):
        idx = self.vmneed(tags)
        if idx <= self.done:
            if extra: self(f"s_waitcnt {extra}")
            return
        n = len(self.vm) - 1 - idx
        assert n <= 63, n
        self.done = idx
        self(f"s_waitcnt vmcnt({n}) {extra}")
    def ts(self, i, att=False):
        if opt.X_UNTIL and i == opt.X_UPOS and not att:
            l = self.label("U")
            self(f"{l}:\ns_memrealtime s[98:99]\ns_waitcnt lgkmcnt(0)\ns_sub_u32 s98, s98, s100\ns_cmp_lt_u32 s98, {opt.X_UNTIL}\ns_cbranch_scc1 {l}")
        if opt.TS and (att == opt.TSA or i in (0, 15)) and i not in opt.TSSKIP:
            if opt.TSR: self(f"s_memrealtime s[{sTS+14}:{sTS+15}]\ns_waitcnt lgkmcnt(0)\ns_sub_u32 s{sTS+14}, s{sTS+14}, s{sTS+16}\ns_mul_i32 s{sTS+14}, s{sTS+14}, 10\ns_add_u32 s{sTS+i}, s{sTS+14}, s{sTS}")
            else: self(f"s_memtime s[{sTS+14}:{sTS+15}]\ns_waitcnt lgkmcnt(0)\ns_mov_b32 s{sTS+i}, s{sTS+14}")
    def text(self): return "\n".join(self.l) + "\n"

def mfma(d, a, b, c):
    cs = vr(c, 16) if isinstance(c, int) else c
    return f"v_mfma_f32_32x32x16_bf16 {vr(d,16)}, {vr(a,4)}, {vr(b,4)}, {cs}"
def mfma16(d, a, b, c):
    cs = vr(c, 4) if isinstance(c, int) else c
    return f"v_mfma_f32_16x16x32_bf16 {vr(d,4)}, {vr(a,4)}, {vr(b,4)}, {cs}"
def smf(d, a, b, idx): return f"v_smfmac_f32_32x32x32_bf16 {vr(d,16)}, {vr(a,4)}, {vr(b,8)}, v{idx}"

def build():
    g = Gen()
    NPRE = opt.NPRE
    vL, vX, vL16, vB, vA1, vA1b, vW1a, vW1b, vXW, vKB, vKA = 1, 2, 3, 4, 5, 6, 7, 8, 9, 10, 11
    vRT = 12
    vQ, vK, vK1, FB, vV0, vV1, vO, vC, vS, FA = 16, 20, 24, 32, 36, [40, 44], 48, 64, [80, 96], 112
    vKA2, vVA, vIDX, vW2, vG0, vG1, vG2, vT3, vXO, vRB, vWQ, vROW = range(120, 132)
    FACC, HB = 132, 164
    vQAa, vQB, vWQ2, vKR, vJ = 240, 241, 242, 243, 255
    XR, WK, KB, KD = 32, 164, 64, 228
    g(f"""
    s_cmp_ge_u32 s2, 256
    s_cbranch_scc1 L_END
    s_load_dwordx16 s[4:19], s[0:1], 0
    """)
    ka2 = "s_load_dwordx2 s[20:21], s[0:1], 64\ns_load_dwordx2 s[24:25], s[0:1], 80"
    if not opt.KA2: g(ka2)
    if opt.TS: g(f"s_memtime s[{sTS}:{sTS+1}]\ns_memrealtime s[{sTS+16}:{sTS+17}]")
    if opt.X_UNTIL: g("s_memrealtime s[100:101]")
    g(f"""
    v_lshrrev_b32 v16, 6, v0
    s_lshr_b32 s{sJ}, s2, 3
    s_mov_b32 s{SW1+3}, 0x20000
    v_readfirstlane_b32 s{sWV}, v16
    s_getpc_b64 s[{SW1}:{SW1+1}]
    L_PC:
    s_mov_b32 s{SW1+2}, L_END-L_PC
    v_and_b32 v17, 1, v0
    v_lshl_add_u32 v16, v16, 1, v17
    v_lshlrev_b32 v16, 7, v16
    s_lshl_b32 s{sT1}, s{sJ}, 11
    buffer_load_dword v{vJ}, v16, {srd(SW1)}, s{sT1} offen
    v_and_b32 v{vL}, 63, v0
    s_and_b32 s{sT0}, s2, 7
    s_lshr_b32 s{sTB}, s{sT0}, 1
    s_and_b32 s{sR}, s{sJ}, 7
    s_lshl3_add_u32 s{sTB}, s{sTB}, s{sR}
    s_and_b32 s{sT0}, s{sT0}, 1
    s_lshr_b32 s{sT2}, s{sJ}, 3
    s_lshl2_add_u32 s{sHG}, s{sT0}, s{sT2}
    s_and_b32 s{sTH}, s{sWV}, 1
    s_lshr_b32 s{sKQ}, s{sWV}, 1
    s_lshl2_add_u32 s{sRB}, s{sTH}, s{sKQ}
    s_add_u32 s{sRB}, s{sRB}, s{sHG}
    s_and_b32 s{sRB}, s{sRB}, 7
    s_lshl_b32 s{sT2}, s{sRB}, 3
    v_lshrrev_b32 v22, 3, v{vL}
    v_add_u32 v{vROW}, s{sT2}, v22
    v_lshlrev_b32 v16, 10, v{vROW}
    v_and_b32 v17, 7, v0
    v_lshl_add_u32 v{vX}, v17, 4, v16
    v_lshlrev_b32 v{vL16}, 4, v{vL}
    v_mul_u32_u24 v16, {XPITCH}, v{vROW}
    v_lshl_add_u32 v{vXW}, v17, 4, v16
    v_bfe_u32 v16, v{vL}, 3, 1
    v_lshlrev_b32 v16, 2, v16
    v_xor_b32 v16, s{sHG}, v16
    v_lshl_add_u32 v{vKR}, v16, 3, v17
    v_mul_u32_u24 v16, {XPITCH}, v{vKR}
    v_lshrrev_b32 v18, 4, v{vL}
    v_lshl_add_u32 v{vKB}, v18, 4, v16
    v_bfe_u32 v19, v{vL}, 2, 2
    v_lshl_add_u32 v16, v18, 3, v19
    v_lshlrev_b32 v16, 5, v16
    v_and_b32 v20, 3, v{vL}
    v_lshl_add_u32 v16, v20, 3, v16
    v_add_u32 v{vKA}, {STG}, v16
    v_bfe_u32 v16, v{vL}, 4, 1
    v_lshrrev_b32 v21, 1, v17
    v_xor_b32 v16, v16, v21
    v_lshlrev_b32 v21, 10, v22
    v_lshl_add_u32 v21, v16, 5, v21
    v_and_b32 v16, 1, v{vL}
    v_lshl_add_u32 v21, v16, 4, v21
    s_lshl_b32 s{sT1}, s{sHG}, 7
    v_add_u32 v{vWQ}, s{sT1}, v21
    s_lshl_b32 s{sT0}, s{sTB}, 16
    s_lshl_b32 s{sT2}, s{sR}, 7
    """ + "".join(f"s_add_u32 s{SXO+n}, s{sT2}, {n*128}\ns_and_b32 s{SXO+n}, s{SXO+n}, 0x380\ns_or_b32 s{SXO+n}, s{SXO+n}, s{sT0}\n" for n in range(8)) + f"""
    s_mov_b32 s{SX+2}, 0x200000
    s_mov_b32 s{SX+3}, 0x20000
    s_movk_i32 s{SKV+2}, 16384
    s_mov_b32 s{SKV+3}, 0x20000
    s_and_b32 s{sT1}, s{sWV}, 3
    s_lshl2_add_u32 s{sT1}, s{sJ}, s{sT1}
    s_lshl_b32 s{sT1}, s{sT1}, 7
    s_lshl_b32 s{sT4}, s{sTH}, 13
    s_add_u32 s{sT4}, s{sT4}, {STG}
    s_lshl2_add_u32 s{sT5}, s{sTH}, s{sR}
    v_mov_b32 v22, {SYNC}
    v_mov_b32 v23, 0
    s_lshl1_add_u32 s{sT0}, s{sTB}, s{sTH}
    s_lshl_b32 s{sOB}, s{sT0}, 15
    s_add_u32 s{sOB}, s{sOB}, {WS_O}
    s_lshl2_add_u32 s{sT2}, s{sHG}, s{sKQ}
    s_lshl_b32 s{sT2}, s{sT2}, 10
    s_add_u32 s{sOS}, s{sT2}, s{sOB}
    s_mov_b32 s{SOUT+2}, {WS_SIZE}
    s_mov_b32 s{SOUT+3}, 0x20000
    v_mov_b32 v24, -1
    v_mov_b32 v25, -1
    v_mov_b32 v26, -1
    v_mov_b32 v27, -1
    s_bitcmp0_b32 s{sHG}, 2
    s_waitcnt lgkmcnt(0)
    s_cselect_b32 s{SKV}, s8, s10
    s_cselect_b32 s{SKV+1}, s9, s11
    s_mov_b32 s{SX}, s4
    s_mov_b32 s{SX+1}, s5
    buffer_load_dword v{vJ}, off, {srd(SKV)}, s{sT1}
    """)
    def xloads():
        for i in range(8): g(f"buffer_load_dwordx4 {vr(XR+4*i,4)}, v{vX}, {srd(SX)}, s{SXO+i} offen")
    sentinel = f"buffer_store_dwordx4 v[24:27], v{vL16}, {srd(SOUT)}, s{sOS} offen sc1"
    lb, lj = g.label("X"), g.label("X")
    g(f"s_cmp_ge_u32 s{sWV}, 2\ns_cbranch_scc1 {lb}")
    xloads()
    for i in range(4):
        g(f"s_add_u32 m0, s{sT4}, {i*2048}\ns_add_u32 s{sT1}, s{sT5}, {i}\ns_and_b32 s{sT1}, s{sT1}, 7\ns_lshl_b32 s{sT1}, s{sT1}, 11")
        for u in range(2): g(f"buffer_load_dwordx4 v{vL16}, {srd(SKV)}, s{sT1} offen offset:{u*1024} lds")
    g(f"ds_write_b32 v22, v23\nds_write_b32 v22, v23 offset:4\ns_waitcnt lgkmcnt(0)\ns_barrier\ns_branch {lj}\n{lb}:\ns_barrier")
    xloads()
    if opt.QTOUCH:
        g(f"""
        s_mov_b32 s{SW1}, s6
        s_mov_b32 s{SW1+1}, s7
        s_cmp_eq_u32 s{sWV}, {opt.QTW}
        s_cselect_b32 s{SW1+2}, 0x80000, 0
        s_lshl_b32 s{sT0}, s{sR}, 16
        s_lshl_b32 s{sT1}, s{sHG}, 7
        s_add_u32 s{sT0}, s{sT0}, s{sT1}
        v_lshlrev_b32 v16, 10, v{vL}
        buffer_load_dword v{vJ}, v16, {srd(SW1)}, s{sT0} offen
        """)
        if opt.QTOUCH > 1:
            g(f"""
            s_mov_b32 s{SW1}, s16
            s_mov_b32 s{SW1+1}, s17
            s_cmp_eq_u32 s{sWV}, {opt.QTW}
            s_cselect_b32 s{SW1+2}, {512*3584}, 0
            s_mul_i32 s{sT0}, s{sR}, {64*3584}
            s_mul_i32 s{sT1}, s{sHG}, 448
            s_and_b32 s{sT1}, s{sT1}, 0xffffff80
            s_add_u32 s{sT0}, s{sT0}, s{sT1}
            v_lshrrev_b32 v16, 2, v{vL}
            v_mul_u32_u24 v16, 3584, v16
            v_lshl_add_u32 v16, v20, 7, v16
            """)
            for k in range(opt.QTOUCH - 1):
                g(f"buffer_load_dword v{vJ}, v16, {srd(SW1)}, s{sT0} offen\ns_add_u32 s{sT0}, s{sT0}, {16*3584}")
    if opt.SENT_LATE: sentinel = ""
    g(f"{lj}:\n{sentinel}")
    sPB, sJK = 96, 23
    def stouch(k0, k1):
        for k in range(k0, k1): g(f"s_load_dword s{sJK}, s[{sPB}:{sPB+1}], {(k//2)*1024 + (k%2)*64}")
    def stouch1(k0, k1):
        for k in range(k0, k1): g(f"s_load_dword s{sJK}, s[{sPB}:{sPB+1}], {(k//8)*3584 + (k%8)*64}")
    if opt.STOUCH:
        g(f"""
        s_lshl3_add_u32 s{sT0}, s{sR}, s{sWV}
        s_lshl_b32 s{sT0}, s{sT0}, 13
        s_lshl_b32 s{sT1}, s{sHG}, 7
        s_add_u32 s{sT0}, s{sT0}, s{sT1}
        s_add_u32 s{sPB}, s6, s{sT0}
        s_addc_u32 s{sPB+1}, s7, 0
        """)
        stouch(0, 15)
    elif opt.KA2: g(ka2)
    else: g(f"s_load_dword s{sTAG}, s[24:25], {WS_EPOCH}")
    g(f"""
    s_mov_b32 s{SWQ}, s6
    s_mov_b32 s{SWQ+1}, s7
    s_mov_b32 s{SWQ+2}, 0x80000
    s_mov_b32 s{SWQ+3}, 0x20000
    s_mov_b32 s{SW1}, s16
    s_mov_b32 s{SW1+1}, s17
    s_mov_b32 s{SW1+2}, {512*3584}
    s_mov_b32 s{SWS+2}, {WS_SIZE}
    s_mov_b32 s{SWS+3}, 0x20000
    s_mov_b32 s{SW2}, s18
    s_mov_b32 s{SW2+1}, s19
    s_mov_b32 s{SW2+2}, {1792*1024}
    s_mov_b32 s{SW2+3}, 0x20000
    s_mov_b32 s{SWO}, s12
    s_mov_b32 s{SWO+1}, s13
    s_mov_b32 s{SWO+2}, 0x80000
    s_mov_b32 s{SWO+3}, 0x20000
    s_mov_b32 s{sONE2}, 0x3f803f80
    s_mov_b32 s{sLO}, 0x00003f80
    s_mov_b32 s{sHI}, 0x3f800000
    s_mov_b32 s{sVM}, 0x0000ffff
    s_mov_b32 s{sVM+1}, 0x0000ffff
    s_lshl_b32 s{sKVL}, s{sWV}, 10
    s_add_u32 s{sKVS}, s{sKVL}, {WS_KV}
    s_add_u32 s{sKVL}, s{sKVL}, {KVR}
    s_mul_i32 s{sK}, s{sR}, {64*3584}
    s_min_u32 s{sT3}, s{sWV}, 6
    s_lshl_b32 s{sM1a}, s{sT3}, 10
    s_add_u32 s{sT0}, s{sWV}, 8
    s_cmp_lt_u32 s{sWV}, 6
    s_cselect_b32 s{sT0}, s{sT0}, 7
    s_lshl_b32 s{sM1b}, s{sT0}, 10
    s_mul_i32 s{sT1}, s{sHG}, 448
    s_movk_i32 s{sT2}, 2341
    """)
    for dst, sm in ((vW1a, sT3), (vW1b, sT0)):
        g(f"""
        v_lshl_add_u32 v16, s{sm}, 6, v{vL}
        v_mul_lo_u32 v17, v16, s{sT2}
        v_lshrrev_b32 v17, 16, v17
        v_mul_u32_u24 v21, 28, v17
        v_sub_u32 v16, v16, v21
        v_mul_u32_u24 v17, 3584, v17
        v_lshl_add_u32 v16, v16, 4, v17
        v_add_u32 v{dst}, s{sT1}, v16
        """)
    g(f"""
    v_lshrrev_b32 v21, 5, v{vL}
    v_bfe_u32 v22, v{vL}, 4, 1
    v_lshl_add_u32 v16, v21, 3, v19
    v_mul_u32_u24 v16, 448, v16
    v_lshl_add_u32 v16, v22, 5, v16
    v_lshl_add_u32 v16, v20, 3, v16
    s_lshl_b32 s{sT0}, s{sKQ}, 7
    s_add_u32 s{sT0}, s{sT0}, {W1BASE}
    v_add_u32 v{vA1}, s{sT0}, v16
    s_cmp_lt_u32 s{sKQ}, 3
    s_cselect_b32 s{sT0}, 64, 0
    v_add_u32 v{vA1b}, s{sT0}, v{vA1}
    v_and_b32 v16, 31, v{vL}
    s_lshl_b32 s{sT0}, s{sTH}, 5
    v_add_u32 v17, s{sT0}, v16
    v_mul_u32_u24 v17, {XPITCH}, v17
    v_lshl_add_u32 v{vB}, v21, 4, v17
    v_lshlrev_b32 v16, 10, v16
    v_lshl_add_u32 v{vXO}, v21, 4, v16
    v_and_b32 v23, 15, v{vL}
    v_add_u32 v17, s{sT0}, v23
    v_mul_u32_u24 v17, {XPITCH}, v17
    v_lshl_add_u32 v{vQB}, v18, 8, v17
    v_xor_b32 v{vWQ2}, 64, v{vWQ}
    v_bfe_u32 v16, v{vL}, 3, 1
    v_lshl_or_b32 v16, v22, 1, v16
    v_xor_b32 v16, s{sKQ}, v16
    v_lshlrev_b32 v16, 5, v16
    v_lshl_add_u32 v16, v18, 14, v16
    v_lshl_add_u32 v16, v19, 7, v16
    v_lshl_add_u32 v16, v20, 3, v16
    v_add_u32 v{vQAa}, {WQ}, v16
    v_bfe_u32 v16, v{vL}, 3, 2
    v_lshlrev_b32 v17, 9, v16
    v_lshrrev_b32 v16, 1, v16
    v_xor_b32 v16, v16, v21
    v_lshl_add_u32 v17, v16, 7, v17
    v_and_b32 v16, 7, v{vL}
    v_lshl_add_u32 v17, v16, 4, v17
    v_add_u32 v{vKA2}, {KVR}, v17
    v_lshlrev_b32 v17, 9, v21
    v_lshl_add_u32 v17, v23, 4, v17
    v_add_u32 v{vVA}, {KVR + 256}, v17
    v_mov_b32 v{vIDX}, 0xdddddddd
    v_lshrrev_b32 v16, 2, v{vL}
    v_lshlrev_b32 v16, 10, v16
    v_lshl_add_u32 v{vT3}, v20, 7, v16
    v_lshl_add_u32 v16, v20, 4, v16
    s_lshl_b32 s{sT0}, s{sHG}, 7
    s_lshl_b32 s{sT1}, s{sTH}, 6
    s_add_u32 s{sT0}, s{sT0}, s{sT1}
    v_add_u32 v{vW2}, s{sT0}, v16
    v_lshlrev_b32 v16, 6, v19
    v_lshl_add_u32 v16, v22, 5, v16
    v_lshl_add_u32 v16, v20, 3, v16
    v_lshl_add_u32 v16, v21, 8, v16
    s_lshl_b32 s{sT0}, s{sKQ}, 11
    v_add_u32 v{vG0}, s{sT0}, v16
    v_add_u32 v{vG1}, {XN_END}, v{vG0}
    v_add_u32 v{vG2}, {W1BASE}, v{vG0}
    s_lshl_b32 s{sW2B}, s{sTH}, 10
    s_add_u32 s{sW2B}, s{sW2B}, s{sT0}
    s_lshl1_add_u32 s{sT0}, s{sTB}, s{sTH}
    s_mul_i32 s{sT2}, s{sT0}, 112
    s_mul_i32 s{sT1}, s{sKQ}, 28
    s_add_u32 s{sHB}, s{sT2}, s{sT1}
    s_lshl_b32 s{sHB}, s{sHB}, 10
    s_add_u32 s{sHB}, s{sHB}, {WS_H}
    s_mul_i32 s{sT1}, s{sHG}, 14
    s_add_u32 s{sT2}, s{sT2}, s{sT1}
    s_lshl2_add_u32 s{sT2}, s{sKQ}, s{sT2}
    s_lshl_b32 s{sHS}, s{sT2}, 10
    s_add_u32 s{sHS}, s{sHS}, {WS_H}
    s_cmp_lt_u32 s{sKQ}, 3
    s_cselect_b32 s{sHS2}, s{sHS}, 0x7f000000
    s_lshl_b32 s{sXO}, s{sT0}, 15
    s_lshl_b32 s{sT1}, s{sHG}, 7
    s_add_u32 s{sXO}, s{sXO}, s{sT1}
    s_lshl_b32 s{sT1}, s{sKQ}, 5
    s_add_u32 s{sXO}, s{sXO}, s{sT1}
    s_mul_i32 s{sW2S}, s{sKQ}, {28*16384}
    s_lshl_b32 s{sT0}, s{sTH}, 11
    v_add_u32 v{vRB}, s{sT0}, v{vL16}
    """)
    if opt.KA2: g(f"s_waitcnt lgkmcnt(0)\ns_load_dword s{sTAG}, s[24:25], {WS_EPOCH}")
    g(f"s_mov_b32 s{SWS}, s24\ns_mov_b32 s{SWS+1}, s25")
    def wq_dma(i):
        g(f"s_add_u32 m0, s{sKVL}, {i*8192}\ns_add_u32 s{sT0}, s{sR}, {i}\ns_and_b32 s{sT0}, s{sT0}, 7\ns_lshl_b32 s{sT0}, s{sT0}, 16")
        g.vmop(f"buffer_load_dwordx4 v{vWQ2 if (i >> 1) & 1 else vWQ}, {srd(SWQ)}, s{sT0} offen lds", ("wq", i))
    def w1_dma(c, half):
        if half == 0:
            g(f"s_add_u32 m0, s{sM1a}, {S1[c % 4]}\ns_nop 0")
            g.vmop(f"buffer_load_dwordx4 v{vW1a}, {srd(SW1)}, s{sK} offen lds", ("w1", c))
        else:
            g(f"s_add_u32 m0, s{sM1b}, {S1[c % 4]}\ns_add_u32 s{sT0}, s{sK}, {32*3584}")
            g.vmop(f"buffer_load_dwordx4 v{vW1b}, {srd(SW1)}, s{sK} offen lds", ("w1", c))
            g(f"s_sub_u32 s{sK}, s{sT0}, s{SW1+2}\ns_cselect_b32 s{sK}, s{sT0}, s{sK}")
    a0, a1, vM, vD, E, Q2 = 12, 13, 14, 15, 16, 24
    def dpp_reduce(v):
        for m in ("quad_perm:[1,0,3,2]", "quad_perm:[2,3,0,1]", "row_half_mirror"):
            g(f"s_nop 1\nv_add_f32_dpp v{v}, v{v}, v{v} {m} row_mask:0xf bank_mask:0xf")
    def issue_at(pos):
        for i in range(8):
            if opt.WQ_AT[i] == pos: wq_dma(i)
        for c in range(2):
            if opt.W1_AT[c] == pos:
                l7, lj_ = g.label("W7"), g.label("W7")
                g(f"s_cmp_eq_u32 s{sWV}, 7\ns_cbranch_scc1 {l7}")
                w1_dma(c, 0); w1_dma(c, 1)
                g(f"s_branch {lj_}\n{l7}:\ns_add_u32 s{sT0}, s{sK}, {32*3584}")
                for _ in range(2): g(f"buffer_load_dword v{vJ}, off, {srd(SW1)}, s{sHS2}")
                g(f"s_sub_u32 s{sK}, s{sT0}, s{SW1+2}\ns_cselect_b32 s{sK}, s{sT0}, s{sK}\n{lj_}:")
    def layernorm(cls):
        ny = (9 if cls == 0 else 1 + opt.QTOUCH) - opt.SENT_LATE
        g(f"v_mov_b32 v{a0}, 0\nv_mov_b32 v{a1}, 0\ns_waitcnt vmcnt({ny+4})")
        g.ts(1)
        if opt.STOUCH:
            stouch(15, 16)
            g(f"s_load_dword s{sTAG}, s[24:25], {WS_EPOCH}")
            if opt.STOUCH > 1:
                g(f"""
                s_lshl4_add_u32 s{sT0}, s{sR}, s{sWV}
                s_mul_i32 s{sT0}, s{sT0}, {4*3584}
                s_mul_i32 s{sT1}, s{sHG}, 448
                s_and_b32 s{sT1}, s{sT1}, 0xffffff80
                s_add_u32 s{sT0}, s{sT0}, s{sT1}
                s_add_u32 s{sPB}, s16, s{sT0}
                s_addc_u32 s{sPB+1}, s17, 0
                """)
                stouch1(0, 12)
        for j in range(16): g(f"v_dot2_f32_bf16 v{a0+(j&1)}, v{XR+j}, s{sONE2}, v{a0+(j&1)}")
        g(f"s_waitcnt vmcnt({ny})")
        for j in range(16, 32): g(f"v_dot2_f32_bf16 v{a0+(j&1)}, v{XR+j}, s{sONE2}, v{a0+(j&1)}")
        for r in range(4): g(f"v_mov_b32 v{Q2+r}, 0")
        g(f"v_add_f32 v{a0}, v{a0}, v{a1}")
        dpp_reduce(a0)
        g(f"""
        v_mul_f32 v{a0}, 0x3b000000, v{a0}
        v_cvt_pk_bf16_f32 v{vM}, v{a0}, v{a0}
        v_and_b32 v{vM}, 0xffff0000, v{vM}
        v_sub_f32 v{vD}, v{a0}, v{vM}
        v_xor_b32 v{vM}, 0x80000000, v{vM}
        """)
        pend = []
        for i in range(8):
            for jj in range(4):
                j = XR + 4*i + jj
                g(f"v_dot2_f32_bf16 v{E+2*jj}, v{j}, s{sLO}, v{vM}\nv_dot2_f32_bf16 v{E+2*jj+1}, v{j}, s{sHI}, v{vM}")
            for jj in range(4):
                j = XR + 4*i + jj
                acc = Q2 + 2*(jj & 1)
                g(f"v_pk_fma_f32 {vr(acc,2)}, {vr(E+2*jj,2)}, {vr(E+2*jj,2)}, {vr(acc,2)}\nv_cvt_pk_bf16_f32 v{j}, v{E+2*jj}, v{E+2*jj+1}")
            g(f"ds_write_b128 v{vXW}, {vr(XR+4*i,4)} offset:{XN + i*128}")
        g(f"v_pk_add_f32 {vr(Q2,2)}, {vr(Q2,2)}, {vr(Q2+2,2)}\nv_add_f32 v{a0}, v{Q2}, v{Q2+1}")
        dpp_reduce(a0)
        g(f"""
        v_mul_f32 v{a0}, 0x3b000000, v{a0}
        v_fma_f32 v{a0}, -v{vD}, v{vD}, v{a0}
        v_max_f32 v{a0}, 0, v{a0}
        v_cvt_pk_bf16_f32 v{a0}, v{a0}, v{a0}
        v_and_b32 v{a0}, 0xffff0000, v{a0}
        v_add_f32 v{a0}, 0x3727c5ac, v{a0}
        v_cvt_pk_bf16_f32 v{a0}, v{a0}, v{a0}
        v_and_b32 v{a0}, 0xffff0000, v{a0}
        v_sqrt_f32 v{a0}, v{a0}
        v_lshlrev_b32 v{E}, 2, v{vROW}
        v_cvt_pk_bf16_f32 v{a0}, v{a0}, v{a0}
        v_and_b32 v{a0}, 0xffff0000, v{a0}
        v_rcp_f32 v{a1}, v{a0}
        v_add_u32 v{E}, {RARR}, v{E}
        ds_write_b32 v{E}, v{a1}
        """)
        g.ts(2)
    lB, lJ = g.label("LB"), g.label("LJ")
    g(f"s_cmp_ge_u32 s{sWV}, 2\ns_cbranch_scc1 {lB}")
    AW, AQ = 64, 72
    g(f"s_mul_i32 s{sT1}, s{sHG}, 448\ns_movk_i32 s{sT2}, 2341")
    for i in range(7):
        g(f"""
        v_add_u32 v16, {64*i}, v{vL}
        v_mul_lo_u32 v17, v16, s{sT2}
        v_lshrrev_b32 v17, 16, v17
        v_mul_u32_u24 v21, 28, v17
        v_sub_u32 v16, v16, v21
        v_mul_u32_u24 v17, 3584, v17
        v_lshl_add_u32 v16, v16, 4, v17
        s_sub_u32 s{sT3}, s{sT1}, {(i%4)*1024}
        v_add_u32 v{AW+i}, s{sT3}, v16
        """)
    for w in range(8):
        g(f"v_add_u32 v{AQ+w}, {w*8192 - (w%4)*1024}, v{vWQ}\nv_add_u32 v{AQ+8+w}, {w*8192 - (w%4)*1024}, v{vWQ2}")
    g(f"""
    v_lshlrev_b32 v96, 2, v{vKR}
    v_add_u32 v96, {RARR}, v96
    v_lshrrev_b32 v19, 4, v{vL}
    v_lshrrev_b32 v21, 1, v19
    v_lshlrev_b32 v97, 2, v21
    v_xor_b32 v97, s{sHG}, v97
    v_and_b32 v98, 15, v{vL}
    v_lshlrev_b32 v98, 4, v98
    v_lshl_add_u32 v98, v97, 9, v98
    v_and_b32 v28, 1, v19
    v_lshl_add_u32 v98, v28, 3, v98
    v_lshlrev_b32 v97, 5, v97
    v_lshl_add_u32 v97, v28, 4, v97
    v_add_u32 v97, {RARR}, v97
    s_lshr_b32 s{sT1}, s{sHG}, 1
    v_xor_b32 v99, s{sT1}, v19
    v_and_b32 v99, 1, v99
    v_lshlrev_b32 v99, 7, v99
    v_lshl_add_u32 v99, v21, 3, v99
    v_lshrrev_b32 v21, 3, v{vKR}
    v_lshl_add_u32 v99, v21, 9, v99
    v_and_b32 v21, 7, v{vL}
    v_lshl_add_u32 v99, v21, 4, v99
    """)
    layernorm(0)
    NE = -opt.SENT_LATE
    lw0, lk, lv, lsp, lgo = g.label("KW"), g.label("KV"), g.label("KV"), g.label("KS"), g.label("KG")
    g(f"""
    v_mov_b32 v22, {SYNC}
    s_cmp_eq_u32 s{sWV}, 0
    s_cbranch_scc1 {lw0}
    v_mov_b32 v23, 1
    s_waitcnt vmcnt({1 + NE}) lgkmcnt(0)
    ds_write_b32 v22, v23
    """)
    if opt.TSW1: g.ts(12)
    for i in range(8):
        g(f"s_add_u32 s{sT0}, s{sR}, {i}\ns_and_b32 s{sT0}, s{sT0}, 7\ns_lshl_b32 s{sT0}, s{sT0}, 16")
        for w in range(8):
            if w % 4 == 0: g(f"s_mov_b32 m0, {WQ + (w + 8*i)*1024}\ns_nop 0")
            g(f"buffer_load_dwordx4 v{AQ + 8*((i >> 1) & 1) + w}, {srd(SWQ)}, s{sT0} offen offset:{(w%4)*1024} lds")
    if opt.TSW1: g.ts(10)
    LSP2, LGO2 = g.label("KS"), g.label("KG")
    for c in range(2):
        if c == 1:
            g(f"""
            s_mov_b32 s{sCNT}, 0
            {LSP2}:
            ds_read_b32 v23, v22
            s_add_u32 s{sCNT}, s{sCNT}, 1
            s_waitcnt lgkmcnt(0)
            v_readfirstlane_b32 s{sT1}, v23
            s_cmp_gt_u32 s{sCNT}, {opt.SPIN}
            s_cbranch_scc1 {LGO2}
            s_cmp_eq_u32 s{sT1}, 1
            s_cbranch_scc1 {LSP2}
            {LGO2}:
            """)
        for hf in range(2):
            g(f"s_add_u32 s{sT3}, s{sK}, {(32*c + 16*hf)*3584}")
            for m in range(7):
                if m % 4 == 0: g(f"s_mov_b32 m0, {S1[c] + (7*hf + m)*1024}\ns_nop 0")
                g(f"buffer_load_dwordx4 v{AW+m}, {srd(SW1)}, s{sT3} offen offset:{(m%4)*1024} lds")
    if opt.TSW1: g.ts(11)
    g(f"""
    s_waitcnt vmcnt(28)
    s_branch {lk}
    {lw0}:
    {"s_setprio 3" if opt.KVPRIO else ""}
    s_lshl_b32 s{sT0}, s{sTB}, 12
    s_add_u32 s{sT0}, s{sT0}, {WS_KV}
    s_mov_b32 s{sCNT}, 0
    s_waitcnt vmcnt({1 + NE})
    """)
    for s in range(8):
        for q in range(2): g(f"ds_read_b64_tr_b16 {vr(WK+4*s+2*q,2)}, v{vKA} offset:{s*1024+q*128}")
    g(f"""
    {lsp}:
    ds_read_b32 v23, v22
    s_add_u32 s{sCNT}, s{sCNT}, 1
    s_waitcnt lgkmcnt(0)
    v_readfirstlane_b32 s{sT1}, v23
    s_cmp_gt_u32 s{sCNT}, {opt.SPIN}
    s_cbranch_scc1 {lgo}
    s_cmp_eq_u32 s{sT1}, 0
    s_cbranch_scc1 {lsp}
    {lgo}:
    """)
    for s in range(7): g(f"ds_read_b128 {vr(KB+4*s,4)}, v{vKB} offset:{XN + s*64}")
    g(f"s_bitcmp0_b32 s{sHG}, 2\ns_cbranch_scc0 {lv}")
    for role in range(2):
        q = []
        for s in range(7, 16):
            if s >= 8: q.append([f"ds_read_b64_tr_b16 {vr(WK+4*s+2*u,2)}, v{vKA} offset:{s*1024+u*128}" for u in range(2)] + [f"ds_read_b128 {vr(KB+4*(s%8),4)}, v{vKB} offset:{XN + s*64}"])
            else: q.append([f"ds_read_b128 {vr(KB+4*s,4)}, v{vKB} offset:{XN + s*64}"])
        issued = [("b", s) for s in range(7)]
        for s in range(16):
            idx = max(i for i, x in enumerate(issued) if x == ("b", s))
            g(f"s_waitcnt lgkmcnt({min(15, len(issued) - 1 - idx)})")
            g(mfma16(KD, WK+4*s, KB+4*(s%8), KD if s else "0") if role == 0 else mfma16(KD, KB+4*(s%8), WK+4*s, KD if s else "0"))
            k = s + 7
            if k < 16 and (k < 8 or k - 8 <= s):
                for x in q[k-7]: g(x); issued.append(("b", k))
            if s == 9: g(f"ds_read_b32 v24, v96" if role == 0 else f"ds_read_b128 v[24:27], v97"); issued.append("r")
        g("v_mov_b32 v23, 2\ns_waitcnt lgkmcnt(0)\nds_write_b32 v22, v23\ns_nop 4")
        for k in range(4): g(f"v_mul_f32 v{KD+k}, v{KD+k}, v{24 if role == 0 else 24+k}")
        g(f"v_cvt_pk_bf16_f32 v{KD}, v{KD}, v{KD+1}\nv_cvt_pk_bf16_f32 v{KD+1}, v{KD+2}, v{KD+3}")
        if role == 0: g(f"buffer_store_dwordx2 {vr(KD,2)}, v99, {srd(SWS)}, s{sT0} offen sc1\ns_branch {lk}\n{lv}:")
        else: g(f"buffer_store_dwordx2 {vr(KD,2)}, v98, {srd(SWS)}, s{sT0} offen offset:256 sc1")
    g(f"{lk}:")
    if opt.KVPRIO: g("s_setprio 0")
    g.ts(4)
    kmark = len(g.vm)
    if opt.KVFLAG_Q < 0:
        sk = g.label("KF")
        g(f"s_cmp_lg_u32 s{sWV}, 0\ns_cbranch_scc1 {sk}\ns_waitcnt vmcnt({len(g.vm) - kmark}) lgkmcnt(0)\ns_mul_i32 s{sT1}, s{sTAG}, 0x9e3779b1\ns_add_u32 s{sT1}, s{sT1}, 0x7f4a7c15")
        g(f"""
        s_lshl3_add_u32 s{sT0}, s{sTB}, s{sHG}
        s_lshl_b32 s{sT0}, s{sT0}, 4
        s_add_u32 s{sT0}, s{sT0}, {WS_FKV}
        v_mov_b32 v31, s{sT1}
        s_mov_b64 exec, 1
        buffer_store_dword v31, off, {srd(SWS)}, s{sT0} sc1
        s_mov_b64 exec, -1
        {sk}:
        """)
    g.ts(5)
    vmA = list(g.vm); g.vm = []
    g(f"s_branch {lJ}\n{lB}:")
    layernorm(1)
    assert vmA == g.vm
    g(f"""
    {lJ}:
    s_lshl_b32 s{sT0}, s{sTH}, 7
    s_add_u32 s{sT0}, s{sT0}, {RARR}
    v_and_b32 v16, 31, v{vL}
    v_lshl_add_u32 v16, v16, 2, s{sT0}
    v_and_b32 v18, 15, v{vL}
    v_lshl_add_u32 v17, v18, 2, s{sT0}
    s_mov_b32 s{SOUT}, s20
    s_mov_b32 s{SOUT+1}, s21
    s_mov_b32 s{SOUT+2}, 0x200000
    """)
    g(f"s_add_u32 s{sT0}, s{sK}, {64*3584}\ns_sub_u32 s{sK}, s{sT0}, s{SW1+2}\ns_cselect_b32 s{sK}, s{sT0}, s{sK}\ns_waitcnt lgkmcnt(0)")
    g.vm += [("w1", 0), ("w1", 0), ("w1", 1), ("w1", 1)]
    g(f"s_mul_i32 s{sTAG}, s{sTAG}, 0x9e3779b1\ns_add_u32 s{sTAG}, s{sTAG}, 0x7f4a7c15\ns_barrier")
    g.ts(3)
    g(f"ds_read_b32 v{vRT}, v16\nds_read_b32 v{vRT+1}, v16\nds_read_b32 v14, v17\nds_read_b32 v15, v17 offset:64")
    def flag_store(base):
        g(f"""
        s_lshl3_add_u32 s{sT0}, s{sTB}, s{sHG}
        s_lshl_b32 s{sT0}, s{sT0}, 4
        s_add_u32 s{sT0}, s{sT0}, {base}
        v_mov_b32 v31, s{sTAG}
        s_mov_b64 exec, 1
        buffer_store_dword v31, off, {srd(SWS)}, s{sT0} sc1
        s_mov_b64 exec, -1
        """)
    def check_or_spin(loads, regs):
        done, lab = g.label("PD"), g.label("PL")
        g(f"s_mov_b32 s{sCNT}, 0\n{lab}:")
        for r in regs: g(f"v_xor_b32 v{r}, s{sTAG}, v{r}")
        for r in regs[1:]: g(f"v_or_b32 v{regs[0]}, v{regs[0]}, v{r}")
        g(f"""
        v_cmp_ne_u32 vcc, 0, v{regs[0]}
        s_nop 4
        s_cbranch_vccz {done}
        s_add_u32 s{sCNT}, s{sCNT}, 1
        s_cmp_gt_u32 s{sCNT}, {opt.SPIN}
        s_cbranch_scc1 {done}
        s_sleep 8
        """)
        for s in loads: g(s)
        g(f"s_waitcnt vmcnt(0)\ns_branch {lab}\n{done}:")
    kvpoll = [f"buffer_load_dword v{20+k}, v{vL16}, {srd(SWS)}, s{sT1} offen offset:{k*1024} sc1" for k in range(4)]
    QA, QBf, D0 = 64, 80, 232
    def q_reads(s):
        return [f"ds_read_b64_tr_b16 {vr(QA+4*(s%4)+2*q,2)}, v{vQAa} offset:{s*1024+q*512}" for q in range(2)] + \
               [f"ds_read_b128 {vr(QBf+8*(s%4)+4*u,4)}, v{vQB} offset:{XN + u*16*XPITCH + s*16}" for u in range(2)]
    def kv_dma(c):
        g(f"s_add_u32 m0, s{sKVL}, {KVS[c%4]}\ns_add_u32 s{sT0}, s{sKVS}, {c*8192}")
        g.vmop(f"buffer_load_dwordx4 v{vL16}, {srd(SWS)}, s{sT0} offen sc1 lds", ("kv", c))
    def poll_issue():
        sk = g.label("KP")
        g(f"s_cmp_lg_u32 s{sWV}, 7\ns_cbranch_scc1 {sk}\ns_mov_b32 s{sT1}, {WS_FKV}")
        for x in kvpoll: g(x)
        g(f"{sk}:")
        poll_mark[0] = len(g.vm)
    poll_mark = [0]
    if opt.KVPOLL_Q < 0: poll_issue()
    for s in range(3):
        for x in q_reads(s): g(x)
    for s in range(16):
        if s == opt.QMID:
            sk = g.label("KC")
            g(f"s_cmp_lg_u32 s{sWV}, 7\ns_cbranch_scc1 {sk}\ns_waitcnt vmcnt(0)")
            check_or_spin(kvpoll, list(range(20, 24)))
            g(f"{sk}:\ns_barrier")
            kv_dma(0); kv_dma(1)
        g(f"s_waitcnt lgkmcnt({4*min(2, 15-s)})")
        rd = q_reads(s+3) if s + 3 < 16 else []
        for u in range(2):
            g(mfma16(D0+4*u, QA+4*(s%4), QBf+8*(s%4)+4*u, D0+4*u if s else "0"))
            for x in rd[2*u:2*u+2]: g(x)
        if s < 4:
            for r in range(4): g(f"v_mov_b32 v{vO+4*s+r}, 0")
        if s == 4: g(f"v_and_b32 v30, 27, v{vL}\nv_cmp_eq_u32 vcc, 16, v30\nv_mov_b32 v30, s{sONE2}\ns_nop 0\nv_cndmask_b32 v30, 0, v30, vcc")
        if 5 <= s < 8:
            for r in range(4): g(f"v_mov_b32 v{vV0+4*(s-5)+r}, v30")
        if s == opt.KVFLAG_Q:
            sk = g.label("KF")
            assert s < 9
            g(f"s_cmp_lg_u32 s{sWV}, 0\ns_cbranch_scc1 {sk}\ns_waitcnt vmcnt(0)")
            flag_store(WS_FKV)
            g(f"{sk}:")
        if s == opt.KVPOLL_Q: poll_issue()
        if opt.SENT_LATE and s == 9:
            for r in range(4): g(f"v_mov_b32 v{24+r}, -1")
            g.vmop(f"buffer_store_dwordx4 v[24:27], v{vL16}, {srd(SWS)}, s{sOS} offen sc1", "sent")
    cb = fb(0.25 * 1.4426950408889634)
    g(f"v_mul_f32 v14, {cb:#x}, v14\nv_mul_f32 v15, {cb:#x}, v15\ns_nop 5")
    for u in range(2):
        for r in range(4): g(f"v_mul_f32 v{D0+4*u+r}, v{D0+4*u+r}, v{14+u}")
    for u in range(2):
        for r in range(2): g(f"v_cvt_pk_bf16_f32 v{vQ+2*u+r}, v{D0+4*u+2*r}, v{D0+4*u+2*r+1}")
    g("s_nop 1")
    for r in range(2): g(f"v_permlane16_swap_b32 v{vQ+r}, v{vQ+2+r}")
    g("s_nop 0")
    for r in range(2): g(f"v_permlane32_swap_b32 v{vQ+r}, v{vQ+2+r}")
    g.ts(6)
    def f1_reads(kappa, fb_, fa):
        c, ks = kappa // 2, kappa % 2
        o = S1[c % 4] - W1BASE + ks*7168
        return [[f"ds_read_b64_tr_b16 {vr(fa+2*q,2)}, v{vA1} offset:{o + q*1792}" for q in range(2)],
                [f"ds_read_b64_tr_b16 {vr(fa+4+2*q,2)}, v{vA1b} offset:{o + q*1792}" for q in range(2)] + [f"ds_read_b128 {vr(fb_,4)}, v{vB} offset:{XN + kappa*32}"]]
    PF = lambda kappa: 164 + 12*(kappa % 4)
    assert opt.QMID >= 8 and (NPRE == 0 or opt.F1_START == 0)
    if NPRE:
        sk = g.label("W0")
        g(f"s_cmp_lg_u32 s{sWV}, 1\ns_cbranch_scc1 {sk}\ns_waitcnt vmcnt({14 + opt.SENT_LATE})\n{sk}:")
    else: g.vmwait(("kv", 1))
    g("s_barrier")
    g.ts(7)
    nkv = 0
    if opt.QMID < 16: kv_dma(2); nkv = 3
    for c in (2, 3): w1_dma(c, 0); w1_dma(c, 1)
    if NPRE:
        for kappa in range(2):
            for grp in f1_reads(kappa, PF(kappa), PF(kappa)+4):
                for x in grp: g(x)
    def kread(t, dst): return f"ds_read_b128 {vr(dst,4)}, v{vKA2} offset:{KVS[(t//4)%4] + (t%4)*2048}"
    def vread(t, u, dst): return f"ds_read_b128 {vr(dst,4)}, v{vVA} offset:{KVS[(t//4)%4] + (t%4)*2048 + u*1024}"
    def v01(t):
        g(f"s_mov_b64 exec, s[{sVM}:{sVM+1}]"); g(vread(t, 0, vV0)); g(vread(t, 1, vV1[t & 1])); g("s_mov_b64 exec, -1")
    vMX = 28
    def maxtree(first, n=32):
        regs = list(range(vS[0], vS[0]+n))
        if first: g(f"v_max3_f32 v{vMX}, v{regs[0]}, v{regs[1]}, v{regs[2]}\nv_max_f32 v{vMX}, v{vMX}, v{regs[3]}"); regs = regs[4:]
        for k in range(0, len(regs), 2): g(f"v_max3_f32 v{vMX}, v{vMX}, v{regs[k]}, v{regs[k+1]}")
    def finish_m(bias):
        g(f"""
        v_mov_b32 v31, v{vMX}
        s_nop 1
        v_permlane32_swap_b32 v31, v{vMX}
        s_nop 1
        v_max_f32 v{vMX}, v{vMX}, v31
        v_add_f32 v{vMX}, {fb(bias):#x}, v{vMX}
        v_xor_b32 v{vC}, 0x80000000, v{vMX}
        """)
        for r in range(1, 16): g(f"v_mov_b32 v{vC+r}, v{vC}")
    PIN = opt.PROLOG_IN and NPRE >= 2
    for j in range(NPRE):
        if j + 1 < NPRE: g.vmwait(("w1", j+1), extra="lgkmcnt(0)")
        elif PIN: g.vmwait(("kv", 1), ("w1", NPRE + 1), extra="lgkmcnt(0)")
        else: g("s_waitcnt lgkmcnt(0)")
        if opt.QMID >= 16 and j == opt.KVCHECK_AT:
            sk = g.label("KC")
            g(f"s_cmp_lg_u32 s{sWV}, 7\ns_cbranch_scc1 {sk}\ns_waitcnt vmcnt({len(g.vm) - poll_mark[0]})")
            check_or_spin(kvpoll, list(range(20, 24)))
            g(f"{sk}:")
        g("s_barrier")
        if j in opt.TSP: g.ts(4 + opt.TSP.index(j))
        if opt.QMID >= 16 and j == opt.KVPOLL_PRE: poll_issue()
        rd = []
        if j + 1 < NPRE:
            for kappa in (2*j+2, 2*j+3):
                for grp in f1_reads(kappa, PF(kappa), PF(kappa)+4): rd += grp
        jobs = []
        if opt.QMID >= 16 and j >= opt.KVCHECK_AT:
            for _ in range(2 if (PIN and nkv == 0) else (3 - nkv + (NPRE - j) - 1) // (NPRE - j)):
                if nkv < 3: jobs.append(lambda c=nkv: kv_dma(c)); nkv += 1
        jobs += [lambda: w1_dma(j+4, 0), lambda: w1_dma(j+4, 1)]
        n = 0
        last = PIN and j == NPRE - 1
        if last:
            g(kread(0, vK)); g(kread(1, vK1)); v01(0)
        for kappa in (2*j, 2*j+1):
            for T in range(2):
                g(mfma(FACC+16*T, PF(kappa)+4+4*T, PF(kappa), FACC+16*T if kappa else "0"))
                if last and n == 0:
                    g("s_waitcnt lgkmcnt(2)"); g(mfma(vS[0], vK, vQ, "0")); g(mfma(vS[1], vK1, vQ, "0"))
                if last and n == 2:
                    g("s_nop 7\ns_nop 1"); maxtree(True)
                if last and n == 3:
                    finish_m(opt.BIAS)
                if n < 3:
                    for x in rd[n*len(rd)//3:(n+1)*len(rd)//3]: g(x)
                for jb in jobs[n*len(jobs)//4:(n+1)*len(jobs)//4]: jb()
                n += 1
    if opt.F1_START == 0 and not PIN:
        g.vmwait(("w1", NPRE + 1), ("kv", 1))
        g("s_barrier")
    g.ts(8)
    if opt.HROT:
        for u in range(4):
            g(f"""
            s_add_u32 s{sT0}, s{sHG}, {u}
            s_and_b32 s{sT0}, s{sT0}, 3
            s_sub_u32 s{sT0}, s{sT0}, {u}
            s_mul_i32 s{sT1}, s{sT0}, {7*16384}
            s_add_u32 s{sROT+u}, s{sT1}, s{sW2S}
            s_mul_i32 s{sT1}, s{sT0}, {7*1024}
            s_add_u32 s{sROT+4+u}, s{sT1}, s{sHB}
            """)
    g(f"s_cmp_lt_u32 s{sKQ}, 3\ns_cselect_b64 vcc, -1, 0")
    if not PIN:
        g(kread(0, vK)); g(kread(1, vK1))
        v01(0)
        g("s_waitcnt lgkmcnt(2)")
        g(mfma(vS[0], vK, vQ, "0")); g(mfma(vS[1], vK1, vQ, "0"))
        g("s_nop 7\ns_nop 2")
        maxtree(True)
        finish_m(opt.BIAS)
    g("s_nop 1")
    g(mfma(vS[0], vK, vQ, vC))
    g(kread(1, vK))
    g("s_nop 7\ns_nop 2")
    def w2_dma(step, slot):
        g(f"s_add_u32 m0, s{sW2B}, {T2[slot]}")
        if step < 28:
            if opt.HROT: g(f"s_add_u32 s{sT0}, s{sROT + step//7}, {step*16384}")
            else: g(f"s_add_u32 s{sT0}, s{sW2S}, {step*16384}")
            S = SW2
        else:
            g(f"s_lshl_b32 s{sT0}, s{sKQ}, 17\ns_add_u32 s{sT0}, s{sT0}, {(step-28)*16384}"); S = SWO
        g.vmop(f"buffer_load_dwordx4 v{vW2}, {srd(S)}, s{sT0} offen lds", ("w2", step))
    slot_of = {}
    def lds_base(off):
        return (0, off) if off < XN_END else ((1, off - XN_END) if off < W1BASE else (2, off - W1BASE))
    def a_reads(step, fa):
        b, o = lds_base(T2[slot_of[step]])
        return [[f"ds_read_b64_tr_b16 {vr(fa+4*n+2*q,2)}, v{vG0+b} offset:{o + n*1024 + q*512}" for q in range(2)] for n in range(2)]
    HR = lambda i: HB + 4*(i % opt.NH)
    def h_load(i):
        if i == 28: g(f"s_lshl_b32 s{sHB}, s{sKQ}, 13\ns_add_u32 s{sHB}, s{sHB}, s{sOB}")
        elif opt.HROT:
            if i % 7 in (0, 4): g(f"s_add_u32 s{sHB}, s{sROT + 4 + i//7}, {i*1024}")
            g.vmop(f"buffer_load_dwordx4 {vr(HR(i),4)}, v{vL16}, {srd(SWS)}, s{sHB} offen offset:{(i%7%4)*1024} sc1", ("h", i))
            return
        elif i and i % 4 == 0: g(f"s_add_u32 s{sHB}, s{sHB}, 4096")
        g.vmop(f"buffer_load_dwordx4 {vr(HR(i),4)}, v{vL16}, {srd(SWS)}, s{sHB} offen offset:{(i%4)*1024} sc1", ("h", i))
    hpoll = [f"buffer_load_dword v29, v30, {srd(SWS)}, s{sT1} offen sc1"]
    def pair_flag_addr(base):
        g(f"""
        s_lshl2_add_u32 s{sT1}, s{sTB}, s{sKQ}
        s_lshl_b32 s{sT1}, s{sT1}, 5
        s_add_u32 s{sT1}, s{sT1}, {base}
        v_and_b32 v30, 16, v{vL16}
        """)
    def touch3():
        a, b = g.label("T3"), g.label("T3")
        g(f"""
        s_lshr_b32 s{sT0}, s{sHG}, 2
        s_lshl_b32 s{sT0}, s{sT0}, 9
        s_cmp_eq_u32 s{sWV}, 7
        s_cbranch_scc1 {a}
        s_lshl_b32 s{sT1}, s{sWV}, 5
        s_add_u32 s{sT1}, s{sT1}, s{sJ}
        s_lshl_b32 s{sT1}, s{sT1}, 13
        s_add_u32 s{sT0}, s{sT0}, s{sT1}
        s_mov_b32 exec_hi, 0
        buffer_load_dword v{vJ}, v{vT3}, {srd(SW2)}, s{sT0} offen
        s_mov_b64 exec, -1
        s_branch {b}
        {a}:
        s_lshl_b32 s{sT1}, s{sJ}, 14
        s_add_u32 s{sT0}, s{sT0}, s{sT1}
        buffer_load_dword v{vJ}, v{vT3}, {srd(SWO)}, s{sT0} offen
        {b}:
        """)
        g.vm.append("touch")
    F1 = opt.F1_START; assert F1 % 4 == 0
    R1 = F1 + 32 - 2*NPRE
    F2 = opt.F2_START; NF2 = opt.NF2
    assert F2 + NF2 <= 64
    freeslots = []; nxt_w2 = 0; nxt_h = 0
    w2_open = False
    p2, pm, p1 = opt.P
    for t in range(64):
        c = t // 4
        S = vS[t & 1]; Sn = vS[(t+1) & 1]
        ex = lambda k: f"v_exp_f32 v{S+k}, v{S+k}"
        top = (t % 4 == 0 and t > 0)
        xm = [None, None]; xr = [[], []]
        if F1 + 1 <= t <= R1:
            xm = [mfma(FACC+16*T, FA+4*T, FB, FACC+16*T if (NPRE or t > F1 + 1) else "0") for T in range(2)]
        if F1 <= t < R1: xr = f1_reads(2*NPRE + t - F1, FB, FA)
        st = t - F2
        if 0 <= st < NF2:
            xm = [mfma(FACC+16*n, FA+4*n, HR(st), FACC+16*n if st else "0") for n in range(2)]
        rd_step = st + 1 if -1 <= st < NF2 - 1 else None
        jobs = []
        if t % 4 == 0 and c + 3 < 16: jobs.append(lambda: kv_dma(c + 3))
        cf = c - F1//4
        pc = NPRE + 2*(cf + 1)
        if cf >= 1 and pc < 16 and t % 4 < 2:
            jobs += [lambda: w1_dma(pc + t % 4, 0), lambda: w1_dma(pc + t % 4, 1)]
        if opt.TOUCH3 and t == opt.T3_T: jobs.append(touch3)
        if t == opt.HPOLL_T: jobs.append(lambda: (pair_flag_addr(WS_FH), g.vmop(hpoll[0], "hpoll")))
        hjobs = []
        nh = 0
        if t > opt.HCHECK_T:
            while nxt_h < 28 and nh < (2 if nxt_h < st + opt.HLEAD else 1) and nxt_h - opt.NH < st - 1:
                hjobs.append(lambda i=nxt_h: h_load(i)); nxt_h += 1; nh += 1
        def slot(name):
            sd = sorted(opt.SLOT_D[min(i, len(opt.SLOT_D)-1)] for i in range(len(jobs)))
            for i, jb in enumerate(jobs):
                if sd[i] == name: jb()
            sh = sorted(opt.SLOT_H[min(i, len(opt.SLOT_H)-1)] for i in range(len(hjobs)))
            for i, jb in enumerate(hjobs):
                if sh[i] == name: jb()
        for k in range(0, p2): g(ex(k))
        if t > 0: g(smf(vO, vV1[(t-1) & 1], vS[(t-1) & 1] + 8, vIDX))
        if top:
            need = []
            if c + 1 < 16: need.append(("kv", c+1))
            if 0 <= cf and NPRE + 2*cf + 1 < 16: need.append(("w1", NPRE + 2*cf + 1))
            for s_ in range(4*c - F2 + 1, 4*c - F2 + 5):
                if 0 <= s_ < NF2: need.append(("w2", s_))
            if t == opt.HFLAG_T: need.append("hst")
            if c == 15: need += [("w2", s_) for s_ in range(NF2, 36 if opt.KVFREE else min(28, NF2 + opt.NTAILPRE)) if ("w2", s_) in g.vm]
            if need: g.vmwait(*need, extra="lgkmcnt(0)")
            else: g("s_waitcnt lgkmcnt(0)")
            g("s_barrier")
            g.vis = g.done
            if c < 14: g.ts(c, True)
            if t == opt.HFLAG_T:
                sk = g.label("HF")
                g(f"s_cmp_lg_u32 s{sWV}, 0\ns_cbranch_scc1 {sk}")
                flag_store(WS_FH)
                g(f"{sk}:")
            if not w2_open and t >= R1:
                w2_open = True; freeslots += list(range(NRES))
            for s_ in range(4*(c-1) - F2 + 1, 4*(c-1) - F2 + 5):
                if 0 <= s_ < NF2: freeslots.append(slot_of[s_])
            if opt.KVFREE and c >= 13: freeslots.append(NRES + KVS[(c-1) % 4]//8192)
            g(f"s_setprio {3 - t % 4}")
        else:
            g(f"s_setprio {3 - t % 4}\ns_waitcnt lgkmcnt(0)")
        for _ in range(2 if (opt.KVFREE and t >= 52 and len(freeslots) > 3 - t % 4 + 1) else 1):
            if freeslots and nxt_w2 < opt.W2_LIM and len(jobs) < 2 and t >= opt.W2_T0 and not (opt.KVFREE and t >= 60):
                slot_of[nxt_w2] = freeslots.pop(0)
                jobs.append(lambda s_=nxt_w2: w2_dma(s_, slot_of[s_])); nxt_w2 += 1
        if rd_step is not None: xr = a_reads(rd_step, FA)
        slot('A')
        for k in range(p2, pm): g(ex(k))
        if t + 1 < 64: g(mfma(Sn, vK, vQ, vC))
        if t + 2 < 64: g(kread(t+2, vK))
        slot('B')
        for k in range(pm, p1): g(ex(k))
        g(smf(vO, vV0, S, vIDX))
        if t + 1 < 64: v01(t+1)
        slot('C')
        if t == opt.HCHECK_T:
            g.vmwait("hpoll")
            check_or_spin(hpoll, [29])
        for k in range(p1, opt.XP[0]): g(ex(k))
        if 0 <= st < NF2: g.vmwait(("h", st))
        if xm[0]: g(xm[0])
        for x in xr[0]: g(x)
        slot('X')
        for k in range(opt.XP[0], opt.XP[1]): g(ex(k))
        if opt.SKIPDUP and F1 <= t <= R1:
            sk = g.label("SD")
            g(f"s_cbranch_vccz {sk}")
            if xm[1]: g(xm[1])
            for x in xr[1][:2]: g(x)
            g(f"{sk}:")
            for x in xr[1][2:]: g(x)
        else:
            if xm[1]: g(xm[1])
            for x in xr[1]: g(x)
        slot('Y')
        for k in range(opt.XP[1], 16): g(ex(k))
        for T in range(2):
            a = FACC + 16*T
            if t == R1 + opt.HEP[T]:
                if not opt.RLATE:
                    for k in range(8): g(f"v_pk_mul_f32 {vr(a+2*k,2)}, {vr(a+2*k,2)}, {vr(vRT,2)}")
                for k in range(8): g(f"v_cvt_pk_bf16_f32 v{a+k}, v{a+2*k}, v{a+2*k+1}")
                for k in range(8): g(f"v_pk_max_i16 v{a+k}, v{a+k}, 0")
            for u in range(2):
                if t == R1 + opt.HST[2*T+u]:
                    g.vmop(f"buffer_store_dwordx4 {vr(a+4*u,4)}, v{vL16}, {srd(SWS)}, s{sHS+T} offen offset:{(2*T+u)*1024} sc1", "hst")
    XRES = 24
    g.vmop(f"buffer_load_dwordx4 {vr(XRES,4)}, v{vXO}, {srd(SX)}, s{sXO} offen", "xres")
    g("s_nop 0")
    g(smf(vO, vV1[1], vS[1] + 8, vIDX))
    g.ts(9)
    FBK, ONORM = g.label("FBK"), g.label("ON")
    while nxt_h < 28: h_load(nxt_h); nxt_h += 1
    g(f"""
    s_nop 2
    v_mov_b32 v30, {fb(2.0**115):#x}
    v_mov_b32 v31, {fb(2.0**126):#x}
    s_nop 6
    v_add_f32 v28, |v{vO}|, |v{vO+1}|
    """)
    for k in range(2, 8): g(f"v_add_f32 v28, v28, |v{vO+k}|")
    g(f"""
    v_cmp_lt_f32 vcc, v{vO+8}, v30
    v_cmp_lt_f32 s[{sT0}:{sT1}], v28, v31
    v_mov_b32 v30, {fb(2.0**-106):#x}
    v_cmp_gt_f32 s[{sT2}:{sT3}], v28, v30
    s_nop 3
    s_and_b64 vcc, vcc, s[{sT0}:{sT1}]
    s_and_b64 vcc, vcc, s[{sT2}:{sT3}]
    s_cmp_eq_u64 vcc, {0 if opt.X_FB else -1}
    s_cbranch_scc0 {FBK}
    {ONORM}:
    v_rcp_f32 v29, v{vO+8}
    s_nop 0
    """)
    for k in range(8): g(f"v_mul_f32 v{vO+k}, v{vO+k}, v29")
    for k in range(4): g(f"v_cvt_pk_bf16_f32 v{vO+k}, v{vO+2*k}, v{vO+2*k+1}")
    g.vmop(f"buffer_store_dwordx4 {vr(vO,4)}, v{vL16}, {srd(SWS)}, s{sOS} offen sc1", "ost")
    AF = [80, 88, 96]
    def tail_reads(step): return [x for grp in a_reads(step, AF[step % 3]) for x in grp]
    visible = lambda s_: ("w2", s_) in g.vm and g.vmneed([("w2", s_)]) <= g.vis
    hs = list(range(NF2, 28))
    oregs = [36, 40, 44, 52, 56, 60, 64, 68]
    def o_loads():
        g(f"s_lshl_b32 s{sT2}, s{sKQ}, 13\ns_add_u32 s{sT2}, s{sT2}, s{sOB}\ns_add_u32 s{sT3}, s{sT2}, 4096")
        return [f"buffer_load_dwordx4 {vr(oregs[i],4)}, v{vL16}, {srd(SWS)}, s{sT2 + i//4} offen offset:{(i%4)*1024} sc1" for i in range(8)]
    seq = hs + list(range(28, 36))
    def rd(i):
        assert visible(seq[i]) or (("w2", seq[i]) in g.vm and g.vmneed([("w2", seq[i])]) <= g.vis), ("not visible", seq[i])
        for x in tail_reads(seq[i]): g(x)
    done_steps = set(range(NF2))
    bars = [b for b in opt.TAILBAR if b < len(seq)]
    pend_dma = []
    rd(0); rd(1)
    for i, s_ in enumerate(seq):
        if i in bars:
            nb = min([b for b in bars if b > i] + [len(seq)])
            need = [("w2", seq[k]) for k in range(i + 2, min(nb + 2, len(seq)))]
            need = [x for x in need if x in g.vm]
            if need: g.vmwait(*need)
            g("s_barrier")
            g.vis = g.done
            used = {slot_of[x] for x in slot_of if x not in done_steps}
            fs = [x for x in range(len(T2)) if x not in used]
            while nxt_w2 < 36 and fs:
                slot_of[nxt_w2] = fs.pop(0); pend_dma.append(nxt_w2); nxt_w2 += 1
        if i == min(opt.OLOAD_AT, len(hs)):
            if not opt.TSW1: g.ts(10)
            ol = o_loads()
            for k, x in enumerate(ol): g.vmop(x, ("o", k))
        if i == len(hs):
            if not opt.TSW1: g.ts(11)
            if opt.OSPLIT:
                for u in range(5):
                    for x in a_reads(28 + u, 72 + 4*u)[0]: g(x)
            if opt.RLATE:
                g("s_nop 1")
                for k in range(16): g(f"v_pk_mul_f32 {vr(FACC+2*k,2)}, {vr(FACC+2*k,2)}, {vr(vRT,2)}")
            g.vmwait(("o", 7))
            done, lab = g.label("OD"), g.label("OL")
            g(f"s_mov_b32 s{sCNT}, 0\n{lab}:")
            allr = [r + k for r in oregs for k in range(4)]
            g(f"v_max3_u32 v28, v{allr[0]}, v{allr[1]}, v{allr[2]}\nv_max3_u32 v29, v{allr[3]}, v{allr[4]}, v{allr[5]}")
            for k in range(6, 32, 2): g(f"v_max3_u32 v{28 + (k//2) % 2}, v{28 + (k//2) % 2}, v{allr[k]}, v{allr[k+1]}")
            g(f"""
            v_max_u32 v28, v28, v29
            v_cmp_eq_u32 vcc, -1, v28
            s_nop 4
            s_cbranch_vccz {done}
            s_add_u32 s{sCNT}, s{sCNT}, 1
            s_cmp_gt_u32 s{sCNT}, {opt.SPIN}
            s_cbranch_scc1 {done}
            s_sleep 4
            """)
            for x in ol: g(x)
            g(f"s_waitcnt vmcnt(0)\ns_branch {lab}\n{done}:")
            if not opt.TSW1: g.ts(12)
            if opt.TSCNT: g(f"s_add_u32 s{sTS+1}, s{sTS}, s{sCNT}")
        if opt.OSPLIT and s_ == 28: break
        if i + 2 < len(seq) and not (opt.OSPLIT and seq[i+2] >= 28): rd(i + 2)
        if s_ < 28: g.vmwait(("h", s_))
        g(f"s_waitcnt lgkmcnt({4*min(2, (len(hs) if opt.OSPLIT else len(seq))-1-i)})")
        b = HR(s_) if s_ < 28 else oregs[s_ - 28]
        for n in range(2):
            g(mfma(FACC+16*n, AF[s_ % 3]+4*n, b, FACC+16*n if s_ else "0"))
            for _ in range(2):
                if pend_dma:
                    x = pend_dma.pop(0); w2_dma(x, slot_of[x])
        done_steps.add(s_)
    if not opt.OSPLIT:
        g.ts(13)
        busy = {slot_of[x] for x in seq}
        F = [T2[x] for x in range(len(T2)) if x not in busy][:6]
        if len(F) < 6:
            g('s_barrier'); F = T2[:6]
        g(f"v_add_u32 v28, {XN_END}, v{vRB}\nv_add_u32 v29, {W1BASE}, v{vRB}")
        g.vmwait("xres")
        for k in range(4): g(f"v_lshlrev_b32 v{16+2*k}, 16, v{XRES+k}\nv_and_b32 v{17+2*k}, 0xffff0000, v{XRES+k}")
        rbase = [vRB, 28, 29]
        def blk(gq, src):
            p = gq*3 + (src - gq - 1) % 4
            b, o = lds_base(F[p // 2] + (p % 2)*4096)
            return rbase[b], o
        FIN = g.label("FIN")
        RD, OW = 64, 104
        for kq in range(4):
            nxt = g.label("FK")
            if kq < 3: g(f"s_cmp_lg_u32 s{sKQ}, {kq}\ns_cbranch_scc1 {nxt}")
            else: g("s_nop 1")
            for d in range(1, 4):
                gq = (kq + d) % 4
                v, o = blk(gq, kq)
                for u in range(2): g(f"ds_write_b128 v{v}, {vr(FACC+8*gq+4*u,4)} offset:{o + u*1024}")
            for e in range(8): g(f"v_mov_b32 v{OW+e}, v{FACC+8*kq+e}")
            g("s_waitcnt lgkmcnt(0)\ns_barrier")
            for d in range(1, 4):
                v, o = blk(kq, (kq + d) % 4)
                for u in range(2): g(f"ds_read_b128 {vr(RD+8*(d-1)+4*u,4)}, v{v} offset:{o + u*1024}")
            if kq < 3: g(f"s_branch {FIN}\n{nxt}:")
    else:
        busy = {slot_of[x] for x in range(28, 36)}
        lastbar = max([b for b in bars if b <= len(hs)] + [0])
        busy |= {slot_of[x] for x in seq[lastbar:]}
        if not bars: busy |= {NRES + KVS[3]//8192}
        F = [T2[x] for x in range(len(T2)) if x not in busy][:6]
        assert len(F) == 6 and all(visible(x) for x in range(28, 36))
        rbase = [vRB, 28, 29]
        def blk(gq, src):
            p = gq*3 + (src - gq - 1) % 4
            b, o = lds_base(F[p // 2] + (p % 2)*4096)
            return rbase[b], o
        FIN = g.label("FIN")
        RD, OW = 64, 104
        OA = [72, 76, 80, 84, 88, 92]
        useq = [(n, k) for n in range(2) for k in range(8)]
        def ord_(u):
            n, k = useq[u]
            return a_reads(28 + k, OA[u % 6] - 4*n)[n]
        LA = 5
        g(f"v_add_u32 v28, {XN_END}, v{vRB}\nv_add_u32 v29, {W1BASE}, v{vRB}")
        g.vmwait("xres")
        for k in range(4): g(f"v_lshlrev_b32 v{16+2*k}, 16, v{XRES+k}\nv_and_b32 v{17+2*k}, 0xffff0000, v{XRES+k}")
        def o_mfma(u, extra=0):
            n, k = useq[u]
            g(f"s_waitcnt lgkmcnt({2*min(LA-1, 15-u) + extra})")
            g(mfma(FACC+16*n, OA[u % 6], oregs[k], FACC+16*n))
            if u + LA < 16:
                for x in ord_(u + LA): g(x)
        for u in range(11): o_mfma(u)
        for kq in range(4):
            nxt = g.label("FK")
            if kq < 3: g(f"s_cmp_lg_u32 s{sKQ}, {kq}\ns_cbranch_scc1 {nxt}")
            wr = []
            for gq in (0, 1):
                if gq != kq:
                    v, o = blk(gq, kq)
                    wr += [f"ds_write_b128 v{v}, {vr(FACC+8*gq+4*u,4)} offset:{o + u*1024}" for u in range(2)]
            nw = 0
            for u in range(11, 16):
                o_mfma(u, nw)
                if wr: g(wr.pop(0)); nw += 1
            if kq == 0: g.ts(13)
            g("s_nop 7\ns_nop 3")
            for gq in (2, 3):
                if gq != kq:
                    v, o = blk(gq, kq)
                    for u in range(2): g(f"ds_write_b128 v{v}, {vr(FACC+8*gq+4*u,4)} offset:{o + u*1024}")
            for e in range(8): g(f"v_mov_b32 v{OW+e}, v{FACC+8*kq+e}")
            g("s_waitcnt lgkmcnt(0)\ns_barrier")
            for d in range(1, 4):
                v, o = blk(kq, (kq + d) % 4)
                for u in range(2): g(f"ds_read_b128 {vr(RD+8*(d-1)+4*u,4)}, v{v} offset:{o + u*1024}")
            if kq < 3: g(f"s_branch {FIN}\n{nxt}:")
    g(f"{FIN}:\ns_waitcnt lgkmcnt(4)")
    for e in range(0, 8, 2): g(f"v_pk_add_f32 {vr(OW+e,2)}, {vr(OW+e,2)}, {vr(RD+e,2)}")
    g("s_waitcnt lgkmcnt(2)")
    for e in range(0, 8, 2): g(f"v_pk_add_f32 {vr(OW+e,2)}, {vr(OW+e,2)}, {vr(RD+8+e,2)}")
    g("s_waitcnt lgkmcnt(0)")
    for e in range(0, 8, 2): g(f"v_pk_add_f32 {vr(OW+e,2)}, {vr(OW+e,2)}, {vr(RD+16+e,2)}")
    g("s_nop 1")
    for e in range(4): g(f"v_permlane32_swap_b32 v{OW+e}, v{OW+4+e}")
    g("s_nop 1")
    for e in range(0, 8, 2): g(f"v_pk_add_f32 {vr(OW+e,2)}, {vr(OW+e,2)}, {vr(16+e,2)}")
    if opt.X_EPS:
        for e in range(8): g(f"v_mul_f32 v{OW+e}, {fb(1.0 + opt.X_EPS):#x}, v{OW+e}")
    for k in range(4): g(f"v_cvt_pk_bf16_f32 v{OW+k}, v{OW+2*k}, v{OW+2*k+1}")
    g(f"buffer_store_dwordx4 {vr(OW,4)}, v{vXO}, {srd(SOUT)}, s{sXO} offen {opt.OUTF}")
    sk = g.label("EP")
    g(f"""
    s_or_b32 s{sT0}, s{sTB}, s{sHG}
    s_or_b32 s{sT0}, s{sT0}, s{sWV}
    s_cmp_lg_u32 s{sT0}, 0
    s_cbranch_scc1 {sk}
    v_mov_b32 v29, s{sTAG}
    s_mov_b64 exec, 1
    buffer_store_dword v29, off, {srd(SWS)}, 0 offset:{WS_EPOCH}
    s_mov_b64 exec, -1
    {sk}:
    """)
    if opt.TS:
        g(f"""
        s_lshl_b32 s{sT0}, s2, 3
        s_add_u32 s{sT0}, s{sT0}, s{sWV}
        s_lshl_b32 s{sT0}, s{sT0}, 7
        s_add_u32 s{sT0}, s{sT0}, {WS_TSB}
        s_memtime s[{sT2}:{sT3}]
        s_waitcnt vmcnt(0)
        s_memtime s[{sT4}:{sT5}]
        s_waitcnt lgkmcnt(0)
        s_mov_b32 s{sTS+14}, s{sT2}
        s_mov_b32 s{sTS+15}, s{sT4}
        s_memrealtime s[{sT4}:{sT5}]
        s_waitcnt lgkmcnt(0)
        s_mov_b32 s{sTS+17}, s{sT4}
        """)
        for k in range(18): g(f"v_mov_b32 v{32+k}, s{sTS+k}")
        g("v_mov_b32 v28, 0\ns_mov_b64 exec, 1")
        for k in range(5): g(f"buffer_store_dwordx4 {vr(32+4*k,4)}, v28, {srd(SWS)}, s{sT0} offen offset:{16*k}")
    g("s_endpgm")
    L1, L2 = g.label("FL"), g.label("FL")
    g(f"""
    {FBK}:
    v_subrev_u32 v30, {KVR}, v{vKA2}
    v_subrev_u32 v29, {KVR}, v{vVA}
    s_mov_b32 s{sT2}, {WS_KV}
    v_mov_b32 v{vMX}, 0xff800000
    {L1}:
    buffer_load_dwordx4 {vr(vK,4)}, v30, {srd(SWS)}, s{sT2} offen sc1
    s_waitcnt vmcnt(0)
    """)
    g(mfma(vS[0], vK, vQ, "0"))
    g("s_nop 7\ns_nop 3")
    maxtree(False, 16)
    g(f"s_add_u32 s{sT2}, s{sT2}, 2048\ns_cmp_lt_u32 s{sT2}, {WS_KV + 131072}\ns_cbranch_scc1 {L1}")
    finish_m(0.0)
    for r in range(16): g(f"v_mov_b32 v{vO+r}, 0")
    g(f"""
    s_mov_b32 s{sT2}, {WS_KV}
    {L2}:
    buffer_load_dwordx4 {vr(vK,4)}, v30, {srd(SWS)}, s{sT2} offen sc1
    s_mov_b64 exec, s[{sVM}:{sVM+1}]
    buffer_load_dwordx4 {vr(vV0,4)}, v29, {srd(SWS)}, s{sT2} offen sc1
    buffer_load_dwordx4 {vr(vV1[0],4)}, v29, {srd(SWS)}, s{sT2} offen offset:1024 sc1
    s_mov_b64 exec, -1
    s_waitcnt vmcnt(0)
    """)
    g(mfma(vS[0], vK, vQ, vC))
    g("s_nop 7\ns_nop 3")
    for k in range(16): g(f"v_exp_f32 v{vS[0]+k}, v{vS[0]+k}")
    g("s_nop 1")
    g(smf(vO, vV0, vS[0], vIDX)); g(smf(vO, vV1[0], vS[0]+8, vIDX))
    g(f"s_add_u32 s{sT2}, s{sT2}, 2048\ns_cmp_lt_u32 s{sT2}, {WS_KV + 131072}\ns_cbranch_scc1 {L2}")
    g(f"s_nop 7\ns_nop 3\ns_branch {ONORM}")
    g("L_END:\ns_endpgm")
    body = g.text()
    hdr = open("parallel_sum__grouped_kv_mqa__dense_activation_relu__prompt.s.ref").read().split("; Override launch")[0]
    out = hdr + f"; @launch grid=(256,1,1) block=(512,1,1) lds={LDS_SIZE}\n"
    out += f""".amdgcn_target "amdgcn-amd-amdhsa--gfx950"
.text
.globl {NAME}
.p2align 8
.type {NAME},@function
{NAME}:
""" + body + f""".section .rodata,"a"
.p2align 6
.amdhsa_kernel {NAME}
  .amdhsa_next_free_vgpr 256
  .amdhsa_next_free_sgpr 102
  .amdhsa_accum_offset 256
  .amdhsa_group_segment_fixed_size 0
  .amdhsa_kernarg_size 88
  .amdhsa_user_sgpr_count 2
  .amdhsa_user_sgpr_kernarg_segment_ptr 1
  .amdhsa_system_sgpr_workgroup_id_x 1
.end_amdhsa_kernel
"""
    return out

if __name__ == "__main__":
    outp = sys.argv[1]
    for a in sys.argv[2:]:
        k, v = a.split("=", 1)
        assert hasattr(opt, k), k
        setattr(opt, k, eval(v))
    open(outp, "w").write(build())
```

```python
import sys, struct
NAME = "parallel_sum__grouped_kv_mqa__dense_activation_relu__prompt_kernel"
fb = lambda x: struct.unpack("<I", struct.pack("<f", x))[0]

class Opt:
    TS = False; TSA = False; TSR = False
    BIAS = 100.0
    SPIN = 200000
    NPRE = 6
    KVPOLL_Q = 99
    WQ_AT = (-1, -1, -1, -1, 7, 7, 8, 8)
    W1_AT = (10, 10); WQA = -2; BW_AT = None; WQA_EARLY = 0
    F1_START = 0; QMID = 99; KVCHECK_AT = 3; KVPOLL_PRE = 1
    HFLAG_T = 36; HPOLL_T = 39; HCHECK_T = 43; F2_START = 48; NF2 = 14
    NH = 20
    P = (3, 7, 12); XP = (14, 15)
    NTAILPRE = 17
    HEP = (1, 2); HST = (1, 3, 5, 7)
    SLOT_D = 'CXB'; SLOT_H = 'YA'
    TOUCH3 = 1; T3_T = 16; W2_T0 = 29; W2_LIM = 36
    OLOAD_AT = 11
    LGC = 0; KVFREE = 0; KVFLAG_Q = 5; KVPRIO = 0; TSCNT = 0; TSW1 = 0; KA2 = 1; TSSKIP = (); STOUCH = 0; SENT_LATE = 1; RLATE = 0; X_EPS = 0.0; KVW_LATE = 0; PROLOG_IN = 1; OSPLIT = 1; TSP = (2, 4); NWQ1 = 8; QTOUCH = 1; QTW = 7
    SKIPDUP = 1; HLEAD = 20; HROT = 0; OUTF = ""
    TAILBAR = (1, 8, 12)
    X_UNTIL = 0; X_UPOS = 8; X_FB = 0
opt = Opt()

WS_EPOCH = 0; WS_FKV = 0x1000; WS_FH = 0x2000; WS_FO = 0x3000
WS_TSB = 0xC00000; WS_KV = 0x10000; WS_O = 0x40000; WS_H = 0x300000; WS_SIZE = 0x1000000

XN = 0; XPITCH = 1040; XN_END = 64*XPITCH
WQ = XN_END; KVR = XN_END
W1BASE = 99328
S1 = [132096, 146432, 99328, 113664]
STG = 146432; RARR = 162816; SYNC = 163072
KVS = [0, 16384, 8192, 24576]
LDS_SIZE = 163840
T2 = [i*8192 for i in range(8)] + [W1BASE + i*8192 for i in range(7)] + [KVR + i*8192 for i in range(4)]
NRES = 15

sRB = 3
sW2S, sXO = 14, 15
sTB, sHG, sWV, sTAG, sTH, sKQ = 26, 27, 28, 29, 30, 31
SX, SW1, SKV, SWS, SW2, SWO, SOUT = 32, 36, 40, 44, 48, 52, 56
SXO = 44
SWQ = 8
sROT = 4
sR, sK, sM1a, sM1b, sHS, sHS2 = 60, 61, 62, 63, 64, 65
sONE2, sLO, sHI, sJ = 66, 67, 68, 69
sVM = 70
sT0, sT1, sT2, sT3, sT4, sT5 = 72, 73, 74, 75, 76, 77
sOS = 22
sHB, sOB, sCNT, sW2B, sKVS, sKVL = 78, 79, 80, 81, 82, 83
sTS = 84
def srd(b): return f"s[{b}:{b+3}]"
def vr(b, n): return f"v[{b}:{b+n-1}]" if n > 1 else f"v{b}"

class Gen:
    def __init__(self): self.l = []; self.nl = 0; self.vm = []; self.done = -1
    def __call__(self, s):
        for x in s.strip("\n").split("\n"):
            x = x.strip()
            if x: self.l.append(("" if x.endswith(":") else "    ") + x)
    def label(self, p="L"):
        self.nl += 1; return f"{p}_{self.nl}"
    def vmop(self, s, tag=None):
        self(s); self.vm.append(tag)
    def vmneed(self, tags):
        idx = -1
        for tag in tags:
            c = [i for i, t in enumerate(self.vm) if t == tag]
            assert c, tag
            idx = max(idx, c[-1])
        return idx
    def vmwait(self, *tags, extra=""):
        idx = self.vmneed(tags)
        if idx <= self.done:
            if extra: self(f"s_waitcnt {extra}")
            return
        n = len(self.vm) - 1 - idx
        assert n <= 63, n
        self.done = idx
        self(f"s_waitcnt vmcnt({n}) {extra}")
    def ts(self, i, att=False):
        if opt.X_UNTIL and i == opt.X_UPOS and not att:
            l = self.label("U")
            self(f"{l}:\ns_memrealtime s[98:99]\ns_waitcnt lgkmcnt(0)\ns_sub_u32 s98, s98, s100\ns_cmp_lt_u32 s98, {opt.X_UNTIL}\ns_cbranch_scc1 {l}")
        if opt.TS and (att == opt.TSA or i in (0, 15)) and i not in opt.TSSKIP:
            if opt.TSR: self(f"s_memrealtime s[{sTS+14}:{sTS+15}]\ns_waitcnt lgkmcnt(0)\ns_sub_u32 s{sTS+14}, s{sTS+14}, s{sTS+16}\ns_mul_i32 s{sTS+14}, s{sTS+14}, 10\ns_add_u32 s{sTS+i}, s{sTS+14}, s{sTS}")
            else: self(f"s_memtime s[{sTS+14}:{sTS+15}]\ns_waitcnt lgkmcnt(0)\ns_mov_b32 s{sTS+i}, s{sTS+14}")
    def text(self): return "\n".join(self.l) + "\n"

def mfma(d, a, b, c):
    cs = vr(c, 16) if isinstance(c, int) else c
    return f"v_mfma_f32_32x32x16_bf16 {vr(d,16)}, {vr(a,4)}, {vr(b,4)}, {cs}"
def mfma16(d, a, b, c):
    cs = vr(c, 4) if isinstance(c, int) else c
    return f"v_mfma_f32_16x16x32_bf16 {vr(d,4)}, {vr(a,4)}, {vr(b,4)}, {cs}"
def smf(d, a, b, idx): return f"v_smfmac_f32_32x32x32_bf16 {vr(d,16)}, {vr(a,4)}, {vr(b,8)}, v{idx}"

def build():
    g = Gen()
    NPRE = opt.NPRE
    vL, vX, vL16, vB, vA1, vA1b, vW1a, vW1b, vXW, vKB, vKA = 1, 2, 3, 4, 5, 6, 7, 8, 9, 10, 11
    vRT = 12
    vQ, vK, vK1, FB, vV0, vV1, vO, vC, vS, FA = 16, 20, 24, 32, 36, [40, 44], 48, 64, [80, 96], 112
    vKA2, vVA, vIDX, vW2, vG0, vG1, vG2, vT3, vXO, vRB, vWQ, vROW = range(120, 132)
    FACC, HB = 132, 164
    vQAa, vQB, vWQ2, vKR, vJ = 240, 241, 242, 243, 255
    XR, WK, KB, KD = 32, 164, 64, 228
    g(f"""
    s_cmp_ge_u32 s2, 256
    s_cbranch_scc1 L_END
    s_load_dwordx16 s[4:19], s[0:1], 0
    """)
    ka2 = "s_load_dwordx2 s[20:21], s[0:1], 64\ns_load_dwordx2 s[24:25], s[0:1], 80"
    if not opt.KA2: g(ka2)
    if opt.TS: g(f"s_memtime s[{sTS}:{sTS+1}]\ns_memrealtime s[{sTS+16}:{sTS+17}]")
    if opt.X_UNTIL: g("s_memrealtime s[100:101]")
    g(f"""
    v_lshrrev_b32 v16, 6, v0
    s_lshr_b32 s{sJ}, s2, 3
    s_mov_b32 s{SW1+3}, 0x20000
    v_readfirstlane_b32 s{sWV}, v16
    s_getpc_b64 s[{SW1}:{SW1+1}]
    L_PC:
    s_mov_b32 s{SW1+2}, L_END-L_PC
    v_and_b32 v17, 1, v0
    v_lshl_add_u32 v16, v16, 1, v17
    v_lshlrev_b32 v16, 7, v16
    s_lshl_b32 s{sT1}, s{sJ}, 11
    buffer_load_dword v{vJ}, v16, {srd(SW1)}, s{sT1} offen
    v_and_b32 v{vL}, 63, v0
    s_and_b32 s{sT0}, s2, 7
    s_lshr_b32 s{sTB}, s{sT0}, 1
    s_and_b32 s{sR}, s{sJ}, 7
    s_lshl3_add_u32 s{sTB}, s{sTB}, s{sR}
    s_and_b32 s{sT0}, s{sT0}, 1
    s_lshr_b32 s{sT2}, s{sJ}, 3
    s_lshl2_add_u32 s{sHG}, s{sT0}, s{sT2}
    s_and_b32 s{sTH}, s{sWV}, 1
    s_lshr_b32 s{sKQ}, s{sWV}, 1
    s_lshl2_add_u32 s{sRB}, s{sTH}, s{sKQ}
    s_add_u32 s{sRB}, s{sRB}, s{sHG}
    s_and_b32 s{sRB}, s{sRB}, 7
    s_lshl_b32 s{sT2}, s{sRB}, 3
    v_lshrrev_b32 v22, 3, v{vL}
    v_add_u32 v{vROW}, s{sT2}, v22
    v_lshlrev_b32 v16, 10, v{vROW}
    v_and_b32 v17, 7, v0
    v_lshl_add_u32 v{vX}, v17, 4, v16
    v_lshlrev_b32 v{vL16}, 4, v{vL}
    v_mul_u32_u24 v16, {XPITCH}, v{vROW}
    v_lshl_add_u32 v{vXW}, v17, 4, v16
    v_bfe_u32 v16, v{vL}, 3, 1
    v_lshlrev_b32 v16, 2, v16
    v_xor_b32 v16, s{sHG}, v16
    v_lshl_add_u32 v{vKR}, v16, 3, v17
    v_mul_u32_u24 v16, {XPITCH}, v{vKR}
    v_lshrrev_b32 v18, 4, v{vL}
    v_lshl_add_u32 v{vKB}, v18, 4, v16
    v_bfe_u32 v19, v{vL}, 2, 2
    v_lshl_add_u32 v16, v18, 3, v19
    v_lshlrev_b32 v16, 5, v16
    v_and_b32 v20, 3, v{vL}
    v_lshl_add_u32 v16, v20, 3, v16
    v_add_u32 v{vKA}, {STG}, v16
    v_bfe_u32 v16, v{vL}, 4, 1
    v_lshrrev_b32 v21, 1, v17
    v_xor_b32 v16, v16, v21
    v_lshlrev_b32 v21, 10, v22
    v_lshl_add_u32 v21, v16, 5, v21
    v_and_b32 v16, 1, v{vL}
    v_lshl_add_u32 v21, v16, 4, v21
    s_lshl_b32 s{sT1}, s{sHG}, 7
    v_add_u32 v{vWQ}, s{sT1}, v21
    s_lshl_b32 s{sT0}, s{sTB}, 16
    s_lshl_b32 s{sT2}, s{sR}, 7
    """ + "".join(f"s_add_u32 s{SXO+n}, s{sT2}, {n*128}\ns_and_b32 s{SXO+n}, s{SXO+n}, 0x380\ns_or_b32 s{SXO+n}, s{SXO+n}, s{sT0}\n" for n in range(8)) + f"""
    s_mov_b32 s{SX+2}, 0x200000
    s_mov_b32 s{SX+3}, 0x20000
    s_movk_i32 s{SKV+2}, 16384
    s_mov_b32 s{SKV+3}, 0x20000
    s_and_b32 s{sT1}, s{sWV}, 3
    s_lshl2_add_u32 s{sT1}, s{sJ}, s{sT1}
    s_lshl_b32 s{sT1}, s{sT1}, 7
    s_lshl_b32 s{sT4}, s{sTH}, 13
    s_add_u32 s{sT4}, s{sT4}, {STG}
    s_lshl2_add_u32 s{sT5}, s{sTH}, s{sR}
    v_mov_b32 v22, {SYNC}
    v_mov_b32 v23, 0
    s_lshl1_add_u32 s{sT0}, s{sTB}, s{sTH}
    s_lshl_b32 s{sOB}, s{sT0}, 15
    s_add_u32 s{sOB}, s{sOB}, {WS_O}
    s_lshl2_add_u32 s{sT2}, s{sHG}, s{sKQ}
    s_lshl_b32 s{sT2}, s{sT2}, 10
    s_add_u32 s{sOS}, s{sT2}, s{sOB}
    s_mov_b32 s{SOUT+2}, {WS_SIZE}
    s_mov_b32 s{SOUT+3}, 0x20000
    v_mov_b32 v24, -1
    v_mov_b32 v25, -1
    v_mov_b32 v26, -1
    v_mov_b32 v27, -1
    s_bitcmp0_b32 s{sHG}, 2
    s_waitcnt lgkmcnt(0)
    s_cselect_b32 s{SKV}, s8, s10
    s_cselect_b32 s{SKV+1}, s9, s11
    s_mov_b32 s{SX}, s4
    s_mov_b32 s{SX+1}, s5
    buffer_load_dword v{vJ}, off, {srd(SKV)}, s{sT1}
    """)
    def xloads():
        for i in range(8): g(f"buffer_load_dwordx4 {vr(XR+4*i,4)}, v{vX}, {srd(SX)}, s{SXO+i} offen")
    sentinel = f"buffer_store_dwordx4 v[24:27], v{vL16}, {srd(SOUT)}, s{sOS} offen sc1"
    lb, lj = g.label("X"), g.label("X")
    g(f"s_cmp_ge_u32 s{sWV}, 2\ns_cbranch_scc1 {lb}")
    xloads()
    for i in range(4):
        g(f"s_add_u32 m0, s{sT4}, {i*2048}\ns_add_u32 s{sT1}, s{sT5}, {i}\ns_and_b32 s{sT1}, s{sT1}, 7\ns_lshl_b32 s{sT1}, s{sT1}, 11")
        for u in range(2): g(f"buffer_load_dwordx4 v{vL16}, {srd(SKV)}, s{sT1} offen offset:{u*1024} lds")
    g(f"ds_write_b32 v22, v23\nds_write_b32 v22, v23 offset:4\ns_waitcnt lgkmcnt(0)\ns_barrier\ns_branch {lj}\n{lb}:\ns_barrier")
    xloads()
    if opt.QTOUCH:
        g(f"""
        s_mov_b32 s{SW1}, s6
        s_mov_b32 s{SW1+1}, s7
        s_cmp_eq_u32 s{sWV}, {opt.QTW}
        s_cselect_b32 s{SW1+2}, 0x80000, 0
        s_lshl_b32 s{sT0}, s{sR}, 16
        s_lshl_b32 s{sT1}, s{sHG}, 7
        s_add_u32 s{sT0}, s{sT0}, s{sT1}
        v_lshlrev_b32 v16, 10, v{vL}
        buffer_load_dword v{vJ}, v16, {srd(SW1)}, s{sT0} offen
        """)
        if opt.QTOUCH > 1:
            g(f"""
            s_mov_b32 s{SW1}, s16
            s_mov_b32 s{SW1+1}, s17
            s_cmp_eq_u32 s{sWV}, {opt.QTW}
            s_cselect_b32 s{SW1+2}, {512*3584}, 0
            s_mul_i32 s{sT0}, s{sR}, {64*3584}
            s_mul_i32 s{sT1}, s{sHG}, 448
            s_and_b32 s{sT1}, s{sT1}, 0xffffff80
            s_add_u32 s{sT0}, s{sT0}, s{sT1}
            v_lshrrev_b32 v16, 2, v{vL}
            v_mul_u32_u24 v16, 3584, v16
            v_lshl_add_u32 v16, v20, 7, v16
            """)
            for k in range(opt.QTOUCH - 1):
                g(f"buffer_load_dword v{vJ}, v16, {srd(SW1)}, s{sT0} offen\ns_add_u32 s{sT0}, s{sT0}, {16*3584}")
    if opt.SENT_LATE: sentinel = ""
    g(f"{lj}:\n{sentinel}")
    sPB, sJK = 96, 23
    def stouch(k0, k1):
        for k in range(k0, k1): g(f"s_load_dword s{sJK}, s[{sPB}:{sPB+1}], {(k//2)*1024 + (k%2)*64}")
    def stouch1(k0, k1):
        for k in range(k0, k1): g(f"s_load_dword s{sJK}, s[{sPB}:{sPB+1}], {(k//8)*3584 + (k%8)*64}")
    if opt.STOUCH:
        g(f"""
        s_lshl3_add_u32 s{sT0}, s{sR}, s{sWV}
        s_lshl_b32 s{sT0}, s{sT0}, 13
        s_lshl_b32 s{sT1}, s{sHG}, 7
        s_add_u32 s{sT0}, s{sT0}, s{sT1}
        s_add_u32 s{sPB}, s6, s{sT0}
        s_addc_u32 s{sPB+1}, s7, 0
        """)
        stouch(0, 15)
    elif opt.KA2: g(ka2)
    else: g(f"s_load_dword s{sTAG}, s[24:25], {WS_EPOCH}")
    g(f"""
    s_mov_b32 s{SWQ}, s6
    s_mov_b32 s{SWQ+1}, s7
    s_mov_b32 s{SWQ+2}, 0x80000
    s_mov_b32 s{SWQ+3}, 0x20000
    s_mov_b32 s{SW1}, s16
    s_mov_b32 s{SW1+1}, s17
    s_mov_b32 s{SW1+2}, {512*3584}
    s_mov_b32 s{SWS+2}, {WS_SIZE}
    s_mov_b32 s{SWS+3}, 0x20000
    s_mov_b32 s{SW2}, s18
    s_mov_b32 s{SW2+1}, s19
    s_mov_b32 s{SW2+2}, {1792*1024}
    s_mov_b32 s{SW2+3}, 0x20000
    s_mov_b32 s{SWO}, s12
    s_mov_b32 s{SWO+1}, s13
    s_mov_b32 s{SWO+2}, 0x80000
    s_mov_b32 s{SWO+3}, 0x20000
    s_mov_b32 s{sONE2}, 0x3f803f80
    s_mov_b32 s{sLO}, 0x00003f80
    s_mov_b32 s{sHI}, 0x3f800000
    s_mov_b32 s{sVM}, 0x0000ffff
    s_mov_b32 s{sVM+1}, 0x0000ffff
    s_lshl_b32 s{sKVL}, s{sWV}, 10
    s_add_u32 s{sKVS}, s{sKVL}, {WS_KV}
    s_add_u32 s{sKVL}, s{sKVL}, {KVR}
    s_mul_i32 s{sK}, s{sR}, {64*3584}
    s_min_u32 s{sT3}, s{sWV}, 6
    s_lshl_b32 s{sM1a}, s{sT3}, 10
    s_add_u32 s{sT0}, s{sWV}, 8
    s_cmp_lt_u32 s{sWV}, 6
    s_cselect_b32 s{sT0}, s{sT0}, 7
    s_lshl_b32 s{sM1b}, s{sT0}, 10
    s_mul_i32 s{sT1}, s{sHG}, 448
    s_movk_i32 s{sT2}, 2341
    """)
    for dst, sm in ((vW1a, sT3), (vW1b, sT0)):
        g(f"""
        v_lshl_add_u32 v16, s{sm}, 6, v{vL}
        v_mul_lo_u32 v17, v16, s{sT2}
        v_lshrrev_b32 v17, 16, v17
        v_mul_u32_u24 v21, 28, v17
        v_sub_u32 v16, v16, v21
        v_mul_u32_u24 v17, 3584, v17
        v_lshl_add_u32 v16, v16, 4, v17
        v_add_u32 v{dst}, s{sT1}, v16
        """)
    g(f"""
    v_lshrrev_b32 v21, 5, v{vL}
    v_bfe_u32 v22, v{vL}, 4, 1
    v_lshl_add_u32 v16, v21, 3, v19
    v_mul_u32_u24 v16, 448, v16
    v_lshl_add_u32 v16, v22, 5, v16
    v_lshl_add_u32 v16, v20, 3, v16
    s_lshl_b32 s{sT0}, s{sKQ}, 7
    s_add_u32 s{sT0}, s{sT0}, {W1BASE}
    v_add_u32 v{vA1}, s{sT0}, v16
    s_cmp_lt_u32 s{sKQ}, 3
    s_cselect_b32 s{sT0}, 64, 0
    v_add_u32 v{vA1b}, s{sT0}, v{vA1}
    v_and_b32 v16, 31, v{vL}
    s_lshl_b32 s{sT0}, s{sTH}, 5
    v_add_u32 v17, s{sT0}, v16
    v_mul_u32_u24 v17, {XPITCH}, v17
    v_lshl_add_u32 v{vB}, v21, 4, v17
    v_lshlrev_b32 v16, 10, v16
    v_lshl_add_u32 v{vXO}, v21, 4, v16
    v_and_b32 v23, 15, v{vL}
    v_add_u32 v17, s{sT0}, v23
    v_mul_u32_u24 v17, {XPITCH}, v17
    v_lshl_add_u32 v{vQB}, v18, 8, v17
    v_xor_b32 v{vWQ2}, 64, v{vWQ}
    v_bfe_u32 v16, v{vL}, 3, 1
    v_lshl_or_b32 v16, v22, 1, v16
    v_xor_b32 v16, s{sKQ}, v16
    v_lshlrev_b32 v16, 5, v16
    v_lshl_add_u32 v16, v18, 14, v16
    v_lshl_add_u32 v16, v19, 7, v16
    v_lshl_add_u32 v16, v20, 3, v16
    v_add_u32 v{vQAa}, {WQ}, v16
    v_bfe_u32 v16, v{vL}, 3, 2
    v_lshlrev_b32 v17, 9, v16
    v_lshrrev_b32 v16, 1, v16
    v_xor_b32 v16, v16, v21
    v_lshl_add_u32 v17, v16, 7, v17
    v_and_b32 v16, 7, v{vL}
    v_lshl_add_u32 v17, v16, 4, v17
    v_add_u32 v{vKA2}, {KVR}, v17
    v_lshlrev_b32 v17, 9, v21
    v_lshl_add_u32 v17, v23, 4, v17
    v_add_u32 v{vVA}, {KVR + 256}, v17
    v_mov_b32 v{vIDX}, 0xdddddddd
    v_lshrrev_b32 v16, 2, v{vL}
    v_lshlrev_b32 v16, 10, v16
    v_lshl_add_u32 v{vT3}, v20, 7, v16
    v_lshl_add_u32 v16, v20, 4, v16
    s_lshl_b32 s{sT0}, s{sHG}, 7
    s_lshl_b32 s{sT1}, s{sTH}, 6
    s_add_u32 s{sT0}, s{sT0}, s{sT1}
    v_add_u32 v{vW2}, s{sT0}, v16
    v_lshlrev_b32 v16, 6, v19
    v_lshl_add_u32 v16, v22, 5, v16
    v_lshl_add_u32 v16, v20, 3, v16
    v_lshl_add_u32 v16, v21, 8, v16
    s_lshl_b32 s{sT0}, s{sKQ}, 11
    v_add_u32 v{vG0}, s{sT0}, v16
    v_add_u32 v{vG1}, {XN_END}, v{vG0}
    v_add_u32 v{vG2}, {W1BASE}, v{vG0}
    s_lshl_b32 s{sW2B}, s{sTH}, 10
    s_add_u32 s{sW2B}, s{sW2B}, s{sT0}
    s_lshl1_add_u32 s{sT0}, s{sTB}, s{sTH}
    s_mul_i32 s{sT2}, s{sT0}, 112
    s_mul_i32 s{sT1}, s{sKQ}, 28
    s_add_u32 s{sHB}, s{sT2}, s{sT1}
    s_lshl_b32 s{sHB}, s{sHB}, 10
    s_add_u32 s{sHB}, s{sHB}, {WS_H}
    s_mul_i32 s{sT1}, s{sHG}, 14
    s_add_u32 s{sT2}, s{sT2}, s{sT1}
    s_lshl2_add_u32 s{sT2}, s{sKQ}, s{sT2}
    s_lshl_b32 s{sHS}, s{sT2}, 10
    s_add_u32 s{sHS}, s{sHS}, {WS_H}
    s_cmp_lt_u32 s{sKQ}, 3
    s_cselect_b32 s{sHS2}, s{sHS}, 0x7f000000
    s_lshl_b32 s{sXO}, s{sT0}, 15
    s_lshl_b32 s{sT1}, s{sHG}, 7
    s_add_u32 s{sXO}, s{sXO}, s{sT1}
    s_lshl_b32 s{sT1}, s{sKQ}, 5
    s_add_u32 s{sXO}, s{sXO}, s{sT1}
    s_mul_i32 s{sW2S}, s{sKQ}, {28*16384}
    s_lshl_b32 s{sT0}, s{sTH}, 11
    v_add_u32 v{vRB}, s{sT0}, v{vL16}
    """)
    if opt.KA2: g(f"s_waitcnt lgkmcnt(0)\ns_load_dword s{sTAG}, s[24:25], {WS_EPOCH}")
    g(f"s_mov_b32 s{SWS}, s24\ns_mov_b32 s{SWS+1}, s25")
    def wq_dma(i):
        g(f"s_add_u32 m0, s{sKVL}, {i*8192}\ns_add_u32 s{sT0}, s{sR}, {i}\ns_and_b32 s{sT0}, s{sT0}, 7\ns_lshl_b32 s{sT0}, s{sT0}, 16")
        g.vmop(f"buffer_load_dwordx4 v{vWQ2 if (i >> 1) & 1 else vWQ}, {srd(SWQ)}, s{sT0} offen lds", ("wq", i))
    def w1_dma(c, half):
        if half == 0:
            g(f"s_add_u32 m0, s{sM1a}, {S1[c % 4]}\ns_nop 0")
            g.vmop(f"buffer_load_dwordx4 v{vW1a}, {srd(SW1)}, s{sK} offen lds", ("w1", c))
        else:
            g(f"s_add_u32 m0, s{sM1b}, {S1[c % 4]}\ns_add_u32 s{sT0}, s{sK}, {32*3584}")
            g.vmop(f"buffer_load_dwordx4 v{vW1b}, {srd(SW1)}, s{sK} offen lds", ("w1", c))
            g(f"s_sub_u32 s{sK}, s{sT0}, s{SW1+2}\ns_cselect_b32 s{sK}, s{sT0}, s{sK}")
    a0, a1, vM, vD, E, Q2 = 12, 13, 14, 15, 16, 24
    def dpp_reduce(v):
        for m in ("quad_perm:[1,0,3,2]", "quad_perm:[2,3,0,1]", "row_half_mirror"):
            g(f"s_nop 1\nv_add_f32_dpp v{v}, v{v}, v{v} {m} row_mask:0xf bank_mask:0xf")
    def issue_at(pos):
        for i in range(8):
            if opt.WQ_AT[i] == pos: wq_dma(i)
        for c in range(2):
            if opt.W1_AT[c] == pos:
                l7, lj_ = g.label("W7"), g.label("W7")
                g(f"s_cmp_eq_u32 s{sWV}, 7\ns_cbranch_scc1 {l7}")
                w1_dma(c, 0); w1_dma(c, 1)
                g(f"s_branch {lj_}\n{l7}:\ns_add_u32 s{sT0}, s{sK}, {32*3584}")
                for _ in range(2): g(f"buffer_load_dword v{vJ}, off, {srd(SW1)}, s{sHS2}")
                g(f"s_sub_u32 s{sK}, s{sT0}, s{SW1+2}\ns_cselect_b32 s{sK}, s{sT0}, s{sK}\n{lj_}:")
    def layernorm(cls):
        ny = (9 if cls == 0 else 1 + opt.QTOUCH) - opt.SENT_LATE
        g(f"v_mov_b32 v{a0}, 0\nv_mov_b32 v{a1}, 0\ns_waitcnt vmcnt({ny+4})")
        g.ts(1)
        if opt.STOUCH:
            stouch(15, 16)
            g(f"s_load_dword s{sTAG}, s[24:25], {WS_EPOCH}")
            if opt.STOUCH > 1:
                g(f"""
                s_lshl4_add_u32 s{sT0}, s{sR}, s{sWV}
                s_mul_i32 s{sT0}, s{sT0}, {4*3584}
                s_mul_i32 s{sT1}, s{sHG}, 448
                s_and_b32 s{sT1}, s{sT1}, 0xffffff80
                s_add_u32 s{sT0}, s{sT0}, s{sT1}
                s_add_u32 s{sPB}, s16, s{sT0}
                s_addc_u32 s{sPB+1}, s17, 0
                """)
                stouch1(0, 12)
        for j in range(16): g(f"v_dot2_f32_bf16 v{a0+(j&1)}, v{XR+j}, s{sONE2}, v{a0+(j&1)}")
        g(f"s_waitcnt vmcnt({ny})")
        for j in range(16, 32): g(f"v_dot2_f32_bf16 v{a0+(j&1)}, v{XR+j}, s{sONE2}, v{a0+(j&1)}")
        for r in range(4): g(f"v_mov_b32 v{Q2+r}, 0")
        g(f"v_add_f32 v{a0}, v{a0}, v{a1}")
        dpp_reduce(a0)
        g(f"""
        v_mul_f32 v{a0}, 0x3b000000, v{a0}
        v_cvt_pk_bf16_f32 v{vM}, v{a0}, v{a0}
        v_and_b32 v{vM}, 0xffff0000, v{vM}
        v_sub_f32 v{vD}, v{a0}, v{vM}
        v_xor_b32 v{vM}, 0x80000000, v{vM}
        """)
        pend = []
        for i in range(8):
            for jj in range(4):
                j = XR + 4*i + jj
                g(f"v_dot2_f32_bf16 v{E+2*jj}, v{j}, s{sLO}, v{vM}\nv_dot2_f32_bf16 v{E+2*jj+1}, v{j}, s{sHI}, v{vM}")
            for jj in range(4):
                j = XR + 4*i + jj
                acc = Q2 + 2*(jj & 1)
                g(f"v_pk_fma_f32 {vr(acc,2)}, {vr(E+2*jj,2)}, {vr(E+2*jj,2)}, {vr(acc,2)}\nv_cvt_pk_bf16_f32 v{j}, v{E+2*jj}, v{E+2*jj+1}")
            g(f"ds_write_b128 v{vXW}, {vr(XR+4*i,4)} offset:{XN + i*128}")
        g(f"v_pk_add_f32 {vr(Q2,2)}, {vr(Q2,2)}, {vr(Q2+2,2)}\nv_add_f32 v{a0}, v{Q2}, v{Q2+1}")
        dpp_reduce(a0)
        g(f"""
        v_mul_f32 v{a0}, 0x3b000000, v{a0}
        v_fma_f32 v{a0}, -v{vD}, v{vD}, v{a0}
        v_max_f32 v{a0}, 0, v{a0}
        v_cvt_pk_bf16_f32 v{a0}, v{a0}, v{a0}
        v_and_b32 v{a0}, 0xffff0000, v{a0}
        v_add_f32 v{a0}, 0x3727c5ac, v{a0}
        v_cvt_pk_bf16_f32 v{a0}, v{a0}, v{a0}
        v_and_b32 v{a0}, 0xffff0000, v{a0}
        v_sqrt_f32 v{a0}, v{a0}
        v_lshlrev_b32 v{E}, 2, v{vROW}
        v_cvt_pk_bf16_f32 v{a0}, v{a0}, v{a0}
        v_and_b32 v{a0}, 0xffff0000, v{a0}
        v_rcp_f32 v{a1}, v{a0}
        v_add_u32 v{E}, {RARR}, v{E}
        ds_write_b32 v{E}, v{a1}
        """)
        g.ts(2)
    lB, lJ = g.label("LB"), g.label("LJ")
    g(f"s_cmp_ge_u32 s{sWV}, 2\ns_cbranch_scc1 {lB}")
    AW, AQ = 64, 72
    g(f"s_mul_i32 s{sT1}, s{sHG}, 448\ns_movk_i32 s{sT2}, 2341")
    for i in range(7):
        g(f"""
        v_add_u32 v16, {64*i}, v{vL}
        v_mul_lo_u32 v17, v16, s{sT2}
        v_lshrrev_b32 v17, 16, v17
        v_mul_u32_u24 v21, 28, v17
        v_sub_u32 v16, v16, v21
        v_mul_u32_u24 v17, 3584, v17
        v_lshl_add_u32 v16, v16, 4, v17
        s_sub_u32 s{sT3}, s{sT1}, {(i%4)*1024}
        v_add_u32 v{AW+i}, s{sT3}, v16
        """)
    for w in range(8):
        g(f"v_add_u32 v{AQ+w}, {w*8192 - (w%4)*1024}, v{vWQ}\nv_add_u32 v{AQ+8+w}, {w*8192 - (w%4)*1024}, v{vWQ2}")
    g(f"""
    v_lshlrev_b32 v96, 2, v{vKR}
    v_add_u32 v96, {RARR}, v96
    v_lshrrev_b32 v19, 4, v{vL}
    v_lshrrev_b32 v21, 1, v19
    v_lshlrev_b32 v97, 2, v21
    v_xor_b32 v97, s{sHG}, v97
    v_and_b32 v98, 15, v{vL}
    v_lshlrev_b32 v98, 4, v98
    v_lshl_add_u32 v98, v97, 9, v98
    v_and_b32 v28, 1, v19
    v_lshl_add_u32 v98, v28, 3, v98
    v_lshlrev_b32 v97, 5, v97
    v_lshl_add_u32 v97, v28, 4, v97
    v_add_u32 v97, {RARR}, v97
    s_lshr_b32 s{sT1}, s{sHG}, 1
    v_xor_b32 v99, s{sT1}, v19
    v_and_b32 v99, 1, v99
    v_lshlrev_b32 v99, 7, v99
    v_lshl_add_u32 v99, v21, 3, v99
    v_lshrrev_b32 v21, 3, v{vKR}
    v_lshl_add_u32 v99, v21, 9, v99
    v_and_b32 v21, 7, v{vL}
    v_lshl_add_u32 v99, v21, 4, v99
    """)
    layernorm(0)
    NE = -opt.SENT_LATE
    lw0, lk, lv, lsp, lgo = g.label("KW"), g.label("KV"), g.label("KV"), g.label("KS"), g.label("KG")
    g(f"""
    v_mov_b32 v22, {SYNC}
    s_cmp_eq_u32 s{sWV}, 0
    s_cbranch_scc1 {lw0}
    v_mov_b32 v23, 1
    s_waitcnt vmcnt({1 + NE}) lgkmcnt(0)
    ds_write_b32 v22, v23
    """)
    if opt.TSW1: g.ts(12)
    for i in range(8):
        g(f"s_add_u32 s{sT0}, s{sR}, {i}\ns_and_b32 s{sT0}, s{sT0}, 7\ns_lshl_b32 s{sT0}, s{sT0}, 16")
        for w in range(8):
            if w % 4 == 0: g(f"s_mov_b32 m0, {WQ + (w + 8*i)*1024}\ns_nop 0")
            g(f"buffer_load_dwordx4 v{AQ + 8*((i >> 1) & 1) + w}, {srd(SWQ)}, s{sT0} offen offset:{(w%4)*1024} lds")
    if opt.TSW1: g.ts(10)
    LSP2, LGO2 = g.label("KS"), g.label("KG")
    for c in range(2):
        if c == 1:
            g(f"""
            s_mov_b32 s{sCNT}, 0
            {LSP2}:
            ds_read_b32 v23, v22
            s_add_u32 s{sCNT}, s{sCNT}, 1
            s_waitcnt lgkmcnt(0)
            v_readfirstlane_b32 s{sT1}, v23
            s_cmp_gt_u32 s{sCNT}, {opt.SPIN}
            s_cbranch_scc1 {LGO2}
            s_cmp_eq_u32 s{sT1}, 1
            s_cbranch_scc1 {LSP2}
            {LGO2}:
            """)
        for hf in range(2):
            g(f"s_add_u32 s{sT3}, s{sK}, {(32*c + 16*hf)*3584}")
            for m in range(7):
                if m % 4 == 0: g(f"s_mov_b32 m0, {S1[c] + (7*hf + m)*1024}\ns_nop 0")
                g(f"buffer_load_dwordx4 v{AW+m}, {srd(SW1)}, s{sT3} offen offset:{(m%4)*1024} lds")
    if opt.TSW1: g.ts(11)
    g(f"""
    s_waitcnt vmcnt(28)
    s_branch {lk}
    {lw0}:
    {"s_setprio 3" if opt.KVPRIO else ""}
    s_lshl_b32 s{sT0}, s{sTB}, 12
    s_add_u32 s{sT0}, s{sT0}, {WS_KV}
    s_mov_b32 s{sCNT}, 0
    s_waitcnt vmcnt({1 + NE})
    """)
    for s in range(8):
        for q in range(2): g(f"ds_read_b64_tr_b16 {vr(WK+4*s+2*q,2)}, v{vKA} offset:{s*1024+q*128}")
    g(f"""
    {lsp}:
    ds_read_b32 v23, v22
    s_add_u32 s{sCNT}, s{sCNT}, 1
    s_waitcnt lgkmcnt(0)
    v_readfirstlane_b32 s{sT1}, v23
    s_cmp_gt_u32 s{sCNT}, {opt.SPIN}
    s_cbranch_scc1 {lgo}
    s_cmp_eq_u32 s{sT1}, 0
    s_cbranch_scc1 {lsp}
    {lgo}:
    """)
    for s in range(7): g(f"ds_read_b128 {vr(KB+4*s,4)}, v{vKB} offset:{XN + s*64}")
    g(f"s_bitcmp0_b32 s{sHG}, 2\ns_cbranch_scc0 {lv}")
    for role in range(2):
        q = []
        for s in range(7, 16):
            if s >= 8: q.append([f"ds_read_b64_tr_b16 {vr(WK+4*s+2*u,2)}, v{vKA} offset:{s*1024+u*128}" for u in range(2)] + [f"ds_read_b128 {vr(KB+4*(s%8),4)}, v{vKB} offset:{XN + s*64}"])
            else: q.append([f"ds_read_b128 {vr(KB+4*s,4)}, v{vKB} offset:{XN + s*64}"])
        issued = [("b", s) for s in range(7)]
        for s in range(16):
            idx = max(i for i, x in enumerate(issued) if x == ("b", s))
            g(f"s_waitcnt lgkmcnt({min(15, len(issued) - 1 - idx)})")
            g(mfma16(KD, WK+4*s, KB+4*(s%8), KD if s else "0") if role == 0 else mfma16(KD, KB+4*(s%8), WK+4*s, KD if s else "0"))
            k = s + 7
            if k < 16 and (k < 8 or k - 8 <= s):
                for x in q[k-7]: g(x); issued.append(("b", k))
            if s == 9: g(f"ds_read_b32 v24, v96" if role == 0 else f"ds_read_b128 v[24:27], v97"); issued.append("r")
        g("v_mov_b32 v23, 2\ns_waitcnt lgkmcnt(0)\nds_write_b32 v22, v23\ns_nop 4")
        for k in range(4): g(f"v_mul_f32 v{KD+k}, v{KD+k}, v{24 if role == 0 else 24+k}")
        g(f"v_cvt_pk_bf16_f32 v{KD}, v{KD}, v{KD+1}\nv_cvt_pk_bf16_f32 v{KD+1}, v{KD+2}, v{KD+3}")
        if role == 0: g(f"buffer_store_dwordx2 {vr(KD,2)}, v99, {srd(SWS)}, s{sT0} offen sc1\ns_branch {lk}\n{lv}:")
        else: g(f"buffer_store_dwordx2 {vr(KD,2)}, v98, {srd(SWS)}, s{sT0} offen offset:256 sc1")
    g(f"{lk}:")
    if opt.KVPRIO: g("s_setprio 0")
    g.ts(4)
    kmark = len(g.vm)
    if opt.KVFLAG_Q < 0:
        sk = g.label("KF")
        g(f"s_cmp_lg_u32 s{sWV}, 0\ns_cbranch_scc1 {sk}\ns_waitcnt vmcnt({len(g.vm) - kmark}) lgkmcnt(0)\ns_mul_i32 s{sT1}, s{sTAG}, 0x9e3779b1\ns_add_u32 s{sT1}, s{sT1}, 0x7f4a7c15")
        g(f"""
        s_lshl3_add_u32 s{sT0}, s{sTB}, s{sHG}
        s_lshl_b32 s{sT0}, s{sT0}, 4
        s_add_u32 s{sT0}, s{sT0}, {WS_FKV}
        v_mov_b32 v31, s{sT1}
        s_mov_b64 exec, 1
        buffer_store_dword v31, off, {srd(SWS)}, s{sT0} sc1
        s_mov_b64 exec, -1
        {sk}:
        """)
    g.ts(5)
    vmA = list(g.vm); g.vm = []
    g(f"s_branch {lJ}\n{lB}:")
    layernorm(1)
    assert vmA == g.vm
    g(f"""
    {lJ}:
    s_lshl_b32 s{sT0}, s{sTH}, 7
    s_add_u32 s{sT0}, s{sT0}, {RARR}
    v_and_b32 v16, 31, v{vL}
    v_lshl_add_u32 v16, v16, 2, s{sT0}
    v_and_b32 v18, 15, v{vL}
    v_lshl_add_u32 v17, v18, 2, s{sT0}
    s_mov_b32 s{SOUT}, s20
    s_mov_b32 s{SOUT+1}, s21
    s_mov_b32 s{SOUT+2}, 0x200000
    """)
    g(f"s_add_u32 s{sT0}, s{sK}, {64*3584}\ns_sub_u32 s{sK}, s{sT0}, s{SW1+2}\ns_cselect_b32 s{sK}, s{sT0}, s{sK}\ns_waitcnt lgkmcnt(0)")
    g.vm += [("w1", 0), ("w1", 0), ("w1", 1), ("w1", 1)]
    g(f"s_mul_i32 s{sTAG}, s{sTAG}, 0x9e3779b1\ns_add_u32 s{sTAG}, s{sTAG}, 0x7f4a7c15\ns_barrier")
    g.ts(3)
    g(f"ds_read_b32 v{vRT}, v16\nds_read_b32 v{vRT+1}, v16\nds_read_b32 v14, v17\nds_read_b32 v15, v17 offset:64")
    def flag_store(base):
        g(f"""
        s_lshl3_add_u32 s{sT0}, s{sTB}, s{sHG}
        s_lshl_b32 s{sT0}, s{sT0}, 4
        s_add_u32 s{sT0}, s{sT0}, {base}
        v_mov_b32 v31, s{sTAG}
        s_mov_b64 exec, 1
        buffer_store_dword v31, off, {srd(SWS)}, s{sT0} sc1
        s_mov_b64 exec, -1
        """)
    def check_or_spin(loads, regs):
        done, lab = g.label("PD"), g.label("PL")
        g(f"s_mov_b32 s{sCNT}, 0\n{lab}:")
        for r in regs: g(f"v_xor_b32 v{r}, s{sTAG}, v{r}")
        for r in regs[1:]: g(f"v_or_b32 v{regs[0]}, v{regs[0]}, v{r}")
        g(f"""
        v_cmp_ne_u32 vcc, 0, v{regs[0]}
        s_nop 4
        s_cbranch_vccz {done}
        s_add_u32 s{sCNT}, s{sCNT}, 1
        s_cmp_gt_u32 s{sCNT}, {opt.SPIN}
        s_cbranch_scc1 {done}
        s_sleep 8
        """)
        for s in loads: g(s)
        g(f"s_waitcnt vmcnt(0)\ns_branch {lab}\n{done}:")
    kvpoll = [f"buffer_load_dword v{20+k}, v{vL16}, {srd(SWS)}, s{sT1} offen offset:{k*1024} sc1" for k in range(4)]
    QA, QBf, D0 = 64, 80, 232
    def q_reads(s):
        return [f"ds_read_b64_tr_b16 {vr(QA+4*(s%4)+2*q,2)}, v{vQAa} offset:{s*1024+q*512}" for q in range(2)] + \
               [f"ds_read_b128 {vr(QBf+8*(s%4)+4*u,4)}, v{vQB} offset:{XN + u*16*XPITCH + s*16}" for u in range(2)]
    def kv_dma(c):
        g(f"s_add_u32 m0, s{sKVL}, {KVS[c%4]}\ns_add_u32 s{sT0}, s{sKVS}, {c*8192}")
        g.vmop(f"buffer_load_dwordx4 v{vL16}, {srd(SWS)}, s{sT0} offen sc1 lds", ("kv", c))
    def poll_issue():
        sk = g.label("KP")
        g(f"s_cmp_lg_u32 s{sWV}, 7\ns_cbranch_scc1 {sk}\ns_mov_b32 s{sT1}, {WS_FKV}")
        for x in kvpoll: g(x)
        g(f"{sk}:")
        poll_mark[0] = len(g.vm)
    poll_mark = [0]
    if opt.KVPOLL_Q < 0: poll_issue()
    for s in range(3):
        for x in q_reads(s): g(x)
    for s in range(16):
        if s == opt.QMID:
            sk = g.label("KC")
            g(f"s_cmp_lg_u32 s{sWV}, 7\ns_cbranch_scc1 {sk}\ns_waitcnt vmcnt(0)")
            check_or_spin(kvpoll, list(range(20, 24)))
            g(f"{sk}:\ns_barrier")
            kv_dma(0); kv_dma(1)
        g(f"s_waitcnt lgkmcnt({4*min(2, 15-s)})")
        rd = q_reads(s+3) if s + 3 < 16 else []
        for u in range(2):
            g(mfma16(D0+4*u, QA+4*(s%4), QBf+8*(s%4)+4*u, D0+4*u if s else "0"))
            for x in rd[2*u:2*u+2]: g(x)
        if s < 4:
            for r in range(4): g(f"v_mov_b32 v{vO+4*s+r}, 0")
        if s == 4: g(f"v_and_b32 v30, 27, v{vL}\nv_cmp_eq_u32 vcc, 16, v30\nv_mov_b32 v30, s{sONE2}\ns_nop 0\nv_cndmask_b32 v30, 0, v30, vcc")
        if 5 <= s < 8:
            for r in range(4): g(f"v_mov_b32 v{vV0+4*(s-5)+r}, v30")
        if s == opt.KVFLAG_Q:
            sk = g.label("KF")
            assert s < 9
            g(f"s_cmp_lg_u32 s{sWV}, 0\ns_cbranch_scc1 {sk}\ns_waitcnt vmcnt(0)")
            flag_store(WS_FKV)
            g(f"{sk}:")
        if s == opt.KVPOLL_Q: poll_issue()
        if opt.SENT_LATE and s == 9:
            for r in range(4): g(f"v_mov_b32 v{24+r}, -1")
            g.vmop(f"buffer_store_dwordx4 v[24:27], v{vL16}, {srd(SWS)}, s{sOS} offen sc1", "sent")
    cb = fb(0.25 * 1.4426950408889634)
    g(f"v_mul_f32 v14, {cb:#x}, v14\nv_mul_f32 v15, {cb:#x}, v15\ns_nop 5")
    for u in range(2):
        for r in range(4): g(f"v_mul_f32 v{D0+4*u+r}, v{D0+4*u+r}, v{14+u}")
    for u in range(2):
        for r in range(2): g(f"v_cvt_pk_bf16_f32 v{vQ+2*u+r}, v{D0+4*u+2*r}, v{D0+4*u+2*r+1}")
    g("s_nop 1")
    for r in range(2): g(f"v_permlane16_swap_b32 v{vQ+r}, v{vQ+2+r}")
    g("s_nop 0")
    for r in range(2): g(f"v_permlane32_swap_b32 v{vQ+r}, v{vQ+2+r}")
    g.ts(6)
    def f1_reads(kappa, fb_, fa):
        c, ks = kappa // 2, kappa % 2
        o = S1[c % 4] - W1BASE + ks*7168
        return [[f"ds_read_b64_tr_b16 {vr(fa+2*q,2)}, v{vA1} offset:{o + q*1792}" for q in range(2)],
                [f"ds_read_b64_tr_b16 {vr(fa+4+2*q,2)}, v{vA1b} offset:{o + q*1792}" for q in range(2)] + [f"ds_read_b128 {vr(fb_,4)}, v{vB} offset:{XN + kappa*32}"]]
    PF = lambda kappa: 164 + 12*(kappa % 4)
    assert opt.QMID >= 8 and (NPRE == 0 or opt.F1_START == 0)
    if NPRE:
        sk = g.label("W0")
        g(f"s_cmp_lg_u32 s{sWV}, 1\ns_cbranch_scc1 {sk}\ns_waitcnt vmcnt({14 + opt.SENT_LATE})\n{sk}:")
    else: g.vmwait(("kv", 1))
    g("s_barrier")
    g.ts(7)
    nkv = 0
    if opt.QMID < 16: kv_dma(2); nkv = 3
    for c in (2, 3): w1_dma(c, 0); w1_dma(c, 1)
    if NPRE:
        for kappa in range(2):
            for grp in f1_reads(kappa, PF(kappa), PF(kappa)+4):
                for x in grp: g(x)
    def kread(t, dst): return f"ds_read_b128 {vr(dst,4)}, v{vKA2} offset:{KVS[(t//4)%4] + (t%4)*2048}"
    def vread(t, u, dst): return f"ds_read_b128 {vr(dst,4)}, v{vVA} offset:{KVS[(t//4)%4] + (t%4)*2048 + u*1024}"
    def v01(t):
        g(f"s_mov_b64 exec, s[{sVM}:{sVM+1}]"); g(vread(t, 0, vV0)); g(vread(t, 1, vV1[t & 1])); g("s_mov_b64 exec, -1")
    vMX = 28
    def maxtree(first, n=32):
        regs = list(range(vS[0], vS[0]+n))
        if first: g(f"v_max3_f32 v{vMX}, v{regs[0]}, v{regs[1]}, v{regs[2]}\nv_max_f32 v{vMX}, v{vMX}, v{regs[3]}"); regs = regs[4:]
        for k in range(0, len(regs), 2): g(f"v_max3_f32 v{vMX}, v{vMX}, v{regs[k]}, v{regs[k+1]}")
    def finish_m(bias):
        g(f"""
        v_mov_b32 v31, v{vMX}
        s_nop 1
        v_permlane32_swap_b32 v31, v{vMX}
        s_nop 1
        v_max_f32 v{vMX}, v{vMX}, v31
        v_add_f32 v{vMX}, {fb(bias):#x}, v{vMX}
        v_xor_b32 v{vC}, 0x80000000, v{vMX}
        """)
        for r in range(1, 16): g(f"v_mov_b32 v{vC+r}, v{vC}")
    PIN = opt.PROLOG_IN and NPRE >= 2
    for j in range(NPRE):
        if j + 1 < NPRE: g.vmwait(("w1", j+1), extra="lgkmcnt(0)")
        elif PIN: g.vmwait(("kv", 1), ("w1", NPRE + 1), extra="lgkmcnt(0)")
        else: g("s_waitcnt lgkmcnt(0)")
        if opt.QMID >= 16 and j == opt.KVCHECK_AT:
            sk = g.label("KC")
            g(f"s_cmp_lg_u32 s{sWV}, 7\ns_cbranch_scc1 {sk}\ns_waitcnt vmcnt({len(g.vm) - poll_mark[0]})")
            check_or_spin(kvpoll, list(range(20, 24)))
            g(f"{sk}:")
        g("s_barrier")
        if j in opt.TSP: g.ts(4 + opt.TSP.index(j))
        if opt.QMID >= 16 and j == opt.KVPOLL_PRE: poll_issue()
        rd = []
        if j + 1 < NPRE:
            for kappa in (2*j+2, 2*j+3):
                for grp in f1_reads(kappa, PF(kappa), PF(kappa)+4): rd += grp
        jobs = []
        if opt.QMID >= 16 and j >= opt.KVCHECK_AT:
            for _ in range(2 if (PIN and nkv == 0) else (3 - nkv + (NPRE - j) - 1) // (NPRE - j)):
                if nkv < 3: jobs.append(lambda c=nkv: kv_dma(c)); nkv += 1
        jobs += [lambda: w1_dma(j+4, 0), lambda: w1_dma(j+4, 1)]
        n = 0
        last = PIN and j == NPRE - 1
        if last:
            g(kread(0, vK)); g(kread(1, vK1)); v01(0)
        for kappa in (2*j, 2*j+1):
            for T in range(2):
                g(mfma(FACC+16*T, PF(kappa)+4+4*T, PF(kappa), FACC+16*T if kappa else "0"))
                if last and n == 0:
                    g("s_waitcnt lgkmcnt(2)"); g(mfma(vS[0], vK, vQ, "0")); g(mfma(vS[1], vK1, vQ, "0"))
                if last and n == 2:
                    g("s_nop 7\ns_nop 1"); maxtree(True)
                if last and n == 3:
                    finish_m(opt.BIAS)
                if n < 3:
                    for x in rd[n*len(rd)//3:(n+1)*len(rd)//3]: g(x)
                for jb in jobs[n*len(jobs)//4:(n+1)*len(jobs)//4]: jb()
                n += 1
    if opt.F1_START == 0 and not PIN:
        g.vmwait(("w1", NPRE + 1), ("kv", 1))
        g("s_barrier")
    g.ts(8)
    if opt.HROT:
        for u in range(4):
            g(f"""
            s_add_u32 s{sT0}, s{sHG}, {u}
            s_and_b32 s{sT0}, s{sT0}, 3
            s_sub_u32 s{sT0}, s{sT0}, {u}
            s_mul_i32 s{sT1}, s{sT0}, {7*16384}
            s_add_u32 s{sROT+u}, s{sT1}, s{sW2S}
            s_mul_i32 s{sT1}, s{sT0}, {7*1024}
            s_add_u32 s{sROT+4+u}, s{sT1}, s{sHB}
            """)
    g(f"s_cmp_lt_u32 s{sKQ}, 3\ns_cselect_b64 vcc, -1, 0")
    if not PIN:
        g(kread(0, vK)); g(kread(1, vK1))
        v01(0)
        g("s_waitcnt lgkmcnt(2)")
        g(mfma(vS[0], vK, vQ, "0")); g(mfma(vS[1], vK1, vQ, "0"))
        g("s_nop 7\ns_nop 2")
        maxtree(True)
        finish_m(opt.BIAS)
    g("s_nop 1")
    g(mfma(vS[0], vK, vQ, vC))
    g(kread(1, vK))
    g("s_nop 7\ns_nop 2")
    def w2_dma(step, slot):
        g(f"s_add_u32 m0, s{sW2B}, {T2[slot]}")
        if step < 28:
            if opt.HROT: g(f"s_add_u32 s{sT0}, s{sROT + step//7}, {step*16384}")
            else: g(f"s_add_u32 s{sT0}, s{sW2S}, {step*16384}")
            S = SW2
        else:
            g(f"s_lshl_b32 s{sT0}, s{sKQ}, 17\ns_add_u32 s{sT0}, s{sT0}, {(step-28)*16384}"); S = SWO
        g.vmop(f"buffer_load_dwordx4 v{vW2}, {srd(S)}, s{sT0} offen lds", ("w2", step))
    slot_of = {}
    def lds_base(off):
        return (0, off) if off < XN_END else ((1, off - XN_END) if off < W1BASE else (2, off - W1BASE))
    def a_reads(step, fa):
        b, o = lds_base(T2[slot_of[step]])
        return [[f"ds_read_b64_tr_b16 {vr(fa+4*n+2*q,2)}, v{vG0+b} offset:{o + n*1024 + q*512}" for q in range(2)] for n in range(2)]
    HR = lambda i: HB + 4*(i % opt.NH)
    def h_load(i):
        if i == 28: g(f"s_lshl_b32 s{sHB}, s{sKQ}, 13\ns_add_u32 s{sHB}, s{sHB}, s{sOB}")
        elif opt.HROT:
            if i % 7 in (0, 4): g(f"s_add_u32 s{sHB}, s{sROT + 4 + i//7}, {i*1024}")
            g.vmop(f"buffer_load_dwordx4 {vr(HR(i),4)}, v{vL16}, {srd(SWS)}, s{sHB} offen offset:{(i%7%4)*1024} sc1", ("h", i))
            return
        elif i and i % 4 == 0: g(f"s_add_u32 s{sHB}, s{sHB}, 4096")
        g.vmop(f"buffer_load_dwordx4 {vr(HR(i),4)}, v{vL16}, {srd(SWS)}, s{sHB} offen offset:{(i%4)*1024} sc1", ("h", i))
    hpoll = [f"buffer_load_dword v29, v30, {srd(SWS)}, s{sT1} offen sc1"]
    def pair_flag_addr(base):
        g(f"""
        s_lshl2_add_u32 s{sT1}, s{sTB}, s{sKQ}
        s_lshl_b32 s{sT1}, s{sT1}, 5
        s_add_u32 s{sT1}, s{sT1}, {base}
        v_and_b32 v30, 16, v{vL16}
        """)
    def touch3():
        a, b = g.label("T3"), g.label("T3")
        g(f"""
        s_lshr_b32 s{sT0}, s{sHG}, 2
        s_lshl_b32 s{sT0}, s{sT0}, 9
        s_cmp_eq_u32 s{sWV}, 7
        s_cbranch_scc1 {a}
        s_lshl_b32 s{sT1}, s{sWV}, 5
        s_add_u32 s{sT1}, s{sT1}, s{sJ}
        s_lshl_b32 s{sT1}, s{sT1}, 13
        s_add_u32 s{sT0}, s{sT0}, s{sT1}
        s_mov_b32 exec_hi, 0
        buffer_load_dword v{vJ}, v{vT3}, {srd(SW2)}, s{sT0} offen
        s_mov_b64 exec, -1
        s_branch {b}
        {a}:
        s_lshl_b32 s{sT1}, s{sJ}, 14
        s_add_u32 s{sT0}, s{sT0}, s{sT1}
        buffer_load_dword v{vJ}, v{vT3}, {srd(SWO)}, s{sT0} offen
        {b}:
        """)
        g.vm.append("touch")
    F1 = opt.F1_START; assert F1 % 4 == 0
    R1 = F1 + 32 - 2*NPRE
    F2 = opt.F2_START; NF2 = opt.NF2
    assert F2 + NF2 <= 64
    freeslots = []; nxt_w2 = 0; nxt_h = 0
    w2_open = False
    prevx = 0
    p2, pm, p1 = opt.P
    for t in range(64):
        c = t // 4
        S = vS[t & 1]; Sn = vS[(t+1) & 1]
        ex = lambda k: f"v_exp_f32 v{S+k}, v{S+k}"
        top = (t % 4 == 0 and t > 0)
        xm = [None, None]; xr = [[], []]
        if F1 + 1 <= t <= R1:
            xm = [mfma(FACC+16*T, FA+4*T, FB, FACC+16*T if (NPRE or t > F1 + 1) else "0") for T in range(2)]
        if F1 <= t < R1: xr = f1_reads(2*NPRE + t - F1, FB, FA)
        st = t - F2
        if 0 <= st < NF2:
            xm = [mfma(FACC+16*n, FA+4*n, HR(st), FACC+16*n if st else "0") for n in range(2)]
        rd_step = st + 1 if -1 <= st < NF2 - 1 else None
        jobs = []
        if t % 4 == 0 and c + 3 < 16: jobs.append(lambda: kv_dma(c + 3))
        cf = c - F1//4
        pc = NPRE + 2*(cf + 1)
        if cf >= 1 and pc < 16 and t % 4 < 2:
            jobs += [lambda: w1_dma(pc + t % 4, 0), lambda: w1_dma(pc + t % 4, 1)]
        if opt.TOUCH3 and t == opt.T3_T: jobs.append(touch3)
        if t == opt.HPOLL_T: jobs.append(lambda: (pair_flag_addr(WS_FH), g.vmop(hpoll[0], "hpoll")))
        hjobs = []
        nh = 0
        if t > opt.HCHECK_T:
            while nxt_h < 28 and nh < (2 if nxt_h < st + opt.HLEAD else 1) and nxt_h - opt.NH < st - 1:
                hjobs.append(lambda i=nxt_h: h_load(i)); nxt_h += 1; nh += 1
        def slot(name):
            sd = sorted(opt.SLOT_D[min(i, len(opt.SLOT_D)-1)] for i in range(len(jobs)))
            for i, jb in enumerate(jobs):
                if sd[i] == name: jb()
            sh = sorted(opt.SLOT_H[min(i, len(opt.SLOT_H)-1)] for i in range(len(hjobs)))
            for i, jb in enumerate(hjobs):
                if sh[i] == name: jb()
        for k in range(0, p2): g(ex(k))
        if t > 0: g(smf(vO, vV1[(t-1) & 1], vS[(t-1) & 1] + 8, vIDX))
        if top:
            need = []
            if c + 1 < 16: need.append(("kv", c+1))
            if 0 <= cf and NPRE + 2*cf + 1 < 16: need.append(("w1", NPRE + 2*cf + 1))
            for s_ in range(4*c - F2 + 1, 4*c - F2 + 5):
                if 0 <= s_ < NF2: need.append(("w2", s_))
            if t == opt.HFLAG_T: need.append("hst")
            if c == 15: need += [("w2", s_) for s_ in range(NF2, 36 if opt.KVFREE else min(28, NF2 + opt.NTAILPRE)) if ("w2", s_) in g.vm]
            if need: g.vmwait(*need, extra="lgkmcnt(0)")
            else: g("s_waitcnt lgkmcnt(0)")
            g("s_barrier")
            g.vis = g.done
            if c < 14: g.ts(c, True)
            if t == opt.HFLAG_T:
                sk = g.label("HF")
                g(f"s_cmp_lg_u32 s{sWV}, 0\ns_cbranch_scc1 {sk}")
                flag_store(WS_FH)
                g(f"{sk}:")
            if not w2_open and t >= R1:
                w2_open = True; freeslots += list(range(NRES))
            for s_ in range(4*(c-1) - F2 + 1, 4*(c-1) - F2 + 5):
                if 0 <= s_ < NF2: freeslots.append(slot_of[s_])
            if opt.KVFREE and c >= 13: freeslots.append(NRES + KVS[(c-1) % 4]//8192)
            g(f"s_setprio {3 - t % 4}")
        else:
            g(f"s_setprio {3 - t % 4}\ns_waitcnt lgkmcnt({prevx if opt.LGC else 0})")
        for _ in range(2 if (opt.KVFREE and t >= 52 and len(freeslots) > 3 - t % 4 + 1) else 1):
            if freeslots and nxt_w2 < opt.W2_LIM and len(jobs) < 2 and t >= opt.W2_T0 and not (opt.KVFREE and t >= 60):
                slot_of[nxt_w2] = freeslots.pop(0)
                jobs.append(lambda s_=nxt_w2: w2_dma(s_, slot_of[s_])); nxt_w2 += 1
        if rd_step is not None: xr = a_reads(rd_step, FA)
        slot('A')
        for k in range(p2, pm): g(ex(k))
        if t + 1 < 64: g(mfma(Sn, vK, vQ, vC))
        if t + 2 < 64: g(kread(t+2, vK))
        slot('B')
        for k in range(pm, p1): g(ex(k))
        g(smf(vO, vV0, S, vIDX))
        if t + 1 < 64: v01(t+1)
        slot('C')
        if t == opt.HCHECK_T:
            g.vmwait("hpoll")
            check_or_spin(hpoll, [29])
        for k in range(p1, opt.XP[0]): g(ex(k))
        lw = f"lgkmcnt({(1 if t + 2 < 64 else 0) + (2 if t + 1 < 64 else 0)})" if (opt.LGC and prevx and not top) else ""
        if 0 <= st < NF2: g.vmwait(("h", st), extra=lw)
        elif lw: g(f"s_waitcnt {lw}")
        if xm[0]: g(xm[0])
        prevx = len(xr[0]) + len(xr[1]) - (2 if (opt.SKIPDUP and F1 <= t < R1) else 0)
        for x in xr[0]: g(x)
        slot('X')
        for k in range(opt.XP[0], opt.XP[1]): g(ex(k))
        if opt.SKIPDUP and F1 <= t <= R1:
            sk = g.label("SD")
            g(f"s_cbranch_vccz {sk}")
            if xm[1]: g(xm[1])
            for x in xr[1][:2]: g(x)
            g(f"{sk}:")
            for x in xr[1][2:]: g(x)
        else:
            if xm[1]: g(xm[1])
            for x in xr[1]: g(x)
        slot('Y')
        for k in range(opt.XP[1], 16): g(ex(k))
        for T in range(2):
            a = FACC + 16*T
            if t == R1 + opt.HEP[T]:
                if not opt.RLATE:
                    for k in range(8): g(f"v_pk_mul_f32 {vr(a+2*k,2)}, {vr(a+2*k,2)}, {vr(vRT,2)}")
                for k in range(8): g(f"v_cvt_pk_bf16_f32 v{a+k}, v{a+2*k}, v{a+2*k+1}")
                for k in range(8): g(f"v_pk_max_i16 v{a+k}, v{a+k}, 0")
            for u in range(2):
                if t == R1 + opt.HST[2*T+u]:
                    g.vmop(f"buffer_store_dwordx4 {vr(a+4*u,4)}, v{vL16}, {srd(SWS)}, s{sHS+T} offen offset:{(2*T+u)*1024} sc1", "hst")
    XRES = 24
    g.vmop(f"buffer_load_dwordx4 {vr(XRES,4)}, v{vXO}, {srd(SX)}, s{sXO} offen", "xres")
    g("s_nop 0")
    g(smf(vO, vV1[1], vS[1] + 8, vIDX))
    g.ts(9)
    FBK, ONORM = g.label("FBK"), g.label("ON")
    while nxt_h < 28: h_load(nxt_h); nxt_h += 1
    g(f"""
    s_nop 2
    v_mov_b32 v30, {fb(2.0**115):#x}
    v_mov_b32 v31, {fb(2.0**126):#x}
    s_nop 6
    v_add_f32 v28, |v{vO}|, |v{vO+1}|
    """)
    for k in range(2, 8): g(f"v_add_f32 v28, v28, |v{vO+k}|")
    g(f"""
    v_cmp_lt_f32 vcc, v{vO+8}, v30
    v_cmp_lt_f32 s[{sT0}:{sT1}], v28, v31
    v_mov_b32 v30, {fb(2.0**-106):#x}
    v_cmp_gt_f32 s[{sT2}:{sT3}], v28, v30
    s_nop 3
    s_and_b64 vcc, vcc, s[{sT0}:{sT1}]
    s_and_b64 vcc, vcc, s[{sT2}:{sT3}]
    s_cmp_eq_u64 vcc, {0 if opt.X_FB else -1}
    s_cbranch_scc0 {FBK}
    {ONORM}:
    v_rcp_f32 v29, v{vO+8}
    s_nop 0
    """)
    for k in range(8): g(f"v_mul_f32 v{vO+k}, v{vO+k}, v29")
    for k in range(4): g(f"v_cvt_pk_bf16_f32 v{vO+k}, v{vO+2*k}, v{vO+2*k+1}")
    g.vmop(f"buffer_store_dwordx4 {vr(vO,4)}, v{vL16}, {srd(SWS)}, s{sOS} offen sc1", "ost")
    AF = [80, 88, 96]
    def tail_reads(step): return [x for grp in a_reads(step, AF[step % 3]) for x in grp]
    visible = lambda s_: ("w2", s_) in g.vm and g.vmneed([("w2", s_)]) <= g.vis
    hs = list(range(NF2, 28))
    oregs = [36, 40, 44, 52, 56, 60, 64, 68]
    def o_loads():
        g(f"s_lshl_b32 s{sT2}, s{sKQ}, 13\ns_add_u32 s{sT2}, s{sT2}, s{sOB}\ns_add_u32 s{sT3}, s{sT2}, 4096")
        return [f"buffer_load_dwordx4 {vr(oregs[i],4)}, v{vL16}, {srd(SWS)}, s{sT2 + i//4} offen offset:{(i%4)*1024} sc1" for i in range(8)]
    seq = hs + list(range(28, 36))
    def rd(i):
        assert visible(seq[i]) or (("w2", seq[i]) in g.vm and g.vmneed([("w2", seq[i])]) <= g.vis), ("not visible", seq[i])
        for x in tail_reads(seq[i]): g(x)
    done_steps = set(range(NF2))
    bars = [b for b in opt.TAILBAR if b < len(seq)]
    pend_dma = []
    rd(0); rd(1)
    for i, s_ in enumerate(seq):
        if i in bars:
            nb = min([b for b in bars if b > i] + [len(seq)])
            need = [("w2", seq[k]) for k in range(i + 2, min(nb + 2, len(seq)))]
            need = [x for x in need if x in g.vm]
            if need: g.vmwait(*need)
            g("s_barrier")
            g.vis = g.done
            used = {slot_of[x] for x in slot_of if x not in done_steps}
            fs = [x for x in range(len(T2)) if x not in used]
            while nxt_w2 < 36 and fs:
                slot_of[nxt_w2] = fs.pop(0); pend_dma.append(nxt_w2); nxt_w2 += 1
        if i == min(opt.OLOAD_AT, len(hs)):
            if not opt.TSW1: g.ts(10)
            ol = o_loads()
            for k, x in enumerate(ol): g.vmop(x, ("o", k))
        if i == len(hs):
            if not opt.TSW1: g.ts(11)
            if opt.OSPLIT:
                for u in range(5):
                    for x in a_reads(28 + u, 72 + 4*u)[0]: g(x)
            if opt.RLATE:
                g("s_nop 1")
                for k in range(16): g(f"v_pk_mul_f32 {vr(FACC+2*k,2)}, {vr(FACC+2*k,2)}, {vr(vRT,2)}")
            g.vmwait(("o", 7))
            done, lab = g.label("OD"), g.label("OL")
            g(f"s_mov_b32 s{sCNT}, 0\n{lab}:")
            allr = [r + k for r in oregs for k in range(4)]
            g(f"v_max3_u32 v28, v{allr[0]}, v{allr[1]}, v{allr[2]}\nv_max3_u32 v29, v{allr[3]}, v{allr[4]}, v{allr[5]}")
            for k in range(6, 32, 2): g(f"v_max3_u32 v{28 + (k//2) % 2}, v{28 + (k//2) % 2}, v{allr[k]}, v{allr[k+1]}")
            g(f"""
            v_max_u32 v28, v28, v29
            v_cmp_eq_u32 vcc, -1, v28
            s_nop 4
            s_cbranch_vccz {done}
            s_add_u32 s{sCNT}, s{sCNT}, 1
            s_cmp_gt_u32 s{sCNT}, {opt.SPIN}
            s_cbranch_scc1 {done}
            s_sleep 4
            """)
            for x in ol: g(x)
            g(f"s_waitcnt vmcnt(0)\ns_branch {lab}\n{done}:")
            if not opt.TSW1: g.ts(12)
            if opt.TSCNT: g(f"s_add_u32 s{sTS+1}, s{sTS}, s{sCNT}")
        if opt.OSPLIT and s_ == 28: break
        if i + 2 < len(seq) and not (opt.OSPLIT and seq[i+2] >= 28): rd(i + 2)
        if s_ < 28: g.vmwait(("h", s_))
        g(f"s_waitcnt lgkmcnt({4*min(2, (len(hs) if opt.OSPLIT else len(seq))-1-i)})")
        b = HR(s_) if s_ < 28 else oregs[s_ - 28]
        for n in range(2):
            g(mfma(FACC+16*n, AF[s_ % 3]+4*n, b, FACC+16*n if s_ else "0"))
            for _ in range(2):
                if pend_dma:
                    x = pend_dma.pop(0); w2_dma(x, slot_of[x])
        done_steps.add(s_)
    if not opt.OSPLIT:
        g.ts(13)
        busy = {slot_of[x] for x in seq}
        F = [T2[x] for x in range(len(T2)) if x not in busy][:6]
        if len(F) < 6:
            g('s_barrier'); F = T2[:6]
        g(f"v_add_u32 v28, {XN_END}, v{vRB}\nv_add_u32 v29, {W1BASE}, v{vRB}")
        g.vmwait("xres")
        for k in range(4): g(f"v_lshlrev_b32 v{16+2*k}, 16, v{XRES+k}\nv_and_b32 v{17+2*k}, 0xffff0000, v{XRES+k}")
        rbase = [vRB, 28, 29]
        def blk(gq, src):
            p = gq*3 + (src - gq - 1) % 4
            b, o = lds_base(F[p // 2] + (p % 2)*4096)
            return rbase[b], o
        FIN = g.label("FIN")
        RD, OW = 64, 104
        for kq in range(4):
            nxt = g.label("FK")
            if kq < 3: g(f"s_cmp_lg_u32 s{sKQ}, {kq}\ns_cbranch_scc1 {nxt}")
            else: g("s_nop 1")
            for d in range(1, 4):
                gq = (kq + d) % 4
                v, o = blk(gq, kq)
                for u in range(2): g(f"ds_write_b128 v{v}, {vr(FACC+8*gq+4*u,4)} offset:{o + u*1024}")
            for e in range(8): g(f"v_mov_b32 v{OW+e}, v{FACC+8*kq+e}")
            g("s_waitcnt lgkmcnt(0)\ns_barrier")
            for d in range(1, 4):
                v, o = blk(kq, (kq + d) % 4)
                for u in range(2): g(f"ds_read_b128 {vr(RD+8*(d-1)+4*u,4)}, v{v} offset:{o + u*1024}")
            if kq < 3: g(f"s_branch {FIN}\n{nxt}:")
    else:
        busy = {slot_of[x] for x in range(28, 36)}
        lastbar = max([b for b in bars if b <= len(hs)] + [0])
        busy |= {slot_of[x] for x in seq[lastbar:]}
        if not bars: busy |= {NRES + KVS[3]//8192}
        F = [T2[x] for x in range(len(T2)) if x not in busy][:6]
        assert len(F) == 6 and all(visible(x) for x in range(28, 36))
        rbase = [vRB, 28, 29]
        def blk(gq, src):
            p = gq*3 + (src - gq - 1) % 4
            b, o = lds_base(F[p // 2] + (p % 2)*4096)
            return rbase[b], o
        FIN = g.label("FIN")
        RD, OW = 64, 104
        OA = [72, 76, 80, 84, 88, 92]
        useq = [(n, k) for n in range(2) for k in range(8)]
        def ord_(u):
            n, k = useq[u]
            return a_reads(28 + k, OA[u % 6] - 4*n)[n]
        LA = 5
        g(f"v_add_u32 v28, {XN_END}, v{vRB}\nv_add_u32 v29, {W1BASE}, v{vRB}")
        g.vmwait("xres")
        for k in range(4): g(f"v_lshlrev_b32 v{16+2*k}, 16, v{XRES+k}\nv_and_b32 v{17+2*k}, 0xffff0000, v{XRES+k}")
        def o_mfma(u, extra=0):
            n, k = useq[u]
            g(f"s_waitcnt lgkmcnt({2*min(LA-1, 15-u) + extra})")
            g(mfma(FACC+16*n, OA[u % 6], oregs[k], FACC+16*n))
            if u + LA < 16:
                for x in ord_(u + LA): g(x)
        for u in range(11): o_mfma(u)
        for kq in range(4):
            nxt = g.label("FK")
            if kq < 3: g(f"s_cmp_lg_u32 s{sKQ}, {kq}\ns_cbranch_scc1 {nxt}")
            wr = []
            for gq in (0, 1):
                if gq != kq:
                    v, o = blk(gq, kq)
                    wr += [f"ds_write_b128 v{v}, {vr(FACC+8*gq+4*u,4)} offset:{o + u*1024}" for u in range(2)]
            nw = 0
            for u in range(11, 16):
                o_mfma(u, nw)
                if wr: g(wr.pop(0)); nw += 1
            if kq == 0: g.ts(13)
            g("s_nop 7\ns_nop 3")
            for gq in (2, 3):
                if gq != kq:
                    v, o = blk(gq, kq)
                    for u in range(2): g(f"ds_write_b128 v{v}, {vr(FACC+8*gq+4*u,4)} offset:{o + u*1024}")
            for e in range(8): g(f"v_mov_b32 v{OW+e}, v{FACC+8*kq+e}")
            g("s_waitcnt lgkmcnt(0)\ns_barrier")
            for d in range(1, 4):
                v, o = blk(kq, (kq + d) % 4)
                for u in range(2): g(f"ds_read_b128 {vr(RD+8*(d-1)+4*u,4)}, v{v} offset:{o + u*1024}")
            if kq < 3: g(f"s_branch {FIN}\n{nxt}:")
    g(f"{FIN}:\ns_waitcnt lgkmcnt(4)")
    for e in range(0, 8, 2): g(f"v_pk_add_f32 {vr(OW+e,2)}, {vr(OW+e,2)}, {vr(RD+e,2)}")
    g("s_waitcnt lgkmcnt(2)")
    for e in range(0, 8, 2): g(f"v_pk_add_f32 {vr(OW+e,2)}, {vr(OW+e,2)}, {vr(RD+8+e,2)}")
    g("s_waitcnt lgkmcnt(0)")
    for e in range(0, 8, 2): g(f"v_pk_add_f32 {vr(OW+e,2)}, {vr(OW+e,2)}, {vr(RD+16+e,2)}")
    g("s_nop 1")
    for e in range(4): g(f"v_permlane32_swap_b32 v{OW+e}, v{OW+4+e}")
    g("s_nop 1")
    for e in range(0, 8, 2): g(f"v_pk_add_f32 {vr(OW+e,2)}, {vr(OW+e,2)}, {vr(16+e,2)}")
    if opt.X_EPS:
        for e in range(8): g(f"v_mul_f32 v{OW+e}, {fb(1.0 + opt.X_EPS):#x}, v{OW+e}")
    for k in range(4): g(f"v_cvt_pk_bf16_f32 v{OW+k}, v{OW+2*k}, v{OW+2*k+1}")
    g(f"buffer_store_dwordx4 {vr(OW,4)}, v{vXO}, {srd(SOUT)}, s{sXO} offen {opt.OUTF}")
    sk = g.label("EP")
    g(f"""
    s_or_b32 s{sT0}, s{sTB}, s{sHG}
    s_or_b32 s{sT0}, s{sT0}, s{sWV}
    s_cmp_lg_u32 s{sT0}, 0
    s_cbranch_scc1 {sk}
    v_mov_b32 v29, s{sTAG}
    s_mov_b64 exec, 1
    buffer_store_dword v29, off, {srd(SWS)}, 0 offset:{WS_EPOCH}
    s_mov_b64 exec, -1
    {sk}:
    """)
    if opt.TS:
        g(f"""
        s_lshl_b32 s{sT0}, s2, 3
        s_add_u32 s{sT0}, s{sT0}, s{sWV}
        s_lshl_b32 s{sT0}, s{sT0}, 7
        s_add_u32 s{sT0}, s{sT0}, {WS_TSB}
        s_memtime s[{sT2}:{sT3}]
        s_waitcnt vmcnt(0)
        s_memtime s[{sT4}:{sT5}]
        s_waitcnt lgkmcnt(0)
        s_mov_b32 s{sTS+14}, s{sT2}
        s_mov_b32 s{sTS+15}, s{sT4}
        s_memrealtime s[{sT4}:{sT5}]
        s_waitcnt lgkmcnt(0)
        s_mov_b32 s{sTS+17}, s{sT4}
        """)
        for k in range(18): g(f"v_mov_b32 v{32+k}, s{sTS+k}")
        g("v_mov_b32 v28, 0\ns_mov_b64 exec, 1")
        for k in range(5): g(f"buffer_store_dwordx4 {vr(32+4*k,4)}, v28, {srd(SWS)}, s{sT0} offen offset:{16*k}")
    g("s_endpgm")
    L1, L2 = g.label("FL"), g.label("FL")
    g(f"""
    {FBK}:
    v_subrev_u32 v30, {KVR}, v{vKA2}
    v_subrev_u32 v29, {KVR}, v{vVA}
    s_mov_b32 s{sT2}, {WS_KV}
    v_mov_b32 v{vMX}, 0xff800000
    {L1}:
    buffer_load_dwordx4 {vr(vK,4)}, v30, {srd(SWS)}, s{sT2} offen sc1
    s_waitcnt vmcnt(0)
    """)
    g(mfma(vS[0], vK, vQ, "0"))
    g("s_nop 7\ns_nop 3")
    maxtree(False, 16)
    g(f"s_add_u32 s{sT2}, s{sT2}, 2048\ns_cmp_lt_u32 s{sT2}, {WS_KV + 131072}\ns_cbranch_scc1 {L1}")
    finish_m(0.0)
    for r in range(16): g(f"v_mov_b32 v{vO+r}, 0")
    g(f"""
    s_mov_b32 s{sT2}, {WS_KV}
    {L2}:
    buffer_load_dwordx4 {vr(vK,4)}, v30, {srd(SWS)}, s{sT2} offen sc1
    s_mov_b64 exec, s[{sVM}:{sVM+1}]
    buffer_load_dwordx4 {vr(vV0,4)}, v29, {srd(SWS)}, s{sT2} offen sc1
    buffer_load_dwordx4 {vr(vV1[0],4)}, v29, {srd(SWS)}, s{sT2} offen offset:1024 sc1
    s_mov_b64 exec, -1
    s_waitcnt vmcnt(0)
    """)
    g(mfma(vS[0], vK, vQ, vC))
    g("s_nop 7\ns_nop 3")
    for k in range(16): g(f"v_exp_f32 v{vS[0]+k}, v{vS[0]+k}")
    g("s_nop 1")
    g(smf(vO, vV0, vS[0], vIDX)); g(smf(vO, vV1[0], vS[0]+8, vIDX))
    g(f"s_add_u32 s{sT2}, s{sT2}, 2048\ns_cmp_lt_u32 s{sT2}, {WS_KV + 131072}\ns_cbranch_scc1 {L2}")
    g(f"s_nop 7\ns_nop 3\ns_branch {ONORM}")
    g("L_END:\ns_endpgm")
    body = g.text()
    hdr = open("parallel_sum__grouped_kv_mqa__dense_activation_relu__prompt.s.ref").read().split("; Override launch")[0]
    out = hdr + f"; @launch grid=(256,1,1) block=(512,1,1) lds={LDS_SIZE}\n"
    out += f""".amdgcn_target "amdgcn-amd-amdhsa--gfx950"
.text
.globl {NAME}
.p2align 8
.type {NAME},@function
{NAME}:
""" + body + f""".section .rodata,"a"
.p2align 6
.amdhsa_kernel {NAME}
  .amdhsa_next_free_vgpr 256
  .amdhsa_next_free_sgpr 102
  .amdhsa_accum_offset 256
  .amdhsa_group_segment_fixed_size 0
  .amdhsa_kernarg_size 88
  .amdhsa_user_sgpr_count 2
  .amdhsa_user_sgpr_kernarg_segment_ptr 1
  .amdhsa_system_sgpr_workgroup_id_x 1
.end_amdhsa_kernel
"""
    return out

if __name__ == "__main__":
    outp = sys.argv[1]
    for a in sys.argv[2:]:
        k, v = a.split("=", 1)
        assert hasattr(opt, k), k
        setattr(opt, k, eval(v))
    open(outp, "w").write(build())
```

```python
import sys, struct
NAME = "parallel_sum__grouped_kv_mqa__dense_activation_relu__prompt_kernel"
fb = lambda x: struct.unpack("<I", struct.pack("<f", x))[0]

class Opt:
    TS = False; TSA = False; TSR = False
    BIAS = 100.0
    SPIN = 200000
    NPRE = 6
    KVPOLL_Q = 99
    WQ_AT = (-1, -1, -1, -1, 7, 7, 8, 8)
    W1_AT = (10, 10); WQA = -2; BW_AT = None; WQA_EARLY = 0
    F1_START = 0; QMID = 99; KVCHECK_AT = 3; KVPOLL_PRE = 1
    HFLAG_T = 36; HPOLL_T = 40; HCHECK_T = 44; F2_START = 48; NF2 = 14
    NH = 20
    P = (3, 7, 12); XP = (14, 15)
    NTAILPRE = 17
    HEP = (1, 2); HST = (1, 3, 5, 7)
    SLOT_D = 'CXB'; SLOT_H = 'YA'
    TOUCH3 = 1; T3_T = 16; W2_T0 = 29; W2_LIM = 36
    OLOAD_AT = 11
    X_FLIP = 0; X_AMP = 0; LGC = 0; KVFREE = 0; KVFLAG_Q = 5; KVPRIO = 0; TSCNT = 0; TSW1 = 0; KA2 = 1; TSSKIP = (); STOUCH = 0; SENT_LATE = 1; RLATE = 0; X_EPS = 0.0; KVW_LATE = 0; PROLOG_IN = 1; OSPLIT = 1; TSP = (2, 4); NWQ1 = 8; QTOUCH = 1; QTW = 7
    SKIPDUP = 1; HLEAD = 20; HROT = 0; OUTF = ""
    TAILBAR = (1, 8, 12)
    X_UNTIL = 0; X_UPOS = 8; X_FB = 0
opt = Opt()

WS_EPOCH = 0; WS_FKV = 0x1000; WS_FH = 0x2000; WS_FO = 0x3000
WS_TSB = 0xC00000; WS_KV = 0x10000; WS_O = 0x40000; WS_H = 0x300000; WS_SIZE = 0x1000000

XN = 0; XPITCH = 1040; XN_END = 64*XPITCH
WQ = XN_END; KVR = XN_END
W1BASE = 99328
S1 = [132096, 146432, 99328, 113664]
STG = 146432; RARR = 162816; SYNC = 163072
KVS = [0, 16384, 8192, 24576]
LDS_SIZE = 163840
T2 = [i*8192 for i in range(8)] + [W1BASE + i*8192 for i in range(7)] + [KVR + i*8192 for i in range(4)]
NRES = 15

sRB = 3
sW2S, sXO = 14, 15
sTB, sHG, sWV, sTAG, sTH, sKQ = 26, 27, 28, 29, 30, 31
SX, SW1, SKV, SWS, SW2, SWO, SOUT = 32, 36, 40, 44, 48, 52, 56
SXO = 44
SWQ = 8
sROT = 4
sR, sK, sM1a, sM1b, sHS, sHS2 = 60, 61, 62, 63, 64, 65
sONE2, sLO, sHI, sJ = 66, 67, 68, 69
sVM = 70
sT0, sT1, sT2, sT3, sT4, sT5 = 72, 73, 74, 75, 76, 77
sOS = 22
sHB, sOB, sCNT, sW2B, sKVS, sKVL = 78, 79, 80, 81, 82, 83
sTS = 84
def srd(b): return f"s[{b}:{b+3}]"
def vr(b, n): return f"v[{b}:{b+n-1}]" if n > 1 else f"v{b}"

class Gen:
    def __init__(self): self.l = []; self.nl = 0; self.vm = []; self.done = -1
    def __call__(self, s):
        for x in s.strip("\n").split("\n"):
            x = x.strip()
            if x: self.l.append(("" if x.endswith(":") else "    ") + x)
    def label(self, p="L"):
        self.nl += 1; return f"{p}_{self.nl}"
    def vmop(self, s, tag=None):
        self(s); self.vm.append(tag)
    def vmneed(self, tags):
        idx = -1
        for tag in tags:
            c = [i for i, t in enumerate(self.vm) if t == tag]
            assert c, tag
            idx = max(idx, c[-1])
        return idx
    def vmwait(self, *tags, extra=""):
        idx = self.vmneed(tags)
        if idx <= self.done:
            if extra: self(f"s_waitcnt {extra}")
            return
        n = len(self.vm) - 1 - idx
        assert n <= 63, n
        self.done = idx
        self(f"s_waitcnt vmcnt({n}) {extra}")
    def ts(self, i, att=False):
        if opt.X_AMP and i == opt.X_UPOS and not att:
            l = self.label("U")
            self(f"s_memrealtime s[98:99]\ns_waitcnt lgkmcnt(0)\ns_sub_u32 s99, s98, s100\ns_mul_i32 s101, s99, {opt.X_AMP}\n{l}:\ns_memrealtime s[98:99]\ns_waitcnt lgkmcnt(0)\ns_sub_u32 s98, s98, s100\ns_cmp_lt_u32 s98, s101\ns_cbranch_scc1 {l}")
        if opt.X_UNTIL and i == opt.X_UPOS and not att:
            l = self.label("U")
            self(f"{l}:\ns_memrealtime s[98:99]\ns_waitcnt lgkmcnt(0)\ns_sub_u32 s98, s98, s100\ns_cmp_lt_u32 s98, {opt.X_UNTIL}\ns_cbranch_scc1 {l}")
        if opt.TS and (att == opt.TSA or i in (0, 15)) and i not in opt.TSSKIP:
            if opt.TSR: self(f"s_memrealtime s[{sTS+14}:{sTS+15}]\ns_waitcnt lgkmcnt(0)\ns_sub_u32 s{sTS+14}, s{sTS+14}, s{sTS+16}\ns_mul_i32 s{sTS+14}, s{sTS+14}, 10\ns_add_u32 s{sTS+i}, s{sTS+14}, s{sTS}")
            else: self(f"s_memtime s[{sTS+14}:{sTS+15}]\ns_waitcnt lgkmcnt(0)\ns_mov_b32 s{sTS+i}, s{sTS+14}")
    def text(self): return "\n".join(self.l) + "\n"

def mfma(d, a, b, c):
    cs = vr(c, 16) if isinstance(c, int) else c
    return f"v_mfma_f32_32x32x16_bf16 {vr(d,16)}, {vr(a,4)}, {vr(b,4)}, {cs}"
def mfma16(d, a, b, c):
    cs = vr(c, 4) if isinstance(c, int) else c
    return f"v_mfma_f32_16x16x32_bf16 {vr(d,4)}, {vr(a,4)}, {vr(b,4)}, {cs}"
def smf(d, a, b, idx): return f"v_smfmac_f32_32x32x32_bf16 {vr(d,16)}, {vr(a,4)}, {vr(b,8)}, v{idx}"

def build():
    g = Gen()
    NPRE = opt.NPRE
    vL, vX, vL16, vB, vA1, vA1b, vW1a, vW1b, vXW, vKB, vKA = 1, 2, 3, 4, 5, 6, 7, 8, 9, 10, 11
    vRT = 12
    vQ, vK, vK1, FB, vV0, vV1, vO, vC, vS, FA = 16, 20, 24, 32, 36, [40, 44], 48, 64, [80, 96], 112
    vKA2, vVA, vIDX, vW2, vG0, vG1, vG2, vT3, vXO, vRB, vWQ, vROW = range(120, 132)
    FACC, HB = 132, 164
    vQAa, vQB, vWQ2, vKR, vJ = 240, 241, 242, 243, 255
    XR, WK, KB, KD = 32, 164, 64, 228
    g(f"""
    s_cmp_ge_u32 s2, 256
    s_cbranch_scc1 L_END
    s_load_dwordx16 s[4:19], s[0:1], 0
    """)
    ka2 = "s_load_dwordx2 s[20:21], s[0:1], 64\ns_load_dwordx2 s[24:25], s[0:1], 80"
    if not opt.KA2: g(ka2)
    if opt.TS: g(f"s_memtime s[{sTS}:{sTS+1}]\ns_memrealtime s[{sTS+16}:{sTS+17}]")
    if opt.TSCNT: g(f"s_waitcnt lgkmcnt(0)\ns_mov_b32 s{sTS+1}, s{sTS}")
    if opt.X_UNTIL or opt.X_AMP: g("s_memrealtime s[100:101]")
    g(f"""
    v_lshrrev_b32 v16, 6, v0
    s_lshr_b32 s{sJ}, s2, 3
    s_mov_b32 s{SW1+3}, 0x20000
    v_readfirstlane_b32 s{sWV}, v16
    s_getpc_b64 s[{SW1}:{SW1+1}]
    L_PC:
    s_mov_b32 s{SW1+2}, L_END-L_PC
    v_and_b32 v17, 1, v0
    v_lshl_add_u32 v16, v16, 1, v17
    v_lshlrev_b32 v16, 7, v16
    s_lshl_b32 s{sT1}, s{sJ}, 11
    buffer_load_dword v{vJ}, v16, {srd(SW1)}, s{sT1} offen
    v_and_b32 v{vL}, 63, v0
    s_and_b32 s{sT0}, s2, 7
    s_lshr_b32 s{sTB}, s{sT0}, 1
    s_and_b32 s{sR}, s{sJ}, 7
    s_lshl3_add_u32 s{sTB}, s{sTB}, s{sR}
    s_and_b32 s{sT0}, s{sT0}, 1
    {"s_xor_b32 s%d, s%d, 1" % (sT0, sT0) if opt.X_FLIP else ""}
    s_lshr_b32 s{sT2}, s{sJ}, 3
    s_lshl2_add_u32 s{sHG}, s{sT0}, s{sT2}
    s_and_b32 s{sTH}, s{sWV}, 1
    s_lshr_b32 s{sKQ}, s{sWV}, 1
    s_lshl2_add_u32 s{sRB}, s{sTH}, s{sKQ}
    s_add_u32 s{sRB}, s{sRB}, s{sHG}
    s_and_b32 s{sRB}, s{sRB}, 7
    s_lshl_b32 s{sT2}, s{sRB}, 3
    v_lshrrev_b32 v22, 3, v{vL}
    v_add_u32 v{vROW}, s{sT2}, v22
    v_lshlrev_b32 v16, 10, v{vROW}
    v_and_b32 v17, 7, v0
    v_lshl_add_u32 v{vX}, v17, 4, v16
    v_lshlrev_b32 v{vL16}, 4, v{vL}
    v_mul_u32_u24 v16, {XPITCH}, v{vROW}
    v_lshl_add_u32 v{vXW}, v17, 4, v16
    v_bfe_u32 v16, v{vL}, 3, 1
    v_lshlrev_b32 v16, 2, v16
    v_xor_b32 v16, s{sHG}, v16
    v_lshl_add_u32 v{vKR}, v16, 3, v17
    v_mul_u32_u24 v16, {XPITCH}, v{vKR}
    v_lshrrev_b32 v18, 4, v{vL}
    v_lshl_add_u32 v{vKB}, v18, 4, v16
    v_bfe_u32 v19, v{vL}, 2, 2
    v_lshl_add_u32 v16, v18, 3, v19
    v_lshlrev_b32 v16, 5, v16
    v_and_b32 v20, 3, v{vL}
    v_lshl_add_u32 v16, v20, 3, v16
    v_add_u32 v{vKA}, {STG}, v16
    v_bfe_u32 v16, v{vL}, 4, 1
    v_lshrrev_b32 v21, 1, v17
    v_xor_b32 v16, v16, v21
    v_lshlrev_b32 v21, 10, v22
    v_lshl_add_u32 v21, v16, 5, v21
    v_and_b32 v16, 1, v{vL}
    v_lshl_add_u32 v21, v16, 4, v21
    s_lshl_b32 s{sT1}, s{sHG}, 7
    v_add_u32 v{vWQ}, s{sT1}, v21
    s_lshl_b32 s{sT0}, s{sTB}, 16
    s_lshl_b32 s{sT2}, s{sR}, 7
    """ + "".join(f"s_add_u32 s{SXO+n}, s{sT2}, {n*128}\ns_and_b32 s{SXO+n}, s{SXO+n}, 0x380\ns_or_b32 s{SXO+n}, s{SXO+n}, s{sT0}\n" for n in range(8)) + f"""
    s_mov_b32 s{SX+2}, 0x200000
    s_mov_b32 s{SX+3}, 0x20000
    s_movk_i32 s{SKV+2}, 16384
    s_mov_b32 s{SKV+3}, 0x20000
    s_and_b32 s{sT1}, s{sWV}, 3
    s_lshl2_add_u32 s{sT1}, s{sJ}, s{sT1}
    s_lshl_b32 s{sT1}, s{sT1}, 7
    s_lshl_b32 s{sT4}, s{sTH}, 13
    s_add_u32 s{sT4}, s{sT4}, {STG}
    s_lshl2_add_u32 s{sT5}, s{sTH}, s{sR}
    v_mov_b32 v22, {SYNC}
    v_mov_b32 v23, 0
    s_lshl1_add_u32 s{sT0}, s{sTB}, s{sTH}
    s_lshl_b32 s{sOB}, s{sT0}, 15
    s_add_u32 s{sOB}, s{sOB}, {WS_O}
    s_lshl2_add_u32 s{sT2}, s{sHG}, s{sKQ}
    s_lshl_b32 s{sT2}, s{sT2}, 10
    s_add_u32 s{sOS}, s{sT2}, s{sOB}
    s_mov_b32 s{SOUT+2}, {WS_SIZE}
    s_mov_b32 s{SOUT+3}, 0x20000
    v_mov_b32 v24, -1
    v_mov_b32 v25, -1
    v_mov_b32 v26, -1
    v_mov_b32 v27, -1
    s_bitcmp0_b32 s{sHG}, 2
    s_waitcnt lgkmcnt(0)
    s_cselect_b32 s{SKV}, s8, s10
    s_cselect_b32 s{SKV+1}, s9, s11
    s_mov_b32 s{SX}, s4
    s_mov_b32 s{SX+1}, s5
    buffer_load_dword v{vJ}, off, {srd(SKV)}, s{sT1}
    """)
    def xloads():
        for i in range(8): g(f"buffer_load_dwordx4 {vr(XR+4*i,4)}, v{vX}, {srd(SX)}, s{SXO+i} offen")
    sentinel = f"buffer_store_dwordx4 v[24:27], v{vL16}, {srd(SOUT)}, s{sOS} offen sc1"
    lb, lj = g.label("X"), g.label("X")
    g(f"s_cmp_ge_u32 s{sWV}, 2\ns_cbranch_scc1 {lb}")
    xloads()
    for i in range(4):
        g(f"s_add_u32 m0, s{sT4}, {i*2048}\ns_add_u32 s{sT1}, s{sT5}, {i}\ns_and_b32 s{sT1}, s{sT1}, 7\ns_lshl_b32 s{sT1}, s{sT1}, 11")
        for u in range(2): g(f"buffer_load_dwordx4 v{vL16}, {srd(SKV)}, s{sT1} offen offset:{u*1024} lds")
    g(f"ds_write_b32 v22, v23\nds_write_b32 v22, v23 offset:4\ns_waitcnt lgkmcnt(0)\ns_barrier\ns_branch {lj}\n{lb}:\ns_barrier")
    xloads()
    if opt.QTOUCH:
        g(f"""
        s_mov_b32 s{SW1}, s6
        s_mov_b32 s{SW1+1}, s7
        s_cmp_eq_u32 s{sWV}, {opt.QTW}
        s_cselect_b32 s{SW1+2}, 0x80000, 0
        s_lshl_b32 s{sT0}, s{sR}, 16
        s_lshl_b32 s{sT1}, s{sHG}, 7
        s_add_u32 s{sT0}, s{sT0}, s{sT1}
        v_lshlrev_b32 v16, 10, v{vL}
        buffer_load_dword v{vJ}, v16, {srd(SW1)}, s{sT0} offen
        """)
        if opt.QTOUCH > 1:
            g(f"""
            s_mov_b32 s{SW1}, s16
            s_mov_b32 s{SW1+1}, s17
            s_cmp_eq_u32 s{sWV}, {opt.QTW}
            s_cselect_b32 s{SW1+2}, {512*3584}, 0
            s_mul_i32 s{sT0}, s{sR}, {64*3584}
            s_mul_i32 s{sT1}, s{sHG}, 448
            s_and_b32 s{sT1}, s{sT1}, 0xffffff80
            s_add_u32 s{sT0}, s{sT0}, s{sT1}
            v_lshrrev_b32 v16, 2, v{vL}
            v_mul_u32_u24 v16, 3584, v16
            v_lshl_add_u32 v16, v20, 7, v16
            """)
            for k in range(opt.QTOUCH - 1):
                g(f"buffer_load_dword v{vJ}, v16, {srd(SW1)}, s{sT0} offen\ns_add_u32 s{sT0}, s{sT0}, {16*3584}")
    if opt.SENT_LATE: sentinel = ""
    g(f"{lj}:\n{sentinel}")
    sPB, sJK = 96, 23
    def stouch(k0, k1):
        for k in range(k0, k1): g(f"s_load_dword s{sJK}, s[{sPB}:{sPB+1}], {(k//2)*1024 + (k%2)*64}")
    def stouch1(k0, k1):
        for k in range(k0, k1): g(f"s_load_dword s{sJK}, s[{sPB}:{sPB+1}], {(k//8)*3584 + (k%8)*64}")
    if opt.STOUCH:
        g(f"""
        s_lshl3_add_u32 s{sT0}, s{sR}, s{sWV}
        s_lshl_b32 s{sT0}, s{sT0}, 13
        s_lshl_b32 s{sT1}, s{sHG}, 7
        s_add_u32 s{sT0}, s{sT0}, s{sT1}
        s_add_u32 s{sPB}, s6, s{sT0}
        s_addc_u32 s{sPB+1}, s7, 0
        """)
        stouch(0, 15)
    elif opt.KA2: g(ka2)
    else: g(f"s_load_dword s{sTAG}, s[24:25], {WS_EPOCH}")
    g(f"""
    s_mov_b32 s{SWQ}, s6
    s_mov_b32 s{SWQ+1}, s7
    s_mov_b32 s{SWQ+2}, 0x80000
    s_mov_b32 s{SWQ+3}, 0x20000
    s_mov_b32 s{SW1}, s16
    s_mov_b32 s{SW1+1}, s17
    s_mov_b32 s{SW1+2}, {512*3584}
    s_mov_b32 s{SWS+2}, {WS_SIZE}
    s_mov_b32 s{SWS+3}, 0x20000
    s_mov_b32 s{SW2}, s18
    s_mov_b32 s{SW2+1}, s19
    s_mov_b32 s{SW2+2}, {1792*1024}
    s_mov_b32 s{SW2+3}, 0x20000
    s_mov_b32 s{SWO}, s12
    s_mov_b32 s{SWO+1}, s13
    s_mov_b32 s{SWO+2}, 0x80000
    s_mov_b32 s{SWO+3}, 0x20000
    s_mov_b32 s{sONE2}, 0x3f803f80
    s_mov_b32 s{sLO}, 0x00003f80
    s_mov_b32 s{sHI}, 0x3f800000
    s_mov_b32 s{sVM}, 0x0000ffff
    s_mov_b32 s{sVM+1}, 0x0000ffff
    s_lshl_b32 s{sKVL}, s{sWV}, 10
    s_add_u32 s{sKVS}, s{sKVL}, {WS_KV}
    s_add_u32 s{sKVL}, s{sKVL}, {KVR}
    s_mul_i32 s{sK}, s{sR}, {64*3584}
    s_min_u32 s{sT3}, s{sWV}, 6
    s_lshl_b32 s{sM1a}, s{sT3}, 10
    s_add_u32 s{sT0}, s{sWV}, 8
    s_cmp_lt_u32 s{sWV}, 6
    s_cselect_b32 s{sT0}, s{sT0}, 7
    s_lshl_b32 s{sM1b}, s{sT0}, 10
    s_mul_i32 s{sT1}, s{sHG}, 448
    s_movk_i32 s{sT2}, 2341
    """)
    for dst, sm in ((vW1a, sT3), (vW1b, sT0)):
        g(f"""
        v_lshl_add_u32 v16, s{sm}, 6, v{vL}
        v_mul_lo_u32 v17, v16, s{sT2}
        v_lshrrev_b32 v17, 16, v17
        v_mul_u32_u24 v21, 28, v17
        v_sub_u32 v16, v16, v21
        v_mul_u32_u24 v17, 3584, v17
        v_lshl_add_u32 v16, v16, 4, v17
        v_add_u32 v{dst}, s{sT1}, v16
        """)
    g(f"""
    v_lshrrev_b32 v21, 5, v{vL}
    v_bfe_u32 v22, v{vL}, 4, 1
    v_lshl_add_u32 v16, v21, 3, v19
    v_mul_u32_u24 v16, 448, v16
    v_lshl_add_u32 v16, v22, 5, v16
    v_lshl_add_u32 v16, v20, 3, v16
    s_lshl_b32 s{sT0}, s{sKQ}, 7
    s_add_u32 s{sT0}, s{sT0}, {W1BASE}
    v_add_u32 v{vA1}, s{sT0}, v16
    s_cmp_lt_u32 s{sKQ}, 3
    s_cselect_b32 s{sT0}, 64, 0
    v_add_u32 v{vA1b}, s{sT0}, v{vA1}
    v_and_b32 v16, 31, v{vL}
    s_lshl_b32 s{sT0}, s{sTH}, 5
    v_add_u32 v17, s{sT0}, v16
    v_mul_u32_u24 v17, {XPITCH}, v17
    v_lshl_add_u32 v{vB}, v21, 4, v17
    v_lshlrev_b32 v16, 10, v16
    v_lshl_add_u32 v{vXO}, v21, 4, v16
    v_and_b32 v23, 15, v{vL}
    v_add_u32 v17, s{sT0}, v23
    v_mul_u32_u24 v17, {XPITCH}, v17
    v_lshl_add_u32 v{vQB}, v18, 8, v17
    v_xor_b32 v{vWQ2}, 64, v{vWQ}
    v_bfe_u32 v16, v{vL}, 3, 1
    v_lshl_or_b32 v16, v22, 1, v16
    v_xor_b32 v16, s{sKQ}, v16
    v_lshlrev_b32 v16, 5, v16
    v_lshl_add_u32 v16, v18, 14, v16
    v_lshl_add_u32 v16, v19, 7, v16
    v_lshl_add_u32 v16, v20, 3, v16
    v_add_u32 v{vQAa}, {WQ}, v16
    v_bfe_u32 v16, v{vL}, 3, 2
    v_lshlrev_b32 v17, 9, v16
    v_lshrrev_b32 v16, 1, v16
    v_xor_b32 v16, v16, v21
    v_lshl_add_u32 v17, v16, 7, v17
    v_and_b32 v16, 7, v{vL}
    v_lshl_add_u32 v17, v16, 4, v17
    v_add_u32 v{vKA2}, {KVR}, v17
    v_lshlrev_b32 v17, 9, v21
    v_lshl_add_u32 v17, v23, 4, v17
    v_add_u32 v{vVA}, {KVR + 256}, v17
    v_mov_b32 v{vIDX}, 0xdddddddd
    v_lshrrev_b32 v16, 2, v{vL}
    v_lshlrev_b32 v16, 10, v16
    v_lshl_add_u32 v{vT3}, v20, 7, v16
    v_lshl_add_u32 v16, v20, 4, v16
    s_lshl_b32 s{sT0}, s{sHG}, 7
    s_lshl_b32 s{sT1}, s{sTH}, 6
    s_add_u32 s{sT0}, s{sT0}, s{sT1}
    v_add_u32 v{vW2}, s{sT0}, v16
    v_lshlrev_b32 v16, 6, v19
    v_lshl_add_u32 v16, v22, 5, v16
    v_lshl_add_u32 v16, v20, 3, v16
    v_lshl_add_u32 v16, v21, 8, v16
    s_lshl_b32 s{sT0}, s{sKQ}, 11
    v_add_u32 v{vG0}, s{sT0}, v16
    v_add_u32 v{vG1}, {XN_END}, v{vG0}
    v_add_u32 v{vG2}, {W1BASE}, v{vG0}
    s_lshl_b32 s{sW2B}, s{sTH}, 10
    s_add_u32 s{sW2B}, s{sW2B}, s{sT0}
    s_lshl1_add_u32 s{sT0}, s{sTB}, s{sTH}
    s_mul_i32 s{sT2}, s{sT0}, 112
    s_mul_i32 s{sT1}, s{sKQ}, 28
    s_add_u32 s{sHB}, s{sT2}, s{sT1}
    s_lshl_b32 s{sHB}, s{sHB}, 10
    s_add_u32 s{sHB}, s{sHB}, {WS_H}
    s_mul_i32 s{sT1}, s{sHG}, 14
    s_add_u32 s{sT2}, s{sT2}, s{sT1}
    s_lshl2_add_u32 s{sT2}, s{sKQ}, s{sT2}
    s_lshl_b32 s{sHS}, s{sT2}, 10
    s_add_u32 s{sHS}, s{sHS}, {WS_H}
    s_cmp_lt_u32 s{sKQ}, 3
    s_cselect_b32 s{sHS2}, s{sHS}, 0x7f000000
    s_lshl_b32 s{sXO}, s{sT0}, 15
    s_lshl_b32 s{sT1}, s{sHG}, 7
    s_add_u32 s{sXO}, s{sXO}, s{sT1}
    s_lshl_b32 s{sT1}, s{sKQ}, 5
    s_add_u32 s{sXO}, s{sXO}, s{sT1}
    s_mul_i32 s{sW2S}, s{sKQ}, {28*16384}
    s_lshl_b32 s{sT0}, s{sTH}, 11
    v_add_u32 v{vRB}, s{sT0}, v{vL16}
    """)
    if opt.KA2: g(f"s_waitcnt lgkmcnt(0)\ns_load_dword s{sTAG}, s[24:25], {WS_EPOCH}")
    g(f"s_mov_b32 s{SWS}, s24\ns_mov_b32 s{SWS+1}, s25")
    def wq_dma(i):
        g(f"s_add_u32 m0, s{sKVL}, {i*8192}\ns_add_u32 s{sT0}, s{sR}, {i}\ns_and_b32 s{sT0}, s{sT0}, 7\ns_lshl_b32 s{sT0}, s{sT0}, 16")
        g.vmop(f"buffer_load_dwordx4 v{vWQ2 if (i >> 1) & 1 else vWQ}, {srd(SWQ)}, s{sT0} offen lds", ("wq", i))
    def w1_dma(c, half):
        if half == 0:
            g(f"s_add_u32 m0, s{sM1a}, {S1[c % 4]}\ns_nop 0")
            g.vmop(f"buffer_load_dwordx4 v{vW1a}, {srd(SW1)}, s{sK} offen lds", ("w1", c))
        else:
            g(f"s_add_u32 m0, s{sM1b}, {S1[c % 4]}\ns_add_u32 s{sT0}, s{sK}, {32*3584}")
            g.vmop(f"buffer_load_dwordx4 v{vW1b}, {srd(SW1)}, s{sK} offen lds", ("w1", c))
            g(f"s_sub_u32 s{sK}, s{sT0}, s{SW1+2}\ns_cselect_b32 s{sK}, s{sT0}, s{sK}")
    a0, a1, vM, vD, E, Q2 = 12, 13, 14, 15, 16, 24
    def dpp_reduce(v):
        for m in ("quad_perm:[1,0,3,2]", "quad_perm:[2,3,0,1]", "row_half_mirror"):
            g(f"s_nop 1\nv_add_f32_dpp v{v}, v{v}, v{v} {m} row_mask:0xf bank_mask:0xf")
    def issue_at(pos):
        for i in range(8):
            if opt.WQ_AT[i] == pos: wq_dma(i)
        for c in range(2):
            if opt.W1_AT[c] == pos:
                l7, lj_ = g.label("W7"), g.label("W7")
                g(f"s_cmp_eq_u32 s{sWV}, 7\ns_cbranch_scc1 {l7}")
                w1_dma(c, 0); w1_dma(c, 1)
                g(f"s_branch {lj_}\n{l7}:\ns_add_u32 s{sT0}, s{sK}, {32*3584}")
                for _ in range(2): g(f"buffer_load_dword v{vJ}, off, {srd(SW1)}, s{sHS2}")
                g(f"s_sub_u32 s{sK}, s{sT0}, s{SW1+2}\ns_cselect_b32 s{sK}, s{sT0}, s{sK}\n{lj_}:")
    def layernorm(cls):
        ny = (9 if cls == 0 else 1 + opt.QTOUCH) - opt.SENT_LATE
        g(f"v_mov_b32 v{a0}, 0\nv_mov_b32 v{a1}, 0\ns_waitcnt vmcnt({ny+4})")
        g.ts(1)
        if opt.STOUCH:
            stouch(15, 16)
            g(f"s_load_dword s{sTAG}, s[24:25], {WS_EPOCH}")
            if opt.STOUCH > 1:
                g(f"""
                s_lshl4_add_u32 s{sT0}, s{sR}, s{sWV}
                s_mul_i32 s{sT0}, s{sT0}, {4*3584}
                s_mul_i32 s{sT1}, s{sHG}, 448
                s_and_b32 s{sT1}, s{sT1}, 0xffffff80
                s_add_u32 s{sT0}, s{sT0}, s{sT1}
                s_add_u32 s{sPB}, s16, s{sT0}
                s_addc_u32 s{sPB+1}, s17, 0
                """)
                stouch1(0, 12)
        for j in range(16): g(f"v_dot2_f32_bf16 v{a0+(j&1)}, v{XR+j}, s{sONE2}, v{a0+(j&1)}")
        g(f"s_waitcnt vmcnt({ny})")
        for j in range(16, 32): g(f"v_dot2_f32_bf16 v{a0+(j&1)}, v{XR+j}, s{sONE2}, v{a0+(j&1)}")
        for r in range(4): g(f"v_mov_b32 v{Q2+r}, 0")
        g(f"v_add_f32 v{a0}, v{a0}, v{a1}")
        dpp_reduce(a0)
        g(f"""
        v_mul_f32 v{a0}, 0x3b000000, v{a0}
        v_cvt_pk_bf16_f32 v{vM}, v{a0}, v{a0}
        v_and_b32 v{vM}, 0xffff0000, v{vM}
        v_sub_f32 v{vD}, v{a0}, v{vM}
        v_xor_b32 v{vM}, 0x80000000, v{vM}
        """)
        pend = []
        for i in range(8):
            for jj in range(4):
                j = XR + 4*i + jj
                g(f"v_dot2_f32_bf16 v{E+2*jj}, v{j}, s{sLO}, v{vM}\nv_dot2_f32_bf16 v{E+2*jj+1}, v{j}, s{sHI}, v{vM}")
            for jj in range(4):
                j = XR + 4*i + jj
                acc = Q2 + 2*(jj & 1)
                g(f"v_pk_fma_f32 {vr(acc,2)}, {vr(E+2*jj,2)}, {vr(E+2*jj,2)}, {vr(acc,2)}\nv_cvt_pk_bf16_f32 v{j}, v{E+2*jj}, v{E+2*jj+1}")
            g(f"ds_write_b128 v{vXW}, {vr(XR+4*i,4)} offset:{XN + i*128}")
        g(f"v_pk_add_f32 {vr(Q2,2)}, {vr(Q2,2)}, {vr(Q2+2,2)}\nv_add_f32 v{a0}, v{Q2}, v{Q2+1}")
        dpp_reduce(a0)
        g(f"""
        v_mul_f32 v{a0}, 0x3b000000, v{a0}
        v_fma_f32 v{a0}, -v{vD}, v{vD}, v{a0}
        v_max_f32 v{a0}, 0, v{a0}
        v_cvt_pk_bf16_f32 v{a0}, v{a0}, v{a0}
        v_and_b32 v{a0}, 0xffff0000, v{a0}
        v_add_f32 v{a0}, 0x3727c5ac, v{a0}
        v_cvt_pk_bf16_f32 v{a0}, v{a0}, v{a0}
        v_and_b32 v{a0}, 0xffff0000, v{a0}
        v_sqrt_f32 v{a0}, v{a0}
        v_lshlrev_b32 v{E}, 2, v{vROW}
        v_cvt_pk_bf16_f32 v{a0}, v{a0}, v{a0}
        v_and_b32 v{a0}, 0xffff0000, v{a0}
        v_rcp_f32 v{a1}, v{a0}
        v_add_u32 v{E}, {RARR}, v{E}
        ds_write_b32 v{E}, v{a1}
        """)
        g.ts(2)
    lB, lJ = g.label("LB"), g.label("LJ")
    g(f"s_cmp_ge_u32 s{sWV}, 2\ns_cbranch_scc1 {lB}")
    AW, AQ = 64, 72
    g(f"s_mul_i32 s{sT1}, s{sHG}, 448\ns_movk_i32 s{sT2}, 2341")
    for i in range(7):
        g(f"""
        v_add_u32 v16, {64*i}, v{vL}
        v_mul_lo_u32 v17, v16, s{sT2}
        v_lshrrev_b32 v17, 16, v17
        v_mul_u32_u24 v21, 28, v17
        v_sub_u32 v16, v16, v21
        v_mul_u32_u24 v17, 3584, v17
        v_lshl_add_u32 v16, v16, 4, v17
        s_sub_u32 s{sT3}, s{sT1}, {(i%4)*1024}
        v_add_u32 v{AW+i}, s{sT3}, v16
        """)
    for w in range(8):
        g(f"v_add_u32 v{AQ+w}, {w*8192 - (w%4)*1024}, v{vWQ}\nv_add_u32 v{AQ+8+w}, {w*8192 - (w%4)*1024}, v{vWQ2}")
    g(f"""
    v_lshlrev_b32 v96, 2, v{vKR}
    v_add_u32 v96, {RARR}, v96
    v_lshrrev_b32 v19, 4, v{vL}
    v_lshrrev_b32 v21, 1, v19
    v_lshlrev_b32 v97, 2, v21
    v_xor_b32 v97, s{sHG}, v97
    v_and_b32 v98, 15, v{vL}
    v_lshlrev_b32 v98, 4, v98
    v_lshl_add_u32 v98, v97, 9, v98
    v_and_b32 v28, 1, v19
    v_lshl_add_u32 v98, v28, 3, v98
    v_lshlrev_b32 v97, 5, v97
    v_lshl_add_u32 v97, v28, 4, v97
    v_add_u32 v97, {RARR}, v97
    s_lshr_b32 s{sT1}, s{sHG}, 1
    v_xor_b32 v99, s{sT1}, v19
    v_and_b32 v99, 1, v99
    v_lshlrev_b32 v99, 7, v99
    v_lshl_add_u32 v99, v21, 3, v99
    v_lshrrev_b32 v21, 3, v{vKR}
    v_lshl_add_u32 v99, v21, 9, v99
    v_and_b32 v21, 7, v{vL}
    v_lshl_add_u32 v99, v21, 4, v99
    """)
    layernorm(0)
    NE = -opt.SENT_LATE
    lw0, lk, lv, lsp, lgo = g.label("KW"), g.label("KV"), g.label("KV"), g.label("KS"), g.label("KG")
    g(f"""
    v_mov_b32 v22, {SYNC}
    s_cmp_eq_u32 s{sWV}, 0
    s_cbranch_scc1 {lw0}
    v_mov_b32 v23, 1
    s_waitcnt vmcnt({1 + NE}) lgkmcnt(0)
    ds_write_b32 v22, v23
    """)
    if opt.TSW1: g.ts(12)
    for i in range(8):
        g(f"s_add_u32 s{sT0}, s{sR}, {i}\ns_and_b32 s{sT0}, s{sT0}, 7\ns_lshl_b32 s{sT0}, s{sT0}, 16")
        for w in range(8):
            if w % 4 == 0: g(f"s_mov_b32 m0, {WQ + (w + 8*i)*1024}\ns_nop 0")
            g(f"buffer_load_dwordx4 v{AQ + 8*((i >> 1) & 1) + w}, {srd(SWQ)}, s{sT0} offen offset:{(w%4)*1024} lds")
    if opt.TSW1: g.ts(10)
    LSP2, LGO2 = g.label("KS"), g.label("KG")
    for c in range(2):
        if c == 1:
            g(f"""
            s_mov_b32 s{sCNT}, 0
            {LSP2}:
            ds_read_b32 v23, v22
            s_add_u32 s{sCNT}, s{sCNT}, 1
            s_waitcnt lgkmcnt(0)
            v_readfirstlane_b32 s{sT1}, v23
            s_cmp_gt_u32 s{sCNT}, {opt.SPIN}
            s_cbranch_scc1 {LGO2}
            s_cmp_eq_u32 s{sT1}, 1
            s_cbranch_scc1 {LSP2}
            {LGO2}:
            """)
        for hf in range(2):
            g(f"s_add_u32 s{sT3}, s{sK}, {(32*c + 16*hf)*3584}")
            for m in range(7):
                if m % 4 == 0: g(f"s_mov_b32 m0, {S1[c] + (7*hf + m)*1024}\ns_nop 0")
                g(f"buffer_load_dwordx4 v{AW+m}, {srd(SW1)}, s{sT3} offen offset:{(m%4)*1024} lds")
    if opt.TSW1: g.ts(11)
    g(f"""
    s_waitcnt vmcnt(28)
    s_branch {lk}
    {lw0}:
    {"s_setprio 3" if opt.KVPRIO else ""}
    s_lshl_b32 s{sT0}, s{sTB}, 12
    s_add_u32 s{sT0}, s{sT0}, {WS_KV}
    s_mov_b32 s{sCNT}, 0
    s_waitcnt vmcnt({1 + NE})
    """)
    for s in range(8):
        for q in range(2): g(f"ds_read_b64_tr_b16 {vr(WK+4*s+2*q,2)}, v{vKA} offset:{s*1024+q*128}")
    g(f"""
    {lsp}:
    ds_read_b32 v23, v22
    s_add_u32 s{sCNT}, s{sCNT}, 1
    s_waitcnt lgkmcnt(0)
    v_readfirstlane_b32 s{sT1}, v23
    s_cmp_gt_u32 s{sCNT}, {opt.SPIN}
    s_cbranch_scc1 {lgo}
    s_cmp_eq_u32 s{sT1}, 0
    s_cbranch_scc1 {lsp}
    {lgo}:
    """)
    for s in range(7): g(f"ds_read_b128 {vr(KB+4*s,4)}, v{vKB} offset:{XN + s*64}")
    g(f"s_bitcmp0_b32 s{sHG}, 2\ns_cbranch_scc0 {lv}")
    for role in range(2):
        q = []
        for s in range(7, 16):
            if s >= 8: q.append([f"ds_read_b64_tr_b16 {vr(WK+4*s+2*u,2)}, v{vKA} offset:{s*1024+u*128}" for u in range(2)] + [f"ds_read_b128 {vr(KB+4*(s%8),4)}, v{vKB} offset:{XN + s*64}"])
            else: q.append([f"ds_read_b128 {vr(KB+4*s,4)}, v{vKB} offset:{XN + s*64}"])
        issued = [("b", s) for s in range(7)]
        for s in range(16):
            idx = max(i for i, x in enumerate(issued) if x == ("b", s))
            g(f"s_waitcnt lgkmcnt({min(15, len(issued) - 1 - idx)})")
            g(mfma16(KD, WK+4*s, KB+4*(s%8), KD if s else "0") if role == 0 else mfma16(KD, KB+4*(s%8), WK+4*s, KD if s else "0"))
            k = s + 7
            if k < 16 and (k < 8 or k - 8 <= s):
                for x in q[k-7]: g(x); issued.append(("b", k))
            if s == 9: g(f"ds_read_b32 v24, v96" if role == 0 else f"ds_read_b128 v[24:27], v97"); issued.append("r")
        g("v_mov_b32 v23, 2\ns_waitcnt lgkmcnt(0)\nds_write_b32 v22, v23\ns_nop 4")
        for k in range(4): g(f"v_mul_f32 v{KD+k}, v{KD+k}, v{24 if role == 0 else 24+k}")
        g(f"v_cvt_pk_bf16_f32 v{KD}, v{KD}, v{KD+1}\nv_cvt_pk_bf16_f32 v{KD+1}, v{KD+2}, v{KD+3}")
        if role == 0: g(f"buffer_store_dwordx2 {vr(KD,2)}, v99, {srd(SWS)}, s{sT0} offen sc1\ns_branch {lk}\n{lv}:")
        else: g(f"buffer_store_dwordx2 {vr(KD,2)}, v98, {srd(SWS)}, s{sT0} offen offset:256 sc1")
    g(f"{lk}:")
    if opt.KVPRIO: g("s_setprio 0")
    g.ts(4)
    kmark = len(g.vm)
    if opt.KVFLAG_Q < 0:
        sk = g.label("KF")
        g(f"s_cmp_lg_u32 s{sWV}, 0\ns_cbranch_scc1 {sk}\ns_waitcnt vmcnt({len(g.vm) - kmark}) lgkmcnt(0)\ns_mul_i32 s{sT1}, s{sTAG}, 0x9e3779b1\ns_add_u32 s{sT1}, s{sT1}, 0x7f4a7c15")
        g(f"""
        s_lshl3_add_u32 s{sT0}, s{sTB}, s{sHG}
        s_lshl_b32 s{sT0}, s{sT0}, 4
        s_add_u32 s{sT0}, s{sT0}, {WS_FKV}
        v_mov_b32 v31, s{sT1}
        s_mov_b64 exec, 1
        buffer_store_dword v31, off, {srd(SWS)}, s{sT0} sc1
        s_mov_b64 exec, -1
        {sk}:
        """)
    g.ts(5)
    vmA = list(g.vm); g.vm = []
    g(f"s_branch {lJ}\n{lB}:")
    layernorm(1)
    assert vmA == g.vm
    g(f"""
    {lJ}:
    s_lshl_b32 s{sT0}, s{sTH}, 7
    s_add_u32 s{sT0}, s{sT0}, {RARR}
    v_and_b32 v16, 31, v{vL}
    v_lshl_add_u32 v16, v16, 2, s{sT0}
    v_and_b32 v18, 15, v{vL}
    v_lshl_add_u32 v17, v18, 2, s{sT0}
    s_mov_b32 s{SOUT}, s20
    s_mov_b32 s{SOUT+1}, s21
    s_mov_b32 s{SOUT+2}, 0x200000
    """)
    g(f"s_add_u32 s{sT0}, s{sK}, {64*3584}\ns_sub_u32 s{sK}, s{sT0}, s{SW1+2}\ns_cselect_b32 s{sK}, s{sT0}, s{sK}\ns_waitcnt lgkmcnt(0)")
    g.vm += [("w1", 0), ("w1", 0), ("w1", 1), ("w1", 1)]
    g(f"s_mul_i32 s{sTAG}, s{sTAG}, 0x9e3779b1\ns_add_u32 s{sTAG}, s{sTAG}, 0x7f4a7c15\ns_barrier")
    g.ts(3)
    g(f"ds_read_b32 v{vRT}, v16\nds_read_b32 v{vRT+1}, v16\nds_read_b32 v14, v17\nds_read_b32 v15, v17 offset:64")
    def flag_store(base):
        g(f"""
        s_lshl3_add_u32 s{sT0}, s{sTB}, s{sHG}
        s_lshl_b32 s{sT0}, s{sT0}, 4
        s_add_u32 s{sT0}, s{sT0}, {base}
        v_mov_b32 v31, s{sTAG}
        s_mov_b64 exec, 1
        buffer_store_dword v31, off, {srd(SWS)}, s{sT0} sc1
        s_mov_b64 exec, -1
        """)
    def check_or_spin(loads, regs):
        done, lab = g.label("PD"), g.label("PL")
        g(f"s_mov_b32 s{sCNT}, 0\n{lab}:")
        for r in regs: g(f"v_xor_b32 v{r}, s{sTAG}, v{r}")
        for r in regs[1:]: g(f"v_or_b32 v{regs[0]}, v{regs[0]}, v{r}")
        g(f"""
        v_cmp_ne_u32 vcc, 0, v{regs[0]}
        s_nop 4
        s_cbranch_vccz {done}
        s_add_u32 s{sCNT}, s{sCNT}, 1
        s_cmp_gt_u32 s{sCNT}, {opt.SPIN}
        s_cbranch_scc1 {done}
        s_sleep 8
        """)
        for s in loads: g(s)
        g(f"s_waitcnt vmcnt(0)\ns_branch {lab}\n{done}:")
    kvpoll = [f"buffer_load_dword v{20+k}, v{vL16}, {srd(SWS)}, s{sT1} offen offset:{k*1024} sc1" for k in range(4)]
    QA, QBf, D0 = 64, 80, 232
    def q_reads(s):
        return [f"ds_read_b64_tr_b16 {vr(QA+4*(s%4)+2*q,2)}, v{vQAa} offset:{s*1024+q*512}" for q in range(2)] + \
               [f"ds_read_b128 {vr(QBf+8*(s%4)+4*u,4)}, v{vQB} offset:{XN + u*16*XPITCH + s*16}" for u in range(2)]
    def kv_dma(c):
        g(f"s_add_u32 m0, s{sKVL}, {KVS[c%4]}\ns_add_u32 s{sT0}, s{sKVS}, {c*8192}")
        g.vmop(f"buffer_load_dwordx4 v{vL16}, {srd(SWS)}, s{sT0} offen sc1 lds", ("kv", c))
    def poll_issue():
        sk = g.label("KP")
        g(f"s_cmp_lg_u32 s{sWV}, 7\ns_cbranch_scc1 {sk}\ns_mov_b32 s{sT1}, {WS_FKV}")
        for x in kvpoll: g(x)
        g(f"{sk}:")
        poll_mark[0] = len(g.vm)
    poll_mark = [0]
    if opt.KVPOLL_Q < 0: poll_issue()
    for s in range(3):
        for x in q_reads(s): g(x)
    for s in range(16):
        if s == opt.QMID:
            sk = g.label("KC")
            g(f"s_cmp_lg_u32 s{sWV}, 7\ns_cbranch_scc1 {sk}\ns_waitcnt vmcnt(0)")
            check_or_spin(kvpoll, list(range(20, 24)))
            g(f"{sk}:\ns_barrier")
            kv_dma(0); kv_dma(1)
        g(f"s_waitcnt lgkmcnt({4*min(2, 15-s)})")
        rd = q_reads(s+3) if s + 3 < 16 else []
        for u in range(2):
            g(mfma16(D0+4*u, QA+4*(s%4), QBf+8*(s%4)+4*u, D0+4*u if s else "0"))
            for x in rd[2*u:2*u+2]: g(x)
        if s < 4:
            for r in range(4): g(f"v_mov_b32 v{vO+4*s+r}, 0")
        if s == 4: g(f"v_and_b32 v30, 27, v{vL}\nv_cmp_eq_u32 vcc, 16, v30\nv_mov_b32 v30, s{sONE2}\ns_nop 0\nv_cndmask_b32 v30, 0, v30, vcc")
        if 5 <= s < 8:
            for r in range(4): g(f"v_mov_b32 v{vV0+4*(s-5)+r}, v30")
        if s == opt.KVFLAG_Q:
            sk = g.label("KF")
            assert s < 9
            g(f"s_cmp_lg_u32 s{sWV}, 0\ns_cbranch_scc1 {sk}\ns_waitcnt vmcnt(0)")
            flag_store(WS_FKV)
            g(f"{sk}:")
        if s == opt.KVPOLL_Q: poll_issue()
        if opt.SENT_LATE and s == 9:
            for r in range(4): g(f"v_mov_b32 v{24+r}, -1")
            g.vmop(f"buffer_store_dwordx4 v[24:27], v{vL16}, {srd(SWS)}, s{sOS} offen sc1", "sent")
    cb = fb(0.25 * 1.4426950408889634)
    g(f"v_mul_f32 v14, {cb:#x}, v14\nv_mul_f32 v15, {cb:#x}, v15\ns_nop 5")
    for u in range(2):
        for r in range(4): g(f"v_mul_f32 v{D0+4*u+r}, v{D0+4*u+r}, v{14+u}")
    for u in range(2):
        for r in range(2): g(f"v_cvt_pk_bf16_f32 v{vQ+2*u+r}, v{D0+4*u+2*r}, v{D0+4*u+2*r+1}")
    g("s_nop 1")
    for r in range(2): g(f"v_permlane16_swap_b32 v{vQ+r}, v{vQ+2+r}")
    g("s_nop 0")
    for r in range(2): g(f"v_permlane32_swap_b32 v{vQ+r}, v{vQ+2+r}")
    g.ts(6)
    def f1_reads(kappa, fb_, fa):
        c, ks = kappa // 2, kappa % 2
        o = S1[c % 4] - W1BASE + ks*7168
        return [[f"ds_read_b64_tr_b16 {vr(fa+2*q,2)}, v{vA1} offset:{o + q*1792}" for q in range(2)],
                [f"ds_read_b64_tr_b16 {vr(fa+4+2*q,2)}, v{vA1b} offset:{o + q*1792}" for q in range(2)] + [f"ds_read_b128 {vr(fb_,4)}, v{vB} offset:{XN + kappa*32}"]]
    PF = lambda kappa: 164 + 12*(kappa % 4)
    assert opt.QMID >= 8 and (NPRE == 0 or opt.F1_START == 0)
    if NPRE:
        sk = g.label("W0")
        g(f"s_cmp_lg_u32 s{sWV}, 1\ns_cbranch_scc1 {sk}\ns_waitcnt vmcnt({14 + opt.SENT_LATE})\n{sk}:")
    else: g.vmwait(("kv", 1))
    g("s_barrier")
    g.ts(7)
    nkv = 0
    if opt.QMID < 16: kv_dma(2); nkv = 3
    for c in (2, 3): w1_dma(c, 0); w1_dma(c, 1)
    if NPRE:
        for kappa in range(2):
            for grp in f1_reads(kappa, PF(kappa), PF(kappa)+4):
                for x in grp: g(x)
    def kread(t, dst): return f"ds_read_b128 {vr(dst,4)}, v{vKA2} offset:{KVS[(t//4)%4] + (t%4)*2048}"
    def vread(t, u, dst): return f"ds_read_b128 {vr(dst,4)}, v{vVA} offset:{KVS[(t//4)%4] + (t%4)*2048 + u*1024}"
    def v01(t):
        g(f"s_mov_b64 exec, s[{sVM}:{sVM+1}]"); g(vread(t, 0, vV0)); g(vread(t, 1, vV1[t & 1])); g("s_mov_b64 exec, -1")
    vMX = 28
    def maxtree(first, n=32):
        regs = list(range(vS[0], vS[0]+n))
        if first: g(f"v_max3_f32 v{vMX}, v{regs[0]}, v{regs[1]}, v{regs[2]}\nv_max_f32 v{vMX}, v{vMX}, v{regs[3]}"); regs = regs[4:]
        for k in range(0, len(regs), 2): g(f"v_max3_f32 v{vMX}, v{vMX}, v{regs[k]}, v{regs[k+1]}")
    def finish_m(bias):
        g(f"""
        v_mov_b32 v31, v{vMX}
        s_nop 1
        v_permlane32_swap_b32 v31, v{vMX}
        s_nop 1
        v_max_f32 v{vMX}, v{vMX}, v31
        v_add_f32 v{vMX}, {fb(bias):#x}, v{vMX}
        v_xor_b32 v{vC}, 0x80000000, v{vMX}
        """)
        for r in range(1, 16): g(f"v_mov_b32 v{vC+r}, v{vC}")
    PIN = opt.PROLOG_IN and NPRE >= 2
    for j in range(NPRE):
        if j + 1 < NPRE: g.vmwait(("w1", j+1), extra="lgkmcnt(0)")
        elif PIN: g.vmwait(("kv", 1), ("w1", NPRE + 1), extra="lgkmcnt(0)")
        else: g("s_waitcnt lgkmcnt(0)")
        if opt.QMID >= 16 and j == opt.KVCHECK_AT:
            sk = g.label("KC")
            g(f"s_cmp_lg_u32 s{sWV}, 7\ns_cbranch_scc1 {sk}\ns_waitcnt vmcnt({len(g.vm) - poll_mark[0]})")
            check_or_spin(kvpoll, list(range(20, 24)))
            if opt.TSCNT == 3: g(f"s_lshl_b32 s{sCNT}, s{sCNT}, 3\ns_add_u32 s{sTS+1}, s{sTS}, s{sCNT}")
            g(f"{sk}:")
        g("s_barrier")
        if j in opt.TSP: g.ts(4 + opt.TSP.index(j))
        if opt.QMID >= 16 and j == opt.KVPOLL_PRE: poll_issue()
        rd = []
        if j + 1 < NPRE:
            for kappa in (2*j+2, 2*j+3):
                for grp in f1_reads(kappa, PF(kappa), PF(kappa)+4): rd += grp
        jobs = []
        if opt.QMID >= 16 and j >= opt.KVCHECK_AT:
            for _ in range(2 if (PIN and nkv == 0) else (3 - nkv + (NPRE - j) - 1) // (NPRE - j)):
                if nkv < 3: jobs.append(lambda c=nkv: kv_dma(c)); nkv += 1
        jobs += [lambda: w1_dma(j+4, 0), lambda: w1_dma(j+4, 1)]
        n = 0
        last = PIN and j == NPRE - 1
        if last:
            g(kread(0, vK)); g(kread(1, vK1)); v01(0)
        for kappa in (2*j, 2*j+1):
            for T in range(2):
                g(mfma(FACC+16*T, PF(kappa)+4+4*T, PF(kappa), FACC+16*T if kappa else "0"))
                if last and n == 0:
                    g("s_waitcnt lgkmcnt(2)"); g(mfma(vS[0], vK, vQ, "0")); g(mfma(vS[1], vK1, vQ, "0"))
                if last and n == 2:
                    g("s_nop 7\ns_nop 1"); maxtree(True)
                if last and n == 3:
                    finish_m(opt.BIAS)
                if n < 3:
                    for x in rd[n*len(rd)//3:(n+1)*len(rd)//3]: g(x)
                for jb in jobs[n*len(jobs)//4:(n+1)*len(jobs)//4]: jb()
                n += 1
    if opt.F1_START == 0 and not PIN:
        g.vmwait(("w1", NPRE + 1), ("kv", 1))
        g("s_barrier")
    g.ts(8)
    if opt.HROT:
        for u in range(4):
            g(f"""
            s_add_u32 s{sT0}, s{sHG}, {u}
            s_and_b32 s{sT0}, s{sT0}, 3
            s_sub_u32 s{sT0}, s{sT0}, {u}
            s_mul_i32 s{sT1}, s{sT0}, {7*16384}
            s_add_u32 s{sROT+u}, s{sT1}, s{sW2S}
            s_mul_i32 s{sT1}, s{sT0}, {7*1024}
            s_add_u32 s{sROT+4+u}, s{sT1}, s{sHB}
            """)
    g(f"s_cmp_lt_u32 s{sKQ}, 3\ns_cselect_b64 vcc, -1, 0")
    if not PIN:
        g(kread(0, vK)); g(kread(1, vK1))
        v01(0)
        g("s_waitcnt lgkmcnt(2)")
        g(mfma(vS[0], vK, vQ, "0")); g(mfma(vS[1], vK1, vQ, "0"))
        g("s_nop 7\ns_nop 2")
        maxtree(True)
        finish_m(opt.BIAS)
    g("s_nop 1")
    g(mfma(vS[0], vK, vQ, vC))
    g(kread(1, vK))
    g("s_nop 7\ns_nop 2")
    def w2_dma(step, slot):
        g(f"s_add_u32 m0, s{sW2B}, {T2[slot]}")
        if step < 28:
            if opt.HROT: g(f"s_add_u32 s{sT0}, s{sROT + step//7}, {step*16384}")
            else: g(f"s_add_u32 s{sT0}, s{sW2S}, {step*16384}")
            S = SW2
        else:
            g(f"s_lshl_b32 s{sT0}, s{sKQ}, 17\ns_add_u32 s{sT0}, s{sT0}, {(step-28)*16384}"); S = SWO
        g.vmop(f"buffer_load_dwordx4 v{vW2}, {srd(S)}, s{sT0} offen lds", ("w2", step))
    slot_of = {}
    def lds_base(off):
        return (0, off) if off < XN_END else ((1, off - XN_END) if off < W1BASE else (2, off - W1BASE))
    def a_reads(step, fa):
        b, o = lds_base(T2[slot_of[step]])
        return [[f"ds_read_b64_tr_b16 {vr(fa+4*n+2*q,2)}, v{vG0+b} offset:{o + n*1024 + q*512}" for q in range(2)] for n in range(2)]
    HR = lambda i: HB + 4*(i % opt.NH)
    def h_load(i):
        if i == 28: g(f"s_lshl_b32 s{sHB}, s{sKQ}, 13\ns_add_u32 s{sHB}, s{sHB}, s{sOB}")
        elif opt.HROT:
            if i % 7 in (0, 4): g(f"s_add_u32 s{sHB}, s{sROT + 4 + i//7}, {i*1024}")
            g.vmop(f"buffer_load_dwordx4 {vr(HR(i),4)}, v{vL16}, {srd(SWS)}, s{sHB} offen offset:{(i%7%4)*1024} sc1", ("h", i))
            return
        elif i and i % 4 == 0: g(f"s_add_u32 s{sHB}, s{sHB}, 4096")
        g.vmop(f"buffer_load_dwordx4 {vr(HR(i),4)}, v{vL16}, {srd(SWS)}, s{sHB} offen offset:{(i%4)*1024} sc1", ("h", i))
    hpoll = [f"buffer_load_dword v29, v30, {srd(SWS)}, s{sT1} offen sc1"]
    def pair_flag_addr(base):
        g(f"""
        s_lshl2_add_u32 s{sT1}, s{sTB}, s{sKQ}
        s_lshl_b32 s{sT1}, s{sT1}, 5
        s_add_u32 s{sT1}, s{sT1}, {base}
        v_and_b32 v30, 16, v{vL16}
        """)
    def touch3():
        a, b = g.label("T3"), g.label("T3")
        g(f"""
        s_lshr_b32 s{sT0}, s{sHG}, 2
        s_lshl_b32 s{sT0}, s{sT0}, 9
        s_cmp_eq_u32 s{sWV}, 7
        s_cbranch_scc1 {a}
        s_lshl_b32 s{sT1}, s{sWV}, 5
        s_add_u32 s{sT1}, s{sT1}, s{sJ}
        s_lshl_b32 s{sT1}, s{sT1}, 13
        s_add_u32 s{sT0}, s{sT0}, s{sT1}
        s_mov_b32 exec_hi, 0
        buffer_load_dword v{vJ}, v{vT3}, {srd(SW2)}, s{sT0} offen
        s_mov_b64 exec, -1
        s_branch {b}
        {a}:
        s_lshl_b32 s{sT1}, s{sJ}, 14
        s_add_u32 s{sT0}, s{sT0}, s{sT1}
        buffer_load_dword v{vJ}, v{vT3}, {srd(SWO)}, s{sT0} offen
        {b}:
        """)
        g.vm.append("touch")
    F1 = opt.F1_START; assert F1 % 4 == 0
    R1 = F1 + 32 - 2*NPRE
    F2 = opt.F2_START; NF2 = opt.NF2
    assert F2 + NF2 <= 64
    freeslots = []; nxt_w2 = 0; nxt_h = 0
    w2_open = False
    prevx = 0
    p2, pm, p1 = opt.P
    for t in range(64):
        c = t // 4
        S = vS[t & 1]; Sn = vS[(t+1) & 1]
        ex = lambda k: f"v_exp_f32 v{S+k}, v{S+k}"
        top = (t % 4 == 0 and t > 0)
        xm = [None, None]; xr = [[], []]
        if F1 + 1 <= t <= R1:
            xm = [mfma(FACC+16*T, FA+4*T, FB, FACC+16*T if (NPRE or t > F1 + 1) else "0") for T in range(2)]
        if F1 <= t < R1: xr = f1_reads(2*NPRE + t - F1, FB, FA)
        st = t - F2
        if 0 <= st < NF2:
            xm = [mfma(FACC+16*n, FA+4*n, HR(st), FACC+16*n if st else "0") for n in range(2)]
        rd_step = st + 1 if -1 <= st < NF2 - 1 else None
        jobs = []
        if t % 4 == 0 and c + 3 < 16: jobs.append(lambda: kv_dma(c + 3))
        cf = c - F1//4
        pc = NPRE + 2*(cf + 1)
        if cf >= 1 and pc < 16 and t % 4 < 2:
            jobs += [lambda: w1_dma(pc + t % 4, 0), lambda: w1_dma(pc + t % 4, 1)]
        if opt.TOUCH3 and t == opt.T3_T: jobs.append(touch3)
        if t == opt.HPOLL_T: jobs.append(lambda: (pair_flag_addr(WS_FH), g.vmop(hpoll[0], "hpoll")))
        hjobs = []
        nh = 0
        if t > opt.HCHECK_T:
            while nxt_h < 28 and nh < (2 if nxt_h < st + opt.HLEAD else 1) and nxt_h - opt.NH < st - 1:
                hjobs.append(lambda i=nxt_h: h_load(i)); nxt_h += 1; nh += 1
        def slot(name):
            sd = sorted(opt.SLOT_D[min(i, len(opt.SLOT_D)-1)] for i in range(len(jobs)))
            for i, jb in enumerate(jobs):
                if sd[i] == name: jb()
            sh = sorted(opt.SLOT_H[min(i, len(opt.SLOT_H)-1)] for i in range(len(hjobs)))
            for i, jb in enumerate(hjobs):
                if sh[i] == name: jb()
        for k in range(0, p2): g(ex(k))
        if t > 0: g(smf(vO, vV1[(t-1) & 1], vS[(t-1) & 1] + 8, vIDX))
        if top:
            need = []
            if c + 1 < 16: need.append(("kv", c+1))
            if 0 <= cf and NPRE + 2*cf + 1 < 16: need.append(("w1", NPRE + 2*cf + 1))
            for s_ in range(4*c - F2 + 1, 4*c - F2 + 5):
                if 0 <= s_ < NF2: need.append(("w2", s_))
            if t == opt.HFLAG_T: need.append("hst")
            if c == 15: need += [("w2", s_) for s_ in range(NF2, 36 if opt.KVFREE else min(28, NF2 + opt.NTAILPRE)) if ("w2", s_) in g.vm]
            if need: g.vmwait(*need, extra="lgkmcnt(0)")
            else: g("s_waitcnt lgkmcnt(0)")
            g("s_barrier")
            g.vis = g.done
            if c < 14: g.ts(c, True)
            if t == opt.HFLAG_T:
                sk = g.label("HF")
                g(f"s_cmp_lg_u32 s{sWV}, 0\ns_cbranch_scc1 {sk}")
                flag_store(WS_FH)
                g(f"{sk}:")
            if not w2_open and t >= R1:
                w2_open = True; freeslots += list(range(NRES))
            for s_ in range(4*(c-1) - F2 + 1, 4*(c-1) - F2 + 5):
                if 0 <= s_ < NF2: freeslots.append(slot_of[s_])
            if opt.KVFREE and c >= 13: freeslots.append(NRES + KVS[(c-1) % 4]//8192)
            g(f"s_setprio {3 - t % 4}")
        else:
            g(f"s_setprio {3 - t % 4}\ns_waitcnt lgkmcnt({prevx if opt.LGC else 0})")
        for _ in range(2 if (opt.KVFREE and t >= 52 and len(freeslots) > 3 - t % 4 + 1) else 1):
            if freeslots and nxt_w2 < opt.W2_LIM and len(jobs) < 2 and t >= opt.W2_T0 and not (opt.KVFREE and t >= 60):
                slot_of[nxt_w2] = freeslots.pop(0)
                jobs.append(lambda s_=nxt_w2: w2_dma(s_, slot_of[s_])); nxt_w2 += 1
        if rd_step is not None: xr = a_reads(rd_step, FA)
        slot('A')
        for k in range(p2, pm): g(ex(k))
        if t + 1 < 64: g(mfma(Sn, vK, vQ, vC))
        if t + 2 < 64: g(kread(t+2, vK))
        slot('B')
        for k in range(pm, p1): g(ex(k))
        g(smf(vO, vV0, S, vIDX))
        if t + 1 < 64: v01(t+1)
        slot('C')
        if t == opt.HCHECK_T:
            g.vmwait("hpoll")
            check_or_spin(hpoll, [29])
            if opt.TSCNT == 2: g(f"s_add_u32 s{sTS+1}, s{sTS}, s{sCNT}")
        for k in range(p1, opt.XP[0]): g(ex(k))
        lw = f"lgkmcnt({(1 if t + 2 < 64 else 0) + (2 if t + 1 < 64 else 0)})" if (opt.LGC and prevx and not top) else ""
        if 0 <= st < NF2: g.vmwait(("h", st), extra=lw)
        elif lw: g(f"s_waitcnt {lw}")
        if xm[0]: g(xm[0])
        prevx = len(xr[0]) + len(xr[1]) - (2 if (opt.SKIPDUP and F1 <= t < R1) else 0)
        for x in xr[0]: g(x)
        slot('X')
        for k in range(opt.XP[0], opt.XP[1]): g(ex(k))
        if opt.SKIPDUP and F1 <= t <= R1:
            sk = g.label("SD")
            g(f"s_cbranch_vccz {sk}")
            if xm[1]: g(xm[1])
            for x in xr[1][:2]: g(x)
            g(f"{sk}:")
            for x in xr[1][2:]: g(x)
        else:
            if xm[1]: g(xm[1])
            for x in xr[1]: g(x)
        slot('Y')
        for k in range(opt.XP[1], 16): g(ex(k))
        for T in range(2):
            a = FACC + 16*T
            if t == R1 + opt.HEP[T]:
                if not opt.RLATE:
                    for k in range(8): g(f"v_pk_mul_f32 {vr(a+2*k,2)}, {vr(a+2*k,2)}, {vr(vRT,2)}")
                for k in range(8): g(f"v_cvt_pk_bf16_f32 v{a+k}, v{a+2*k}, v{a+2*k+1}")
                for k in range(8): g(f"v_pk_max_i16 v{a+k}, v{a+k}, 0")
            for u in range(2):
                if t == R1 + opt.HST[2*T+u]:
                    g.vmop(f"buffer_store_dwordx4 {vr(a+4*u,4)}, v{vL16}, {srd(SWS)}, s{sHS+T} offen offset:{(2*T+u)*1024} sc1", "hst")
    XRES = 24
    g.vmop(f"buffer_load_dwordx4 {vr(XRES,4)}, v{vXO}, {srd(SX)}, s{sXO} offen", "xres")
    g("s_nop 0")
    g(smf(vO, vV1[1], vS[1] + 8, vIDX))
    g.ts(9)
    FBK, ONORM = g.label("FBK"), g.label("ON")
    while nxt_h < 28: h_load(nxt_h); nxt_h += 1
    g(f"""
    s_nop 2
    v_mov_b32 v30, {fb(2.0**115):#x}
    v_mov_b32 v31, {fb(2.0**126):#x}
    s_nop 6
    v_add_f32 v28, |v{vO}|, |v{vO+1}|
    """)
    for k in range(2, 8): g(f"v_add_f32 v28, v28, |v{vO+k}|")
    g(f"""
    v_cmp_lt_f32 vcc, v{vO+8}, v30
    v_cmp_lt_f32 s[{sT0}:{sT1}], v28, v31
    v_mov_b32 v30, {fb(2.0**-106):#x}
    v_cmp_gt_f32 s[{sT2}:{sT3}], v28, v30
    s_nop 3
    s_and_b64 vcc, vcc, s[{sT0}:{sT1}]
    s_and_b64 vcc, vcc, s[{sT2}:{sT3}]
    s_cmp_eq_u64 vcc, {0 if opt.X_FB else -1}
    s_cbranch_scc0 {FBK}
    {ONORM}:
    v_rcp_f32 v29, v{vO+8}
    s_nop 0
    """)
    for k in range(8): g(f"v_mul_f32 v{vO+k}, v{vO+k}, v29")
    for k in range(4): g(f"v_cvt_pk_bf16_f32 v{vO+k}, v{vO+2*k}, v{vO+2*k+1}")
    g.vmop(f"buffer_store_dwordx4 {vr(vO,4)}, v{vL16}, {srd(SWS)}, s{sOS} offen sc1", "ost")
    AF = [80, 88, 96]
    def tail_reads(step): return [x for grp in a_reads(step, AF[step % 3]) for x in grp]
    visible = lambda s_: ("w2", s_) in g.vm and g.vmneed([("w2", s_)]) <= g.vis
    hs = list(range(NF2, 28))
    oregs = [36, 40, 44, 52, 56, 60, 64, 68]
    def o_loads():
        g(f"s_lshl_b32 s{sT2}, s{sKQ}, 13\ns_add_u32 s{sT2}, s{sT2}, s{sOB}\ns_add_u32 s{sT3}, s{sT2}, 4096")
        return [f"buffer_load_dwordx4 {vr(oregs[i],4)}, v{vL16}, {srd(SWS)}, s{sT2 + i//4} offen offset:{(i%4)*1024} sc1" for i in range(8)]
    seq = hs + list(range(28, 36))
    def rd(i):
        assert visible(seq[i]) or (("w2", seq[i]) in g.vm and g.vmneed([("w2", seq[i])]) <= g.vis), ("not visible", seq[i])
        for x in tail_reads(seq[i]): g(x)
    done_steps = set(range(NF2))
    bars = [b for b in opt.TAILBAR if b < len(seq)]
    pend_dma = []
    rd(0); rd(1)
    for i, s_ in enumerate(seq):
        if i in bars:
            nb = min([b for b in bars if b > i] + [len(seq)])
            need = [("w2", seq[k]) for k in range(i + 2, min(nb + 2, len(seq)))]
            need = [x for x in need if x in g.vm]
            if need: g.vmwait(*need)
            g("s_barrier")
            g.vis = g.done
            used = {slot_of[x] for x in slot_of if x not in done_steps}
            fs = [x for x in range(len(T2)) if x not in used]
            while nxt_w2 < 36 and fs:
                slot_of[nxt_w2] = fs.pop(0); pend_dma.append(nxt_w2); nxt_w2 += 1
        if i == min(opt.OLOAD_AT, len(hs)):
            if not opt.TSW1: g.ts(10)
            ol = o_loads()
            for k, x in enumerate(ol): g.vmop(x, ("o", k))
        if i == len(hs):
            if not opt.TSW1: g.ts(11)
            if opt.OSPLIT:
                for u in range(5):
                    for x in a_reads(28 + u, 72 + 4*u)[0]: g(x)
            if opt.RLATE:
                g("s_nop 1")
                for k in range(16): g(f"v_pk_mul_f32 {vr(FACC+2*k,2)}, {vr(FACC+2*k,2)}, {vr(vRT,2)}")
            g.vmwait(("o", 7))
            done, lab = g.label("OD"), g.label("OL")
            g(f"s_mov_b32 s{sCNT}, 0\n{lab}:")
            allr = [r + k for r in oregs for k in range(4)]
            g(f"v_max3_u32 v28, v{allr[0]}, v{allr[1]}, v{allr[2]}\nv_max3_u32 v29, v{allr[3]}, v{allr[4]}, v{allr[5]}")
            for k in range(6, 32, 2): g(f"v_max3_u32 v{28 + (k//2) % 2}, v{28 + (k//2) % 2}, v{allr[k]}, v{allr[k+1]}")
            g(f"""
            v_max_u32 v28, v28, v29
            v_cmp_eq_u32 vcc, -1, v28
            s_nop 4
            s_cbranch_vccz {done}
            s_add_u32 s{sCNT}, s{sCNT}, 1
            s_cmp_gt_u32 s{sCNT}, {opt.SPIN}
            s_cbranch_scc1 {done}
            s_sleep 4
            """)
            for x in ol: g(x)
            g(f"s_waitcnt vmcnt(0)\ns_branch {lab}\n{done}:")
            if not opt.TSW1: g.ts(12)
            if opt.TSCNT == 1: g(f"s_add_u32 s{sTS+1}, s{sTS}, s{sCNT}")
        if opt.OSPLIT and s_ == 28: break
        if i + 2 < len(seq) and not (opt.OSPLIT and seq[i+2] >= 28): rd(i + 2)
        if s_ < 28: g.vmwait(("h", s_))
        g(f"s_waitcnt lgkmcnt({4*min(2, (len(hs) if opt.OSPLIT else len(seq))-1-i)})")
        b = HR(s_) if s_ < 28 else oregs[s_ - 28]
        for n in range(2):
            g(mfma(FACC+16*n, AF[s_ % 3]+4*n, b, FACC+16*n if s_ else "0"))
            for _ in range(2):
                if pend_dma:
                    x = pend_dma.pop(0); w2_dma(x, slot_of[x])
        done_steps.add(s_)
    if not opt.OSPLIT:
        g.ts(13)
        busy = {slot_of[x] for x in seq}
        F = [T2[x] for x in range(len(T2)) if x not in busy][:6]
        if len(F) < 6:
            g('s_barrier'); F = T2[:6]
        g(f"v_add_u32 v28, {XN_END}, v{vRB}\nv_add_u32 v29, {W1BASE}, v{vRB}")
        g.vmwait("xres")
        for k in range(4): g(f"v_lshlrev_b32 v{16+2*k}, 16, v{XRES+k}\nv_and_b32 v{17+2*k}, 0xffff0000, v{XRES+k}")
        rbase = [vRB, 28, 29]
        def blk(gq, src):
            p = gq*3 + (src - gq - 1) % 4
            b, o = lds_base(F[p // 2] + (p % 2)*4096)
            return rbase[b], o
        FIN = g.label("FIN")
        RD, OW = 64, 104
        for kq in range(4):
            nxt = g.label("FK")
            if kq < 3: g(f"s_cmp_lg_u32 s{sKQ}, {kq}\ns_cbranch_scc1 {nxt}")
            else: g("s_nop 1")
            for d in range(1, 4):
                gq = (kq + d) % 4
                v, o = blk(gq, kq)
                for u in range(2): g(f"ds_write_b128 v{v}, {vr(FACC+8*gq+4*u,4)} offset:{o + u*1024}")
            for e in range(8): g(f"v_mov_b32 v{OW+e}, v{FACC+8*kq+e}")
            g("s_waitcnt lgkmcnt(0)\ns_barrier")
            for d in range(1, 4):
                v, o = blk(kq, (kq + d) % 4)
                for u in range(2): g(f"ds_read_b128 {vr(RD+8*(d-1)+4*u,4)}, v{v} offset:{o + u*1024}")
            if kq < 3: g(f"s_branch {FIN}\n{nxt}:")
    else:
        busy = {slot_of[x] for x in range(28, 36)}
        lastbar = max([b for b in bars if b <= len(hs)] + [0])
        busy |= {slot_of[x] for x in seq[lastbar:]}
        if not bars: busy |= {NRES + KVS[3]//8192}
        F = [T2[x] for x in range(len(T2)) if x not in busy][:6]
        assert len(F) == 6 and all(visible(x) for x in range(28, 36))
        rbase = [vRB, 28, 29]
        def blk(gq, src):
            p = gq*3 + (src - gq - 1) % 4
            b, o = lds_base(F[p // 2] + (p % 2)*4096)
            return rbase[b], o
        FIN = g.label("FIN")
        RD, OW = 64, 104
        OA = [72, 76, 80, 84, 88, 92]
        useq = [(n, k) for n in range(2) for k in range(8)]
        def ord_(u):
            n, k = useq[u]
            return a_reads(28 + k, OA[u % 6] - 4*n)[n]
        LA = 5
        g(f"v_add_u32 v28, {XN_END}, v{vRB}\nv_add_u32 v29, {W1BASE}, v{vRB}")
        g.vmwait("xres")
        for k in range(4): g(f"v_lshlrev_b32 v{16+2*k}, 16, v{XRES+k}\nv_and_b32 v{17+2*k}, 0xffff0000, v{XRES+k}")
        def o_mfma(u, extra=0):
            n, k = useq[u]
            g(f"s_waitcnt lgkmcnt({2*min(LA-1, 15-u) + extra})")
            g(mfma(FACC+16*n, OA[u % 6], oregs[k], FACC+16*n))
            if u + LA < 16:
                for x in ord_(u + LA): g(x)
        for u in range(11): o_mfma(u)
        for kq in range(4):
            nxt = g.label("FK")
            if kq < 3: g(f"s_cmp_lg_u32 s{sKQ}, {kq}\ns_cbranch_scc1 {nxt}")
            wr = []
            for gq in (0, 1):
                if gq != kq:
                    v, o = blk(gq, kq)
                    wr += [f"ds_write_b128 v{v}, {vr(FACC+8*gq+4*u,4)} offset:{o + u*1024}" for u in range(2)]
            nw = 0
            for u in range(11, 16):
                o_mfma(u, nw)
                if wr: g(wr.pop(0)); nw += 1
            if kq == 0: g.ts(13)
            g("s_nop 7\ns_nop 3")
            for gq in (2, 3):
                if gq != kq:
                    v, o = blk(gq, kq)
                    for u in range(2): g(f"ds_write_b128 v{v}, {vr(FACC+8*gq+4*u,4)} offset:{o + u*1024}")
            for e in range(8): g(f"v_mov_b32 v{OW+e}, v{FACC+8*kq+e}")
            g("s_waitcnt lgkmcnt(0)\ns_barrier")
            for d in range(1, 4):
                v, o = blk(kq, (kq + d) % 4)
                for u in range(2): g(f"ds_read_b128 {vr(RD+8*(d-1)+4*u,4)}, v{v} offset:{o + u*1024}")
            if kq < 3: g(f"s_branch {FIN}\n{nxt}:")
    g(f"{FIN}:\ns_waitcnt lgkmcnt(4)")
    for e in range(0, 8, 2): g(f"v_pk_add_f32 {vr(OW+e,2)}, {vr(OW+e,2)}, {vr(RD+e,2)}")
    g("s_waitcnt lgkmcnt(2)")
    for e in range(0, 8, 2): g(f"v_pk_add_f32 {vr(OW+e,2)}, {vr(OW+e,2)}, {vr(RD+8+e,2)}")
    g("s_waitcnt lgkmcnt(0)")
    for e in range(0, 8, 2): g(f"v_pk_add_f32 {vr(OW+e,2)}, {vr(OW+e,2)}, {vr(RD+16+e,2)}")
    g("s_nop 1")
    for e in range(4): g(f"v_permlane32_swap_b32 v{OW+e}, v{OW+4+e}")
    g("s_nop 1")
    for e in range(0, 8, 2): g(f"v_pk_add_f32 {vr(OW+e,2)}, {vr(OW+e,2)}, {vr(16+e,2)}")
    if opt.X_EPS:
        for e in range(8): g(f"v_mul_f32 v{OW+e}, {fb(1.0 + opt.X_EPS):#x}, v{OW+e}")
    for k in range(4): g(f"v_cvt_pk_bf16_f32 v{OW+k}, v{OW+2*k}, v{OW+2*k+1}")
    g(f"buffer_store_dwordx4 {vr(OW,4)}, v{vXO}, {srd(SOUT)}, s{sXO} offen {opt.OUTF}")
    sk = g.label("EP")
    g(f"""
    s_or_b32 s{sT0}, s{sTB}, s{sHG}
    s_or_b32 s{sT0}, s{sT0}, s{sWV}
    s_cmp_lg_u32 s{sT0}, 0
    s_cbranch_scc1 {sk}
    v_mov_b32 v29, s{sTAG}
    s_mov_b64 exec, 1
    buffer_store_dword v29, off, {srd(SWS)}, 0 offset:{WS_EPOCH}
    s_mov_b64 exec, -1
    {sk}:
    """)
    if opt.TS:
        g(f"""
        s_lshl_b32 s{sT0}, s2, 3
        s_add_u32 s{sT0}, s{sT0}, s{sWV}
        s_lshl_b32 s{sT0}, s{sT0}, 7
        s_add_u32 s{sT0}, s{sT0}, {WS_TSB}
        s_memtime s[{sT2}:{sT3}]
        s_waitcnt vmcnt(0)
        s_memtime s[{sT4}:{sT5}]
        s_waitcnt lgkmcnt(0)
        s_mov_b32 s{sTS+14}, s{sT2}
        s_mov_b32 s{sTS+15}, s{sT4}
        s_memrealtime s[{sT4}:{sT5}]
        s_waitcnt lgkmcnt(0)
        s_mov_b32 s{sTS+17}, s{sT4}
        """)
        for k in range(18): g(f"v_mov_b32 v{32+k}, s{sTS+k}")
        g("v_mov_b32 v28, 0\ns_mov_b64 exec, 1")
        for k in range(5): g(f"buffer_store_dwordx4 {vr(32+4*k,4)}, v28, {srd(SWS)}, s{sT0} offen offset:{16*k}")
    g("s_endpgm")
    L1, L2 = g.label("FL"), g.label("FL")
    g(f"""
    {FBK}:
    v_subrev_u32 v30, {KVR}, v{vKA2}
    v_subrev_u32 v29, {KVR}, v{vVA}
    s_mov_b32 s{sT2}, {WS_KV}
    v_mov_b32 v{vMX}, 0xff800000
    {L1}:
    buffer_load_dwordx4 {vr(vK,4)}, v30, {srd(SWS)}, s{sT2} offen sc1
    s_waitcnt vmcnt(0)
    """)
    g(mfma(vS[0], vK, vQ, "0"))
    g("s_nop 7\ns_nop 3")
    maxtree(False, 16)
    g(f"s_add_u32 s{sT2}, s{sT2}, 2048\ns_cmp_lt_u32 s{sT2}, {WS_KV + 131072}\ns_cbranch_scc1 {L1}")
    finish_m(0.0)
    for r in range(16): g(f"v_mov_b32 v{vO+r}, 0")
    g(f"""
    s_mov_b32 s{sT2}, {WS_KV}
    {L2}:
    buffer_load_dwordx4 {vr(vK,4)}, v30, {srd(SWS)}, s{sT2} offen sc1
    s_mov_b64 exec, s[{sVM}:{sVM+1}]
    buffer_load_dwordx4 {vr(vV0,4)}, v29, {srd(SWS)}, s{sT2} offen sc1
    buffer_load_dwordx4 {vr(vV1[0],4)}, v29, {srd(SWS)}, s{sT2} offen offset:1024 sc1
    s_mov_b64 exec, -1
    s_waitcnt vmcnt(0)
    """)
    g(mfma(vS[0], vK, vQ, vC))
    g("s_nop 7\ns_nop 3")
    for k in range(16): g(f"v_exp_f32 v{vS[0]+k}, v{vS[0]+k}")
    g("s_nop 1")
    g(smf(vO, vV0, vS[0], vIDX)); g(smf(vO, vV1[0], vS[0]+8, vIDX))
    g(f"s_add_u32 s{sT2}, s{sT2}, 2048\ns_cmp_lt_u32 s{sT2}, {WS_KV + 131072}\ns_cbranch_scc1 {L2}")
    g(f"s_nop 7\ns_nop 3\ns_branch {ONORM}")
    g("L_END:\ns_endpgm")
    body = g.text()
    hdr = open("parallel_sum__grouped_kv_mqa__dense_activation_relu__prompt.s.ref").read().split("; Override launch")[0]
    out = hdr + f"; @launch grid=(256,1,1) block=(512,1,1) lds={LDS_SIZE}\n"
    out += """; One persistent launch, 256 workgroups x 8 waves, workgroup = (64-token block tb, head group / column slice hg).
"""
    out += f""".amdgcn_target "amdgcn-amd-amdhsa--gfx950"
.text
.globl {NAME}
.p2align 8
.type {NAME},@function
{NAME}:
""" + body + f""".section .rodata,"a"
.p2align 6
.amdhsa_kernel {NAME}
  .amdhsa_next_free_vgpr 256
  .amdhsa_next_free_sgpr 102
  .amdhsa_accum_offset 256
  .amdhsa_group_segment_fixed_size 0
  .amdhsa_kernarg_size 88
  .amdhsa_user_sgpr_count 2
  .amdhsa_user_sgpr_kernarg_segment_ptr 1
  .amdhsa_system_sgpr_workgroup_id_x 1
.end_amdhsa_kernel
"""
    return out

if __name__ == "__main__":
    outp = sys.argv[1]
    for a in sys.argv[2:]:
        k, v = a.split("=", 1)
        assert hasattr(opt, k), k
        setattr(opt, k, eval(v))
    open(outp, "w").write(build())
```
